```python
import torch

def _softmax(x, axis=-1):
    return torch.softmax(x, dim=axis)
def _gelu(x):
    return torch.nn.functional.gelu(x, approximate="tanh")
def _silu(x):
    return torch.nn.functional.silu(x)
def _sigmoid(x):
    return torch.sigmoid(x)
def _layernorm(x, axis=-1, eps=1e-5):
    m = x.mean(dim=axis, keepdim=True)
    v = x.var(dim=axis, keepdim=True, unbiased=False)
    return (x - m) / torch.sqrt(v + eps)
def _scatter_add(tgt, idx, src, axis=0):
    return tgt.clone().index_add_(axis, idx, src)
def _segment_sum(src, seg, n):
    out = torch.zeros((n,) + src.shape[1:], dtype=src.dtype)
    return out.index_add_(0, seg, src)
def _pad(x, pw):
    flat = tuple(v for pair in reversed(pw) for v in pair)
    return torch.nn.functional.pad(x, flat)

kernel_name = 'standalone__kv_cache_quant_int4_int2_kv_with_per_channel_or_per_token_scales__sampling'

def setup_inputs():

    _w = (lambda a: (lambda t: t.to(torch.bfloat16) if t.is_floating_point() else t)(torch.as_tensor(a)))
    B = 8
    Sq = 4
    Skv = 4096
    Hq = 32
    Hkv = 32
    Dh = 192
    bits = 2
    G = 64
    if G <= 0 or G >= Skv:
        G = max(1, Skv // 2)
    Skv = (Skv // G) * G
    ngk = Skv // G
    qmax = (1 << bits) - 1
    return {
        "q": _w((lambda *s: torch.randn(*s, dtype=torch.bfloat16) * 3.2)(B, Hq, Sq, Dh)),
        "qk": _w(torch.randint(0, qmax + 1, (B, Hkv, Skv, Dh)).to(torch.int32)),
        "qv": _w(torch.randint(0, qmax + 1, (B, Hkv, Skv, Dh)).to(torch.int32)),
        "k_scales": _w(torch.abs((lambda *s: torch.randn(*s, dtype=torch.bfloat16) * 3.2)(B, Hkv, ngk, Dh)) * 0.05 + 0.02),
        "k_zeros": _w((lambda *s: torch.randn(*s, dtype=torch.bfloat16) * 3.2)(B, Hkv, ngk, Dh) + float(qmax) / 2.0),
        "v_scales": _w(torch.abs((lambda *s: torch.randn(*s, dtype=torch.bfloat16) * 0.05)(B, Hkv, Skv, 1)) * 0.05 + 0.02),
        "v_zeros": _w((lambda *s: torch.randn(*s, dtype=torch.bfloat16) * 0.05)(B, Hkv, Skv, 1) + float(qmax) / 2.0),
    }

def reference(q, qk, qv, k_scales, k_zeros, v_scales, v_zeros):
    B, Hq, Sq, Dh = q.shape
    Hkv, Skv = qk.shape[1], qk.shape[2]
    ngk = k_scales.shape[2]
    G = Skv // ngk
    ks = (lambda x, n, axis: torch.repeat_interleave(x, n, dim=axis))(k_scales, G, axis=2)
    kz = (lambda x, n, axis: torch.repeat_interleave(x, n, dim=axis))(k_zeros, G, axis=2)
    k = ((lambda x, dt: x.to(dt))(qk, q.dtype) - kz) * ks
    v = ((lambda x, dt: x.to(dt))(qv, q.dtype) - v_zeros) * v_scales
    rep = Hq // Hkv
    if rep > 1:
        k = (lambda x, n, axis: torch.repeat_interleave(x, n, dim=axis))(k, rep, axis=1)
        v = (lambda x, n, axis: torch.repeat_interleave(x, n, dim=axis))(v, rep, axis=1)
    scale = float(Dh) ** -0.5
    logits = torch.einsum("bhqd,bhkd->bhqk", q, k) * scale
    p = _softmax(logits, axis=-1)
    o = torch.einsum("bhqk,bhkd->bhqd", p, v)
    return o
```

```python
import sys, math

NAME = "standalone__kv_cache_quant_int4_int2_kv_with_per_channel_or_per_token_scales__sampling"
LOG2E = 0x3fb8aa3b
SCALE = 0x3d93cd3a

class Asm:
    def __init__(self): self.L = []
    def __call__(self, s): self.L.append("    " + s)
    def label(self, s): self.L.append(s + ":")
    def c(self, s): self.L.append("    ; " + s)
    def text(self): return "\n".join(self.L)

class VAlloc:
    def __init__(self, start=1): self.n = start
    def __call__(self, cnt=1, align=1):
        self.n = (self.n + align - 1)//align*align
        r = self.n; self.n += cnt
        return r

def vr(a, n): return f"v[{a}:{a+n-1}]"

def tok_consts(i):
    lo = 16*i
    if i == 2: return lo, lo+43, 2
    if i == 5: return lo+43, lo+86, 5
    cA = lo + (43 if lo >= 43 else 0) + (43 if lo >= 86 else 0)
    cB = cA + (42 if lo >= 86 else 43)
    return cA, cB, 0

def gen(G=4, kdelay=60, vdelay=36, pk=False, stamp=False, name=NAME):
    assert G in (1, 2, 4, 8)
    NBLK = 16//G
    PIECE_TOK = 4096//G
    PIECE = PIECE_TOK*768
    KV_BYTES = 256*4096*768
    L_KZ, L_KS, L_LOG, L_VSZ, L_MAX = 0, 49152, 98304, 131072, 147456
    LDS = L_MAX + 4*G*256
    WS_STAT = 256*G*3072
    WS_STAMP = 8 << 20
    A = Asm()
    va = VAlloc(1)
    vLane = va(); vT0 = va(); vT1 = va(); vT2 = va(); vT3 = va()
    vKo = va(4)
    vVo = va(4)
    vPa = va(4)
    vLogA = va()
    vMaxA = va()
    vM = va(); vLa = va(); vLb = va()
    vPar = va(16)
    vPad = va(2)
    vX = va(24, 4)
    vF = va(24, 4)
    vZ = va(24, 4); vS = va(24, 4)
    vB = vZ
    vKb = va(12, 4)
    vD = va(8, 4)
    vQ = va(6*G, 4)
    vAcc = va(48, 4)
    vP = va(4, 4)
    vSum = va(); vCor = va(); vNegM = va()
    vLg = va(); vSZ = va(2)
    vE = va(6)
    NV = va.n
    assert NV <= 256, NV
    sW, sKbase, sCur, sNext, sT0, sT1, sT2, sBlk, sRnd, sPoff = 56, 57, 58, 59, 60, 61, 62, 63, 64, 65
    sLog2e, sScale, sHi, sSelLo, sSelHi, sLdsBlk, sSlot = 66, 67, 68, 69, 70, 71, 72
    SRD_K, SRD_V, SRD_KS, SRD_KZ, SRD_VS, SRD_VZ, SRD_Q, SRD_O = 24, 28, 32, 36, 40, 44, 48, 52
    def srd(d, p, nbytes):
        A(f"s_mov_b32 s{d}, s{p}"); A(f"s_and_b32 s{d+1}, s{p+1}, 0xffff")
        A(f"s_mov_b32 s{d+2}, {nbytes}"); A(f"s_mov_b32 s{d+3}, 0x20000")

    def issue(i, tab, srdn, sbase):
        cA, cB, kind = tok_consts(i)
        out = []
        for e, cst in enumerate((cA, cB)):
            reg = tab + {0: 0, 2: 1, 5: 2+e}[kind]
            st = sT0 + e
            out.append(f"s_add_u32 s{st}, s{sbase}, {cst*768}")
            for j in range(3):
                out.append(f"buffer_load_dwordx4 {vr(vX + e*12 + j*4, 4)}, v{reg}, s[{srdn}:{srdn+3}], s{st} offen offset:{j*256} nt")
        return out

    def voff_table(tab, vn0, vlanepart):
        A(f"v_mad_u32_u24 v{tab}, v{vn0}, s{sT0}, v{vlanepart}")
        A(f"v_cmp_le_u32 vcc, 11, v{vn0}")
        A(f"v_add_u32 v{vT3}, {43*768}, v{tab}")
        A("s_nop 0")
        A(f"v_cndmask_b32 v{tab+1}, v{tab}, v{vT3}, vcc")
        A(f"v_cmp_le_u32 vcc, 6, v{vn0}")
        A("s_nop 1")
        A(f"v_cndmask_b32 v{tab+2}, v{tab}, v{vT3}, vcc")
        A(f"v_add_u32 v{vT3}, {42*768}, v{tab}")
        A(f"v_cndmask_b32 v{tab+3}, v{tab}, v{vT3}, vcc")

    A("s_cmp_ge_u32 s2, 256")
    A("s_cbranch_scc1 L_end")
    A("s_load_dwordx16 s[4:19], s[0:1], 0")
    A("s_load_dwordx4 s[20:23], s[0:1], 64")
    if stamp: A("s_memrealtime s[80:81]")
    A(f"v_lshrrev_b32 v{vT0}, 6, v0")
    A(f"v_and_b32 v{vLane}, 63, v0")
    A(f"v_readfirstlane_b32 s{sW}, v{vT0}")
    A(f"s_mov_b32 s{sT0}, 768")
    A(f"s_mul_i32 s{sKbase}, s2, {PIECE}")
    A.c("K layout: lane = kg*16 + t*4 + h")
    A(f"v_bfe_u32 v{vT1}, v{vLane}, 2, 2")
    A(f"v_lshl_add_u32 v{vT1}, v{vT0}, 2, v{vT1}")
    A(f"v_lshrrev_b32 v{vT2}, 4, v{vLane}")
    A(f"v_and_b32 v{vM}, 3, v{vLane}")
    A(f"v_lshl_add_u32 v{vT2}, v{vT2}, 2, v{vM}")
    A(f"v_lshlrev_b32 v{vT2}, 4, v{vT2}")
    voff_table(vKo, vT1, vT2)
    A(f"v_lshlrev_b32 v{vLa}, 4, v{vLane}")
    A("s_waitcnt lgkmcnt(0)")
    srd(SRD_KZ, 12, 256*24576); srd(SRD_KS, 10, 256*24576)
    A.c("stage kz / ks: wave w loads KiB y = 6w+i of the workgroup's 24 KiB")
    CH = 24576//G
    def stage_off(dst, nper, chunk):
        A(f"s_mul_i32 s{dst}, s2, {chunk}")
        A(f"s_mul_i32 s{sT2}, s{sW}, {nper*1024}")
        A(f"s_add_u32 s{dst}, s{dst}, s{sT2}")
        if G == 2:   A(f"s_lshr_b32 s{sT2}, s{sW}, 1")
        elif G == 4: A(f"s_mov_b32 s{sT2}, s{sW}")
        elif G == 8: A(f"s_lshl_b32 s{sT2}, s{sW}, 1")
        if G > 1:
            A(f"s_mul_i32 s{sT2}, s{sT2}, {255*chunk}")
            A(f"s_add_u32 s{dst}, s{dst}, s{sT2}")
    stage_off(sT1, 6, CH)
    A(f"s_add_u32 s{sT2}, s{sT1}, {3*1024 + (255*CH if G == 8 else 0)}")
    for (srdn, dst) in ((SRD_KZ, vZ), (SRD_KS, vS)):
        for i in range(6):
            A(f"buffer_load_dwordx4 {vr(dst + i*4, 4)}, v{vLa}, s[{srdn}:{srdn+3}], s{sT1 if i < 3 else sT2} offen offset:{(i % 3)*1024} nt")
    srd(SRD_K, 6, KV_BYTES)
    srd(SRD_Q, 4, 256*1536)
    A.c("q fragments: lane = kg*16 + h'*4 + qi")
    A(f"v_lshrrev_b32 v{vLb}, 2, v{vLane}")
    A(f"v_lshlrev_b32 v{vLb}, 3, v{vLb}")
    A(f"v_mul_u32_u24 v{vM}, 384, v{vM}")
    A(f"v_add_u32 v{vLb}, v{vLb}, v{vM}")
    lg = G.bit_length()-1
    A(f"s_lshr_b32 s{sT1}, s2, {lg}")
    A(f"s_mul_i32 s{sT1}, s{sT1}, 1536")
    for r in range(G):
        for j in range(3):
            A(f"buffer_load_dwordx2 {vr(vQ + r*6 + j*2, 2)}, v{vLb}, s[{SRD_Q}:{SRD_Q+3}], s{sT1} offen offset:{j*128}")
        if r < G-1: A(f"s_add_u32 s{sT1}, s{sT1}, {256//G*1536}")
    srd(SRD_VS, 14, 256*8192); srd(SRD_VZ, 16, 256*8192)
    CV = 8192//G
    stage_off(sT1, 2, CV)
    A(f"s_add_u32 s{sT2}, s{sT1}, {1024 + (255*CV if G == 8 else 0)}")
    for (srdn, dst) in ((SRD_VS, vAcc), (SRD_VZ, vAcc+8)):
        for i in range(2):
            A(f"buffer_load_dwordx4 {vr(dst + i*4, 4)}, v{vLa}, s[{srdn}:{srdn+3}], s{sT1 + i} offen nt")
    for x in issue(0, vKo, SRD_K, sKbase): A(x)
    srd(SRD_V, 8, KV_BYTES)
    A(f"s_mov_b32 s{sLog2e}, {LOG2E:#x}"); A(f"s_mov_b32 s{sScale}, {SCALE:#x}")
    A(f"s_mov_b32 s{sHi}, 0xffff0000")
    A(f"s_mov_b32 s{sSelLo}, 0x05040100"); A(f"s_mov_b32 s{sSelHi}, 0x07060302")
    A(f"s_mov_b32 s{sT0}, 768")
    A.c("K param LDS addresses: (tok>>6)*768 + lanepart")
    for i in range(8):
        cA, cB, kind = tok_consts(i)
        for e, cst in enumerate((cA, cB)):
            d = vPar + 2*i + e
            A(f"v_add_u32 v{d}, {cst}, v{vT1}")
            if kind:
                thr, add = (11, 43) if kind == 2 else (6, 43 - e)
                A(f"v_cmp_le_u32 vcc, {thr}, v{vT1}")
                A(f"v_add_u32 v{vT3}, {add}, v{d}")
                A("s_nop 0")
                A(f"v_cndmask_b32 v{d}, v{d}, v{vT3}, vcc")
            A(f"v_lshrrev_b32 v{d}, 6, v{d}")
            A(f"v_mad_u32_u24 v{d}, v{d}, s{sT0}, v{vT2}")
    A.c("V layout: lane = t*16 + ch")
    A(f"v_lshrrev_b32 v{vT1}, 4, v{vLane}")
    A(f"v_lshl_add_u32 v{vT1}, v{vT0}, 2, v{vT1}")
    A(f"v_and_b32 v{vT2}, 15, v{vLane}")
    A(f"v_lshlrev_b32 v{vT2}, 4, v{vT2}")
    voff_table(vVo, vT1, vT2)
    A.c("P layout: lane = t*16 + b*4 + qi ; n = 64g + 16b + 4w + t")
    A(f"v_bfe_u32 v{vT2}, v{vLane}, 2, 2")
    A(f"v_lshl_add_u32 v{vT1}, v{vT2}, 4, v{vT1}")
    A(f"v_cmp_le_u32 vcc, 43, v{vT1}")
    A(f"v_add_u32 v{vT3}, 43, v{vT1}")
    A("s_nop 0")
    A(f"v_cndmask_b32 v{vPa}, v{vT1}, v{vT3}, vcc")
    A(f"v_add_u32 v{vPa+1}, 43, v{vPa}")
    A(f"v_cmp_le_u32 vcc, 22, v{vT1}")
    A("s_nop 1")
    A(f"v_cndmask_b32 v{vPa+2}, v{vT1}, v{vT3}, vcc")
    A(f"v_add_u32 v{vPa+2}, {64+43}, v{vPa+2}")
    A(f"v_add_u32 v{vT3}, 42, v{vT1}")
    A(f"v_cndmask_b32 v{vPa+3}, v{vT1}, v{vT3}, vcc")
    A(f"v_add_u32 v{vPa+3}, {64+86}, v{vPa+3}")
    A(f"s_mov_b32 s{sT1}, {L_VSZ}")
    for k in range(4):
        A(f"v_lshl_add_u32 v{vPa+k}, v{vPa+k}, 2, s{sT1}")
    A(f"v_lshlrev_b32 v{vLogA}, 2, v{vLane}")
    A(f"v_lshl_add_u32 v{vMaxA}, v{vT0}, {8+lg}, v{vLogA}")
    A(f"v_add_u32 v{vMaxA}, {L_MAX}, v{vMaxA}")
    A(f"v_lshl_add_u32 v{vLogA}, v{vT0}, 13, v{vLogA}")
    A(f"v_add_u32 v{vLogA}, {L_LOG}, v{vLogA}")
    A.c("convert params to fp32 and write them to LDS")
    A(f"v_mul_u32_u24 v{vT1}, {6*2048}, v{vT0}")
    A(f"v_lshl_add_u32 v{vT1}, v{vLane}, 5, v{vT1}")
    nq = 3*G
    for a, (src, base) in enumerate(((vZ, L_KZ), (vS, L_KS))):
        for i in range(6):
            A(f"s_waitcnt vmcnt({min(63, 11 - (a*6+i) + nq + 4 + 6)})")
            t = vF + (i % 3)*8
            for k in range(4):
                A(f"v_lshlrev_b32 v{t+2*k}, 16, v{src+i*4+k}")
                A(f"v_and_b32 v{t+2*k+1}, s{sHi}, v{src+i*4+k}")
            A(f"ds_write_b128 v{vT1}, {vr(t, 4)} offset:{base + i*2048}")
            A(f"ds_write_b128 v{vT1}, {vr(t+4, 4)} offset:{base + i*2048 + 16}")
    A(f"v_lshlrev_b32 v{vT1}, 12, v{vT0}")
    A(f"v_lshl_add_u32 v{vT1}, v{vLane}, 5, v{vT1}")
    A(f"v_add_u32 v{vT1}, {L_VSZ}, v{vT1}")
    A("s_waitcnt vmcnt(6)")
    for i in range(2):
        t = vZ + i*8
        for k in range(4):
            A(f"v_perm_b32 v{t+2*k}, v{vAcc+i*4+k}, v{vAcc+8+i*4+k}, s{sSelLo}")
            A(f"v_perm_b32 v{t+2*k+1}, v{vAcc+i*4+k}, v{vAcc+8+i*4+k}, s{sSelHi}")
        A(f"ds_write_b128 v{vT1}, {vr(t, 4)} offset:{i*2048}")
        A(f"ds_write_b128 v{vT1}, {vr(t+4, 4)} offset:{i*2048 + 16}")
    A(f"v_mov_b32 v{vM}, 0xff800000")
    A(f"s_mov_b32 s{sCur}, s{sKbase}")
    A(f"s_mov_b32 s{sBlk}, 0")
    A(f"s_mov_b32 s{sLdsBlk}, 0")
    A("s_waitcnt lgkmcnt(0)")
    A("s_barrier")

    def par_reads(i, nextblk):
        out = []
        for e in range(2):
            out.append(f"v_add_u32 v{vPad+e}, s{sLdsBlk}, v{vPar+2*i+e}")
        for e in range(2):
            for j in range(3):
                out.append(f"ds_read_b128 {vr(vZ+e*12+j*4, 4)}, v{vPad+e} offset:{L_KZ + j*256}")
                out.append(f"ds_read_b128 {vr(vS+e*12+j*4, 4)}, v{vPad+e} offset:{L_KS + j*256}")
        return out
    for x in par_reads(0, False): A(x)

    def next_base():
        A(f"s_add_u32 s{sT2}, s{sBlk}, 1")
        A(f"s_and_b32 s{sT2}, s{sT2}, {NBLK-1}")
        A(f"s_cselect_b32 s{sT2}, 0, {255*PIECE}")
        A(f"s_add_u32 s{sNext}, s{sCur}, s{sT2}")
        A(f"s_add_u32 s{sNext}, s{sNext}, {256*768}")

    def dpp_sum(e, b):
        D = vD + 4*e
        L = vLa if e == 0 else vLb
        t = vT1 + e
        return [f"v_add_f32_dpp v{t}, v{D+(b+1) % 4}, v{D+b} row_ror:12 row_mask:0xf bank_mask:0xf",
                f"v_add_f32_dpp v{t}, v{D+(b+2) % 4}, v{t} row_ror:8 row_mask:0xf bank_mask:0xf",
                f"v_add_f32_dpp v{L}, v{D+(b+3) % 4}, v{t} row_ror:4 row_mask:0xf bank_mask:{1 << b:#x}"]

    A.label("L_kblk")
    next_base()
    for i in range(8):
        b = i % 4
        A.c(f"K step {i}")
        A("s_waitcnt vmcnt(0)")
        body = [f"v_cvt_f32_i32 v{vF+k}, v{vX+k}" for k in range(24)]
        body.append("s_waitcnt lgkmcnt(0)")
        for e in range(2):
            o = e*12
            if pk:
                body += [f"v_pk_add_f32 {vr(vF+o+k, 2)}, {vr(vF+o+k, 2)}, {vr(vZ+o+k, 2)} neg_lo:[0,1] neg_hi:[0,1]" for k in range(0, 12, 2)]
            else:
                body += [f"v_sub_f32 v{vF+o+k}, v{vF+o+k}, v{vZ+o+k}" for k in range(12)]
            body += [f"v_cvt_pk_bf16_f32 v{vF+o+k}, 0, v{vF+o+k}" for k in range(12)]
            if pk:
                body += [f"v_pk_mul_f32 {vr(vF+o+k, 2)}, {vr(vF+o+k, 2)}, {vr(vS+o+k, 2)}" for k in range(0, 12, 2)]
            else:
                body += [f"v_mul_f32 v{vF+o+k}, v{vF+o+k}, v{vS+o+k}" for k in range(12)]
            packs = [f"v_cvt_pk_bf16_f32 v{vKb+e*6+k}, v{vF+o+2*k}, v{vF+o+2*k+1}" for k in range(6)]
            if e == 1:
                d = dpp_sum(0, b)
                packs = packs[0:2] + d[0:1] + packs[2:4] + d[1:2] + packs[4:6] + d[2:3]
            body += packs
            D = vr(vD+4*e, 4)
            for j in range(3):
                body.append(f"v_mfma_f32_16x16x16_bf16 {D}, {vr(vKb+e*6+2*j, 2)}, {vr(vQ+2*j, 2)}, {'0' if j == 0 else D}")
        pos = max(24, min(kdelay, len(body)))
        for x in body[:pos]: A(x)
        if i < 7:
            for x in issue(i+1, vKo, SRD_K, sCur): A(x)
        else:
            A(f"s_cmp_eq_u32 s{sBlk}, 15")
            A("s_cbranch_scc1 L_kissue_v")
            for x in issue(0, vKo, SRD_K, sNext): A(x)
            A("s_branch L_kissue_done")
            A.label("L_kissue_v")
            for x in issue(0, vVo, SRD_V, sKbase): A(x)
            A.label("L_kissue_done")
        for x in body[pos:]: A(x)
        if i == 7:
            A(f"s_add_u32 s{sLdsBlk}, s{sLdsBlk}, {4*768}")
            A(f"s_min_u32 s{sLdsBlk}, s{sLdsBlk}, {60*768}")
        pr = par_reads((i+1) % 8, i == 7)
        d = dpp_sum(1, b)
        for x in pr[:9] + d[0:1] + pr[9:11] + d[1:2] + pr[11:14] + d[2:3]: A(x)
        if b == 3:
            A(f"v_cvt_pk_bf16_f32 v{vT1}, 0, v{vLa}")
            A(f"v_cvt_pk_bf16_f32 v{vT2}, 0, v{vLb}")
            A(f"v_mul_f32 v{vT1}, s{sScale}, v{vT1}")
            A(f"v_mul_f32 v{vT2}, s{sScale}, v{vT2}")
            A(f"v_cvt_pk_bf16_f32 v{vT3}, v{vT1}, v{vT2}")
            A(f"v_max3_f32 v{vM}, v{vM}, v{vT1}, v{vT2}")
            A(f"ds_write_b32 v{vLogA}, v{vT3} offset:{(i//4)*256}")
    A(f"v_add_u32 v{vLogA}, 512, v{vLogA}")
    A(f"s_mov_b32 s{sCur}, s{sNext}")
    A(f"s_add_u32 s{sBlk}, s{sBlk}, 1")
    A(f"s_and_b32 s{sT2}, s{sBlk}, {NBLK-1}")
    A("s_cbranch_scc1 L_kblk")
    A.c("end of a K round: park the per-lane max, rotate q")
    A(f"ds_write_b32 v{vMaxA}, v{vM}")
    A(f"v_add_u32 v{vMaxA}, 256, v{vMaxA}")
    for k in range(6*(G-1)):
        A(f"v_mov_b32 v{vQ+k}, v{vQ+6+k}")
    A(f"v_mov_b32 v{vM}, 0xff800000")
    A(f"s_cmp_lt_u32 s{sBlk}, 16")
    A("s_cbranch_scc1 L_kblk")

    A(f"v_subrev_u32 v{vLogA}, 8192, v{vLogA}")
    A(f"v_subrev_u32 v{vMaxA}, {G*256}, v{vMaxA}")
    for k in range(4): A(f"v_mov_b32 v{vP+k}, 0")
    A(f"s_mov_b32 s{sCur}, s{sKbase}")
    A(f"s_mov_b32 s{sBlk}, 0")
    A(f"s_mul_i32 s{sSlot}, s{sW}, 3072")
    A("s_waitcnt lgkmcnt(0)")
    A("s_barrier")
    def p_reads(g):
        return [f"ds_read_b32 v{vLg}, v{vLogA} offset:{g*256}",
                f"ds_read_b32 v{vSZ}, v{vPa+2*g}",
                f"ds_read_b32 v{vSZ+1}, v{vPa+2*g+1}"]
    for x in p_reads(0): A(x)

    def xlane(op, r, t):
        A("s_nop 1")
        A(f"{op}_dpp v{r}, v{r}, v{r} row_ror:4 row_mask:0xf bank_mask:0xf")
        A("s_nop 1")
        A(f"{op}_dpp v{r}, v{r}, v{r} row_ror:8 row_mask:0xf bank_mask:0xf")
        for sw in ("v_permlane16_swap_b32", "v_permlane32_swap_b32"):
            A(f"v_mov_b32 v{t}, v{r}")
            A("s_nop 1")
            A(f"{sw} v{r}, v{t}")
            A(f"{op} v{r}, v{r}, v{t}")

    A.label("L_vround")
    A(f"ds_read_b32 v{vM}, v{vMaxA}")
    for k in range(48): A(f"v_mov_b32 v{vAcc+k}, 0")
    A(f"v_mov_b32 v{vSum}, 0"); A(f"v_mov_b32 v{vCor}, 0")
    A("s_waitcnt lgkmcnt(0)")
    xlane("v_max_f32", vM, vT1)
    A(f"v_cvt_pk_bf16_f32 v{vM}, 0, v{vM}")
    A(f"v_mul_f32 v{vM}, s{sLog2e}, v{vM}")
    A.label("L_vblk")
    next_base()
    for i in range(8):
        b = i % 4
        g = i//4
        A.c(f"V step {i}")
        pre = []
        if b == 0:
            E = vE
            pre += ["s_waitcnt lgkmcnt(0)",
                    f"v_lshlrev_b32 v{E}, 16, v{vLg}",
                    f"v_and_b32 v{E+1}, s{sHi}, v{vLg}",
                    f"v_fma_f32 v{E}, v{E}, s{sLog2e}, -v{vM}",
                    f"v_fma_f32 v{E+1}, v{E+1}, s{sLog2e}, -v{vM}",
                    f"v_exp_f32 v{E}, v{E}",
                    f"v_exp_f32 v{E+1}, v{E+1}",
                    f"v_and_b32 v{E+2}, s{sHi}, v{vSZ}",
                    f"v_and_b32 v{E+3}, s{sHi}, v{vSZ+1}",
                    f"v_mul_f32 v{E+2}, v{E}, v{E+2}",
                    f"v_mul_f32 v{E+3}, v{E+1}, v{E+3}",
                    f"v_add_f32 v{vSum}, v{vSum}, v{E}",
                    f"v_cvt_pk_bf16_f32 v{E+2}, v{E+2}, v{E+3}",
                    f"v_add_f32 v{vSum}, v{vSum}, v{E+1}",
                    f"v_lshlrev_b32 v{E+4}, 16, v{vSZ}",
                    f"v_lshlrev_b32 v{E+5}, 16, v{vSZ+1}",
                    f"v_lshlrev_b32 v{E}, 16, v{E+2}",
                    f"v_and_b32 v{E+1}, s{sHi}, v{E+2}",
                    f"v_fmac_f32 v{vCor}, v{E}, v{E+4}",
                    f"v_fmac_f32 v{vCor}, v{E+1}, v{E+5}"]
            pre += [f"v_mov_b32_dpp v{vP+k}, v{E+2} quad_perm:[0,1,2,3] row_mask:0xf bank_mask:{1 << k:#x}" for k in range(4)]
            if g == 1:
                pre += [f"v_add_u32 v{vLogA}, 512, v{vLogA}"] + [f"v_add_u32 v{vPa+k}, 1024, v{vPa+k}" for k in range(2)]
                pre += p_reads(0)
            else:
                pre += p_reads(1)
                pre += [f"v_add_u32 v{vPa+k}, 1024, v{vPa+k}" for k in range(2, 4)]
        A("s_waitcnt vmcnt(0)")
        body = [f"v_cvt_f32_i32 v{vF+k}, v{vX+k}" for k in range(24)]
        body += [f"v_cvt_pk_bf16_f32 v{vB+k*4+b}, v{vF+k}, v{vF+12+k}" for k in range(12)]
        body += pre
        if b == 3:
            body += [f"v_mfma_f32_16x16x32_bf16 {vr(vAcc+4*k, 4)}, {vr(vP, 4)}, {vr(vB+4*k, 4)}, {vr(vAcc+4*k, 4)}" for k in range(12)]
        pos = max(24, min(vdelay, len(body)))
        for x in body[:pos]: A(x)
        if i < 7:
            for x in issue(i+1, vVo, SRD_V, sCur): A(x)
        else:
            A(f"s_cmp_eq_u32 s{sBlk}, 15")
            A("s_cbranch_scc1 L_vissue_done")
            for x in issue(0, vVo, SRD_V, sNext): A(x)
            A.label("L_vissue_done")
        for x in body[pos:]: A(x)
    A(f"s_mov_b32 s{sCur}, s{sNext}")
    A(f"s_add_u32 s{sBlk}, s{sBlk}, 1")
    A(f"s_and_b32 s{sT2}, s{sBlk}, {NBLK-1}")
    A("s_cbranch_scc1 L_vblk")
    A.c("end of a V round: reduce over lane groups, park O and (m, l, c) in LDS")
    xlane("v_add_f32", vSum, vT1)
    xlane("v_add_f32", vCor, vT1)
    A(f"v_mov_b32 v{vF}, v{vM}"); A(f"v_mov_b32 v{vF+1}, v{vSum}"); A(f"v_mov_b32 v{vF+2}, v{vCor}"); A(f"v_mov_b32 v{vF+3}, 0")
    A(f"v_lshlrev_b32 v{vT1}, 2, v{vLane}")
    A(f"v_sub_u32 v{vT1}, v{vMaxA}, v{vT1}")
    A(f"v_and_b32 v{vT2}, 3, v{vLane}")
    A(f"v_lshl_add_u32 v{vT1}, v{vT2}, 4, v{vT1}")
    A(f"ds_write_b128 v{vT1}, {vr(vF, 4)}")
    A(f"v_add_u32 v{vMaxA}, 256, v{vMaxA}")
    for k in range(12):
        a = vAcc + 4*k
        A(f"v_permlane32_swap_b32 v{a}, v{a+2}")
        A(f"v_permlane32_swap_b32 v{a+1}, v{a+3}")
    for k in range(12):
        a = vAcc + 4*k
        A(f"v_add_f32 v{a}, v{a}, v{a+2}")
        A(f"v_add_f32 v{a+1}, v{a+1}, v{a+3}")
    A("s_nop 1")
    for k in range(12):
        a = vAcc + 4*k
        A(f"v_permlane16_swap_b32 v{a}, v{a+1}")
    for k in range(12):
        a = vAcc + 4*k
        A(f"v_add_f32 v{vF+4+k}, v{a}, v{a+1}")
    A(f"v_lshrrev_b32 v{vT1}, 4, v{vLane}")
    A(f"v_mul_u32_u24 v{vT1}, 768, v{vT1}")
    A(f"v_and_b32 v{vT2}, 15, v{vLane}")
    A(f"v_lshl_add_u32 v{vT1}, v{vT2}, 4, v{vT1}")
    A(f"v_add_u32 v{vT2}, s{sSlot}, v{vT1}")
    for j in range(3):
        A(f"ds_write_b128 v{vT2}, {vr(vF+4+4*j, 4)} offset:{j*256}")
    A(f"s_add_u32 s{sSlot}, s{sSlot}, {4*3072}")
    A(f"s_cmp_lt_u32 s{sBlk}, 16")
    A("s_cbranch_scc1 L_vround")

    A("s_waitcnt lgkmcnt(0)")
    A("s_barrier")
    if G < 4:
        A(f"s_cmp_ge_u32 s{sW}, {G}")
        A("s_cbranch_scc1 L_fin")
    if G == 1: srd(SRD_O, 18, 256*1536)
    else:      srd(SRD_O, 22, WS_STAT + 256*G*64)
    A(f"s_mov_b32 s{sRnd}, s{sW}")
    A.label("L_comb")
    A(f"s_mul_i32 s{sT0}, s{sRnd}, {4*3072}")
    A(f"v_add_u32 v{vT2}, s{sT0}, v{vT1}")
    A(f"s_lshl_b32 s{sT0}, s{sRnd}, 8")
    A(f"s_add_u32 s{sT0}, s{sT0}, {L_MAX}")
    A(f"v_and_b32 v{vT3}, 48, v{vLane}")
    A(f"v_add_u32 v{vT3}, s{sT0}, v{vT3}")
    St = vX; O = vAcc
    for w in range(4):
        A(f"ds_read_b128 {vr(St+4*w, 4)}, v{vT3} offset:{w*G*256}")
    for w in range(4):
        for j in range(3):
            A(f"ds_read_b128 {vr(O+12*w+4*j, 4)}, v{vT2} offset:{w*3072 + j*256}")
    A("s_waitcnt lgkmcnt(12)")
    combine(A, 4, St, O, vM, vSum, vE, True, "lgkmcnt(0)")
    A(f"s_lshl_b32 s{sT0}, s{sRnd}, 8")
    A(f"s_add_u32 s{sT0}, s{sT0}, s2")
    if G == 1:
        finish_out(A, O, vSum, vT1, vT2, SRD_O, sT0, sT1)
    else:
        A(f"s_mul_i32 s{sT1}, s{sT0}, 3072")
        for j in range(3):
            A(f"buffer_store_dwordx4 {vr(O+4*j, 4)}, v{vT1}, s[{SRD_O}:{SRD_O+3}], s{sT1} offen offset:{j*256}")
        A(f"s_lshl_b32 s{sT1}, s{sT0}, 6")
        A(f"s_add_u32 s{sT1}, s{sT1}, {WS_STAT}")
        A(f"v_mov_b32 v{St}, v{vM}"); A(f"v_mov_b32 v{St+1}, v{vSum}")
        A(f"v_and_b32 v{vT3}, 48, v{vLane}")
        A(f"buffer_store_dwordx2 {vr(St, 2)}, v{vT3}, s[{SRD_O}:{SRD_O+3}], s{sT1} offen")
        if G == 8:
            A(f"s_add_u32 s{sRnd}, s{sRnd}, 4")
            A(f"s_cmp_lt_u32 s{sRnd}, 8")
            A("s_cbranch_scc1 L_comb")
    A.label("L_fin")
    if stamp:
        A("s_waitcnt vmcnt(0)")
        A("s_memrealtime s[82:83]")
        A("s_getreg_b32 s84, hwreg(HW_REG_XCC_ID)")
        A("s_waitcnt lgkmcnt(0)")
        srd(76, 22, WS_STAMP + 1024*32)
        A(f"s_lshl_b32 s85, s2, 2"); A(f"s_add_u32 s85, s85, s{sW}"); A("s_lshl_b32 s85, s85, 5")
        A(f"s_add_u32 s85, s85, {WS_STAMP}")
        for k in range(5): A(f"v_mov_b32 v{vX+k}, s{80+k}")
        A(f"v_mov_b32 v{vT3}, 0")
        A("s_mov_b64 exec, 1")
        A(f"buffer_store_dwordx4 {vr(vX, 4)}, v{vT3}, s[76:79], s85 offen")
        A(f"buffer_store_dword v{vX+4}, v{vT3}, s[76:79], s85 offen offset:16")
    A.label("L_end")
    A("s_endpgm")
    main = A.text()

    kn = name + "_kernel"
    hdr = open(f"/code/{NAME}.s.ref").read().split("; Override launch")[0]
    if G == 1:
        launch = f"; @launch grid=(256,1,1) block=(256,1,1) lds={LDS}\n"
    else:
        launch = (f"; @launch kernel={kn} grid=(256,1,1) block=(256,1,1) lds={LDS}\n"
                  f"; @launch kernel=combine_kernel grid=(256,1,1) block=(64,1,1) lds=0\n")
    s = hdr + launch + f""".amdgcn_target "amdgcn-amd-amdhsa--gfx950"
.text
.globl {kn}
.p2align 8
.type {kn},@function
{kn}:
{main}
"""
    kds = [(kn, 256, 96)]
    if G > 1:
        s += f""".globl combine_kernel
.p2align 8
.type combine_kernel,@function
combine_kernel:
{gen_combine(G, WS_STAT)}
"""
        kds.append(("combine_kernel", 32 + 16*G, 40))
    s += '.section .rodata,"a"\n'
    for k, nv, ns in kds:
        s += f""".p2align 6
.amdhsa_kernel {k}
  .amdhsa_next_free_vgpr {nv}
  .amdhsa_next_free_sgpr {ns}
  .amdhsa_accum_offset {nv}
  .amdhsa_group_segment_fixed_size 0
  .amdhsa_kernarg_size 80
  .amdhsa_user_sgpr_count 2
  .amdhsa_user_sgpr_kernarg_segment_ptr 1
  .amdhsa_system_sgpr_workgroup_id_x 1
  .amdhsa_float_denorm_mode_32 3
.end_amdhsa_kernel
"""
    spec = f"{kn}:256:256:{LDS}" + ("+combine_kernel:256:64:0" if G > 1 else "")
    return s, kn, spec

def combine(A, n, St, O, vM, vSum, vE, has_corr, wait):
    A(f"v_mov_b32 v{vM}, v{St}")
    for w in range(1, n): A(f"v_max_f32 v{vM}, v{vM}, v{St+4*w}")
    for w in range(n): A(f"v_sub_f32 v{St+4*w}, v{St+4*w}, v{vM}")
    for w in range(n): A(f"v_exp_f32 v{St+4*w}, v{St+4*w}")
    A("s_nop 0")
    A(f"v_mul_f32 v{vSum}, v{St}, v{St+1}")
    for w in range(1, n): A(f"v_fmac_f32 v{vSum}, v{St+4*w}, v{St+4*w+1}")
    A(f"s_waitcnt {wait}")
    for w in range(n):
        for k in range(12):
            r = O + 12*w + k
            if has_corr: A(f"v_sub_f32 v{r}, v{r}, v{St+4*w+2}")
            if w == 0: A(f"v_mul_f32 v{r}, v{r}, v{St}")
            else:      A(f"v_fmac_f32 v{O+k}, v{r}, v{St+4*w}")

def finish_out(A, O, vSum, vOff, vT, srdn, sHead, sT):
    A(f"v_rcp_f32 v{vSum}, v{vSum}")
    A(f"v_lshrrev_b32 v{vT}, 1, v{vOff}")
    A(f"s_mul_i32 s{sT}, s{sHead}, 1536")
    for k in range(12): A(f"v_mul_f32 v{O+k}, v{O+k}, v{vSum}")
    for k in range(6): A(f"v_cvt_pk_bf16_f32 v{O+12+k}, v{O+2*k}, v{O+2*k+1}")
    for j in range(3):
        A(f"buffer_store_dwordx2 {vr(O+12+2*j, 2)}, v{vT}, s[{srdn}:{srdn+3}], s{sT} offen offset:{j*128}")

def gen_combine(G, WS_STAT):
    A = Asm()
    A("s_cmp_ge_u32 s2, 256")
    A("s_cbranch_scc1 Lc_end")
    A("s_load_dwordx2 s[4:5], s[0:1], 56")
    A("s_load_dwordx2 s[6:7], s[0:1], 72")
    A("v_lshrrev_b32 v1, 4, v0")
    A("v_mul_u32_u24 v1, 768, v1")
    A("v_and_b32 v2, 15, v0")
    A("v_lshl_add_u32 v1, v2, 4, v1")
    A("v_and_b32 v2, 48, v0")
    A(f"s_mul_i32 s16, s2, {G*3072}")
    A(f"s_mul_i32 s17, s2, {G*64}")
    A(f"s_add_u32 s17, s17, {WS_STAT}")
    A("s_waitcnt lgkmcnt(0)")
    for d, p, nb in ((8, 4, 256*1536), (12, 6, WS_STAT + 256*G*64)):
        A(f"s_mov_b32 s{d}, s{p}"); A(f"s_and_b32 s{d+1}, s{p+1}, 0xffff")
        A(f"s_mov_b32 s{d+2}, {nb}"); A(f"s_mov_b32 s{d+3}, 0x20000")
    St = 8; O = 8 + 4*G
    for w in range(G):
        A(f"buffer_load_dwordx2 {vr(St+4*w, 2)}, v2, s[12:15], s17 offen offset:{w*64}")
    for w in range(G):
        for j in range(3):
            A(f"buffer_load_dwordx4 {vr(O+12*w+4*j, 4)}, v1, s[12:15], s16 offen offset:{j*256}")
        A("s_add_u32 s16, s16, 3072")
    A(f"s_waitcnt vmcnt({3*G})")
    combine(A, G, St, O, 3, 4, 5, False, "vmcnt(0)")
    A("s_mov_b32 s18, s2")
    finish_out(A, O, 4, 1, 2, 8, 18, 19)
    A.label("Lc_end")
    A("s_endpgm")
    return A.text()

if __name__ == "__main__":
    kw = {}
    out = f"/code/{NAME}.s"
    for a in sys.argv[1:]:
        k, v = a.split("=")
        if k == "out": out = v
        else: kw[k] = eval(v)
    s, kn, spec = gen(**kw)
    open(out, "w").write(s)
    print(out, spec)
```

```python
import sys, math

NAME = "standalone__kv_cache_quant_int4_int2_kv_with_per_channel_or_per_token_scales__sampling"
LOG2E = 0x3fb8aa3b
SCALE = 0x3d93cd3a

class Asm:
    def __init__(self): self.L = []
    def __call__(self, s): self.L.append("    " + s)
    def label(self, s): self.L.append(s + ":")
    def c(self, s): self.L.append("    ; " + s)
    def text(self): return "\n".join(self.L)

class VAlloc:
    def __init__(self, start=1): self.n = start
    def __call__(self, cnt=1, align=1):
        self.n = (self.n + align - 1)//align*align
        r = self.n; self.n += cnt
        return r

def vr(a, n): return f"v[{a}:{a+n-1}]"

def tok_consts(i):
    lo = 16*i
    if i == 2: return lo, lo+43, 2
    if i == 5: return lo+43, lo+86, 5
    cA = lo + (43 if lo >= 43 else 0) + (43 if lo >= 86 else 0)
    cB = cA + (42 if lo >= 86 else 43)
    return cA, cB, 0

def gen(G=4, kpos=(60,), vpos=(36,), fb=None, grp=64, thr=(32,), every=1, mode0=0, kbias=4, vbias=4, kgain=12, vgain=24, rs=4, rot=None, dither=False, fbst=True, fbld=True, pk=False, stamp=False, dbg=False, hold=None, name=NAME):
    assert G in (1, 2, 4, 8)
    NBLK = 16//G
    PIECE_TOK = 4096//G
    PIECE = PIECE_TOK*768
    KV_BYTES = 256*4096*768
    L_KZ, L_KS, L_LOG, L_VSZ, L_MAX = 0, 49152, 98304, 131072, 147456
    L_MODE = L_MAX + 4*G*256
    LDS = L_MODE + 64
    WS_STAT = 256*G*3072
    WS_STAMP = 8 << 20
    WS_FB = 16 << 20
    A = Asm()
    va = VAlloc(1)
    vLane = va(); vT0 = va(); vT1 = va(); vT2 = va(); vT3 = va()
    vKo = va(4)
    vVo = va(4)
    vPa = va(4)
    vLogA = va()
    vMaxA = va()
    vM = va(); vLa = va(); vLb = va()
    vPar = va(16)
    vPad = va(2)
    vX = va(24, 4)
    vF = va(24, 4)
    vBuf = (vX, vF)
    vZ = va(24, 4); vS = va(24, 4)
    vB = vZ
    vKb = va(12, 4)
    vD = va(8, 4)
    vAcc = va(48, 4)
    vQ = vAcc
    vStg = va(16, 4)
    vP = va(4, 4)
    vSum = va(); vCor = va(); vNegM = va()
    vLg = va(); vSZ = va(2)
    vE = va(6)
    vPoll = va(); vPollA = va(); vModeA = va(); vMode = va()
    NV = va.n
    assert NV <= 256, NV
    sW, sKbase, sCur, sNext, sT0, sT1, sT2, sBlk, sRnd, sPoff = 56, 57, 58, 59, 60, 61, 62, 63, 64, 65
    sLog2e, sScale, sHi, sSelLo, sSelHi, sLdsBlk, sSlot = 66, 67, 68, 69, 70, 71, 72
    sMode, sProg, sTag, sOwn = 73, 74, 80, 90
    TAGW = 5000
    sNow, sFbP, sRep, sRef = 96, 98, 75, 4
    sRot, sFirst, sLb, sLbN = 12, 13, 14, 15
    sRot0, sFirst0 = 90, 91
    SRD_D = 92
    SRD_K, SRD_V, SRD_KS, SRD_KZ, SRD_VS, SRD_VZ, SRD_Q, SRD_O = 24, 28, 32, 36, 40, 44, 48, 52
    def srd(d, p, nbytes):
        A(f"s_mov_b32 s{d}, s{p}"); A(f"s_and_b32 s{d+1}, s{p+1}, 0xffff")
        A(f"s_mov_b32 s{d+2}, {nbytes}"); A(f"s_mov_b32 s{d+3}, 0x20000")

    def issue(i, tab, srdn, sbase):
        cA, cB, kind = tok_consts(i)
        vX = vBuf[i % 2]
        out = []
        for e, cst in enumerate((cA, cB)):
            reg = tab + {0: 0, 2: 1, 5: 2+e}[kind]
            st = sT0 + e
            out.append(f"s_add_u32 s{st}, s{sbase}, {cst*768}")
            for j in range(3):
                out.append(f"buffer_load_dwordx4 {vr(vX + e*12 + j*4, 4)}, v{reg}, s[{srdn}:{srdn+3}], s{st} offen offset:{j*256} nt")
        return out

    def voff_table(tab, vn0, vlanepart):
        A(f"v_mad_u32_u24 v{tab}, v{vn0}, s{sT0}, v{vlanepart}")
        A(f"v_cmp_le_u32 vcc, 11, v{vn0}")
        A(f"v_add_u32 v{vT3}, {43*768}, v{tab}")
        A("s_nop 0")
        A(f"v_cndmask_b32 v{tab+1}, v{tab}, v{vT3}, vcc")
        A(f"v_cmp_le_u32 vcc, 6, v{vn0}")
        A("s_nop 1")
        A(f"v_cndmask_b32 v{tab+2}, v{tab}, v{vT3}, vcc")
        A(f"v_add_u32 v{vT3}, {42*768}, v{tab}")
        A(f"v_cndmask_b32 v{tab+3}, v{tab}, v{vT3}, vcc")

    A("s_cmp_ge_u32 s2, 256")
    A("s_cbranch_scc1 L_end")
    A("s_load_dwordx16 s[4:19], s[0:1], 0")
    A("s_load_dwordx4 s[20:23], s[0:1], 64")
    if stamp or dbg or hold or fb == "rank": A("s_memrealtime s[80:81]")
    A(f"v_lshrrev_b32 v{vT0}, 6, v0")
    A(f"v_and_b32 v{vLane}, 63, v0")
    A(f"v_readfirstlane_b32 s{sW}, v{vT0}")
    A(f"s_mov_b32 s{sT0}, 768")
    A(f"s_mul_i32 s{sKbase}, s2, {PIECE}")
    if rot is None: A(f"s_mov_b32 s{sRot0}, 0")
    else:
        A(f"s_mul_i32 s{sRot0}, s2, {rot[0]}")
        A(f"s_lshr_b32 s{sRot0}, s{sRot0}, {rot[1]}")
        A(f"s_and_b32 s{sRot0}, s{sRot0}, {NBLK-1}")
    A(f"s_mul_i32 s{sFirst0}, s{sRot0}, {256*768}")
    A(f"s_add_u32 s{sFirst0}, s{sFirst0}, s{sKbase}")
    A.c("K layout: lane = kg*16 + t*4 + h")
    A(f"v_bfe_u32 v{vT1}, v{vLane}, 2, 2")
    A(f"v_lshl_add_u32 v{vT1}, v{vT0}, 2, v{vT1}")
    A(f"v_lshrrev_b32 v{vT2}, 4, v{vLane}")
    A(f"v_and_b32 v{vM}, 3, v{vLane}")
    A(f"v_lshl_add_u32 v{vT2}, v{vT2}, 2, v{vM}")
    A(f"v_lshlrev_b32 v{vT2}, 4, v{vT2}")
    voff_table(vKo, vT1, vT2)
    A(f"v_lshlrev_b32 v{vLa}, 4, v{vLane}")
    A("s_waitcnt lgkmcnt(0)")
    srd(SRD_KZ, 12, 256*24576); srd(SRD_KS, 10, 256*24576)
    A.c("stage kz / ks: wave w loads KiB y = 6w+i of the workgroup's 24 KiB")
    CH = 24576//G
    def stage_off(dst, nper, chunk):
        A(f"s_mul_i32 s{dst}, s2, {chunk}")
        A(f"s_mul_i32 s{sT2}, s{sW}, {nper*1024}")
        A(f"s_add_u32 s{dst}, s{dst}, s{sT2}")
        if G == 2:   A(f"s_lshr_b32 s{sT2}, s{sW}, 1")
        elif G == 4: A(f"s_mov_b32 s{sT2}, s{sW}")
        elif G == 8: A(f"s_lshl_b32 s{sT2}, s{sW}, 1")
        if G > 1:
            A(f"s_mul_i32 s{sT2}, s{sT2}, {255*chunk}")
            A(f"s_add_u32 s{dst}, s{dst}, s{sT2}")
    stage_off(sT1, 6, CH)
    A(f"s_add_u32 s{sT2}, s{sT1}, {3*1024 + (255*CH if G == 8 else 0)}")
    for (srdn, dst) in ((SRD_KZ, vZ), (SRD_KS, vS)):
        for i in range(6):
            A(f"buffer_load_dwordx4 {vr(dst + i*4, 4)}, v{vLa}, s[{srdn}:{srdn+3}], s{sT1 if i < 3 else sT2} offen offset:{(i % 3)*1024} nt")
    srd(SRD_K, 6, KV_BYTES)
    srd(SRD_Q, 4, 256*1536)
    A.c("q fragments: lane = kg*16 + h'*4 + qi")
    A(f"v_lshrrev_b32 v{vLb}, 2, v{vLane}")
    A(f"v_lshlrev_b32 v{vLb}, 3, v{vLb}")
    A(f"v_mul_u32_u24 v{vM}, 384, v{vM}")
    A(f"v_add_u32 v{vLb}, v{vLb}, v{vM}")
    lg = G.bit_length()-1
    A(f"s_lshr_b32 s{sT1}, s2, {lg}")
    A(f"s_mul_i32 s{sT1}, s{sT1}, 1536")
    for r in range(G):
        for j in range(3):
            A(f"buffer_load_dwordx2 {vr(vQ + r*6 + j*2, 2)}, v{vLb}, s[{SRD_Q}:{SRD_Q+3}], s{sT1} offen offset:{j*128}")
        if r < G-1: A(f"s_add_u32 s{sT1}, s{sT1}, {256//G*1536}")
    srd(SRD_VS, 14, 256*8192); srd(SRD_VZ, 16, 256*8192)
    CV = 8192//G
    stage_off(sT1, 2, CV)
    A(f"s_add_u32 s{sT2}, s{sT1}, {1024 + (255*CV if G == 8 else 0)}")
    for (srdn, dst) in ((SRD_VS, vStg), (SRD_VZ, vStg+8)):
        for i in range(2):
            A(f"buffer_load_dwordx4 {vr(dst + i*4, 4)}, v{vLa}, s[{srdn}:{srdn+3}], s{sT1 + i} offen nt")
    for x in issue(0, vKo, SRD_K, sFirst0): A(x)
    srd(SRD_V, 8, KV_BYTES)
    A(f"s_mov_b32 s{sRot}, s{sRot0}"); A(f"s_mov_b32 s{sFirst}, s{sFirst0}")
    A(f"s_mov_b32 s{sLog2e}, {LOG2E:#x}"); A(f"s_mov_b32 s{sScale}, {SCALE:#x}")
    A(f"s_mov_b32 s{sHi}, 0xffff0000")
    A(f"s_mov_b32 s{sSelLo}, 0x05040100"); A(f"s_mov_b32 s{sSelHi}, 0x07060302")
    A(f"s_mov_b32 s{sT0}, 768")
    A.c("K param LDS addresses: (tok>>6)*768 + lanepart")
    for i in range(8):
        cA, cB, kind = tok_consts(i)
        for e, cst in enumerate((cA, cB)):
            d = vPar + 2*i + e
            A(f"v_add_u32 v{d}, {cst}, v{vT1}")
            if kind:
                lim, add = (11, 43) if kind == 2 else (6, 43 - e)
                A(f"v_cmp_le_u32 vcc, {lim}, v{vT1}")
                A(f"v_add_u32 v{vT3}, {add}, v{d}")
                A("s_nop 0")
                A(f"v_cndmask_b32 v{d}, v{d}, v{vT3}, vcc")
            A(f"v_lshrrev_b32 v{d}, 6, v{d}")
            A(f"v_mad_u32_u24 v{d}, v{d}, s{sT0}, v{vT2}")
    A.c("V layout: lane = t*16 + ch")
    A(f"v_lshrrev_b32 v{vT1}, 4, v{vLane}")
    A(f"v_lshl_add_u32 v{vT1}, v{vT0}, 2, v{vT1}")
    A(f"v_and_b32 v{vT2}, 15, v{vLane}")
    A(f"v_lshlrev_b32 v{vT2}, 4, v{vT2}")
    voff_table(vVo, vT1, vT2)
    A.c("P layout: lane = t*16 + b*4 + qi ; n = 64g + 16b + 4w + t")
    A(f"v_bfe_u32 v{vT2}, v{vLane}, 2, 2")
    A(f"v_lshl_add_u32 v{vT1}, v{vT2}, 4, v{vT1}")
    A(f"v_cmp_le_u32 vcc, 43, v{vT1}")
    A(f"v_add_u32 v{vT3}, 43, v{vT1}")
    A("s_nop 0")
    A(f"v_cndmask_b32 v{vPa}, v{vT1}, v{vT3}, vcc")
    A(f"v_add_u32 v{vPa+1}, 43, v{vPa}")
    A(f"v_cmp_le_u32 vcc, 22, v{vT1}")
    A("s_nop 1")
    A(f"v_cndmask_b32 v{vPa+2}, v{vT1}, v{vT3}, vcc")
    A(f"v_add_u32 v{vPa+2}, {64+43}, v{vPa+2}")
    A(f"v_add_u32 v{vT3}, 42, v{vT1}")
    A(f"v_cndmask_b32 v{vPa+3}, v{vT1}, v{vT3}, vcc")
    A(f"v_add_u32 v{vPa+3}, {64+86}, v{vPa+3}")
    A(f"s_mov_b32 s{sT1}, {L_VSZ}")
    for k in range(4):
        A(f"v_lshl_add_u32 v{vPa+k}, v{vPa+k}, 2, s{sT1}")
    A(f"v_lshlrev_b32 v{vLogA}, 2, v{vLane}")
    A(f"v_lshl_add_u32 v{vMaxA}, v{vT0}, {8+lg}, v{vLogA}")
    A(f"v_add_u32 v{vMaxA}, {L_MAX}, v{vMaxA}")
    A(f"v_lshl_add_u32 v{vLogA}, v{vT0}, 13, v{vLogA}")
    A(f"v_add_u32 v{vLogA}, {L_LOG}, v{vLogA}")
    A.c("convert params to fp32 and write them to LDS")
    A(f"v_mul_u32_u24 v{vT1}, {6*2048}, v{vT0}")
    A(f"v_lshl_add_u32 v{vT1}, v{vLane}, 5, v{vT1}")
    nq = 3*G
    for a, (src, base) in enumerate(((vZ, L_KZ), (vS, L_KS))):
        for i in range(6):
            A(f"s_waitcnt vmcnt({min(63, 11 - (a*6+i) + nq + 4 + 6)})")
            t = vF + (i % 3)*8
            for k in range(4):
                A(f"v_lshlrev_b32 v{t+2*k}, 16, v{src+i*4+k}")
                A(f"v_and_b32 v{t+2*k+1}, s{sHi}, v{src+i*4+k}")
            A(f"ds_write_b128 v{vT1}, {vr(t, 4)} offset:{base + i*2048}")
            A(f"ds_write_b128 v{vT1}, {vr(t+4, 4)} offset:{base + i*2048 + 16}")
    A(f"v_lshlrev_b32 v{vT1}, 12, v{vT0}")
    A(f"v_lshl_add_u32 v{vT1}, v{vLane}, 5, v{vT1}")
    A(f"v_add_u32 v{vT1}, {L_VSZ}, v{vT1}")
    A("s_waitcnt vmcnt(6)")
    for i in range(2):
        t = vZ + i*8
        for k in range(4):
            A(f"v_perm_b32 v{t+2*k}, v{vStg+i*4+k}, v{vStg+8+i*4+k}, s{sSelLo}")
            A(f"v_perm_b32 v{t+2*k+1}, v{vStg+i*4+k}, v{vStg+8+i*4+k}, s{sSelHi}")
        A(f"ds_write_b128 v{vT1}, {vr(t, 4)} offset:{i*2048}")
        A(f"ds_write_b128 v{vT1}, {vr(t+4, 4)} offset:{i*2048 + 16}")
    A(f"v_mov_b32 v{vM}, 0xff800000")
    A(f"s_mov_b32 s{sCur}, s{sFirst}")
    A(f"s_mov_b32 s{sBlk}, 0")
    A(f"s_mul_i32 s{sLdsBlk}, s{sRot}, {4*768}")
    A(f"s_mov_b32 s{sMode}, {mode0}")
    if fb == "xcc":
        A(f"s_getreg_b32 s{sMode}, hwreg(HW_REG_XCC_ID)")
        A(f"s_and_b32 s{sMode}, s{sMode}, 1")
        A(f"s_xor_b32 s{sMode}, s{sMode}, 1")
    if fb == "time":
        srd(SRD_D, 22, WS_FB + 33*256)
        A(f"s_mov_b32 s{sProg}, 0")
        A(f"s_mov_b32 s{sMode}, {int(kbias + 0.5)}")
        A(f"s_add_u32 s{sFbP}, s22, {WS_FB}")
        A(f"s_addc_u32 s{sFbP+1}, s23, 0")
        A(f"s_lshr_b32 s{sRep}, s2, 3")
        A(f"s_or_b32 s{sRep}, s{sRep}, s{sW}")
        A(f"s_lshl_b32 s{sT1}, s2, 2")
        A(f"s_add_u32 s{sT1}, s{sT1}, {WS_FB}")
        A(f"s_cmp_eq_u32 s{sRep}, 0")
        A(f"s_cselect_b32 s{sT1}, s{sT1}, {WS_FB + 33*256}")
        A(f"v_mov_b32 v{vPollA}, s{sT1}")
        A(f"s_mov_b32 s{sRep}, 0")
        A(f"v_mov_b32 v{vModeA}, {L_MODE}")
        A(f"v_mov_b32 v{vMode}, {int(kbias + 0.5)}")
        A(f"ds_write_b32 v{vModeA}, v{vMode}")
    if fb == "rank":
        FB_END = WS_FB + 33*(256//grp)*256
        srd(SRD_D, 22, FB_END)
        A(f"s_mov_b32 s{sProg}, 0")
        A(f"s_lshr_b32 s{sT1}, s2, {grp.bit_length()-1}")
        A(f"s_lshl_b32 s{sT1}, s{sT1}, 8")
        A(f"s_add_u32 s{sT1}, s{sT1}, {WS_FB}")
        A(f"v_lshl_add_u32 v{vPollA}, v{vLane}, 2, s{sT1}")
        A(f"s_and_b32 s{sT1}, s2, {grp-1}")
        A(f"s_lshl_b64 s[{sOwn}:{sOwn+1}], 1, s{sT1}")
        if grp < 64:
            A(f"v_mov_b32 v{vT3}, {FB_END}")
            A(f"v_cmp_gt_u32 vcc, {grp}, v{vLane}")
            A("s_nop 1")
            A(f"v_cndmask_b32 v{vPollA}, v{vT3}, v{vPollA}, vcc")
        A(f"v_mov_b32 v{vModeA}, {L_MODE}")
        A(f"v_mov_b32 v{vMode}, {mode0}")
        A(f"ds_write_b32 v{vModeA}, v{vMode}")
    if dbg or stamp or hold: A("s_memrealtime s[86:87]")
    A("s_waitcnt lgkmcnt(0)")
    A("s_barrier")

    def par_reads(i, nextblk):
        out = []
        for e in range(2):
            out.append(f"v_add_u32 v{vPad+e}, s{sLdsBlk}, v{vPar+2*i+e}")
        for e in range(2):
            for j in range(3):
                out.append(f"ds_read_b128 {vr(vZ+e*12+j*4, 4)}, v{vPad+e} offset:{L_KZ + j*256}")
                out.append(f"ds_read_b128 {vr(vS+e*12+j*4, 4)}, v{vPad+e} offset:{L_KS + j*256}")
        return out
    for x in par_reads(0, False): A(x)

    def next_base():
        A(f"s_add_u32 s{sT2}, s{sBlk}, 1")
        A(f"s_and_b32 s{sT2}, s{sT2}, 15")
        A(f"s_add_u32 s{sT1}, s{sT2}, s{sRot}")
        A(f"s_and_b32 s{sT1}, s{sT1}, {NBLK-1}")
        A(f"s_andn2_b32 s{sT2}, s{sT2}, {NBLK-1}")
        A(f"s_or_b32 s{sLbN}, s{sT1}, s{sT2}")
        A(f"s_mul_i32 s{sNext}, s{sT1}, {256*768}")
        A(f"s_add_u32 s{sNext}, s{sNext}, s{sKbase}")
        if G > 1:
            A(f"s_mul_i32 s{sT2}, s{sT2}, {256*256*768}")
            A(f"s_add_u32 s{sNext}, s{sNext}, s{sT2}")

    def dpp_sum(e, b):
        D = vD + 4*e
        L = vLa if e == 0 else vLb
        t = vT1 + e
        return [f"v_add_f32_dpp v{t}, v{D+(b+1) % 4}, v{D+b} row_ror:12 row_mask:0xf bank_mask:0xf",
                f"v_add_f32_dpp v{t}, v{D+(b+2) % 4}, v{t} row_ror:8 row_mask:0xf bank_mask:0xf",
                f"v_add_f32_dpp v{L}, v{D+(b+3) % 4}, v{t} row_ror:4 row_mask:0xf bank_mask:{1 << b:#x}"]

    uid = [0]
    def emit_step(body, positions, issue_fn, i=0):
        if fb == "time" and dither:
            pe, pl = [min(p, len(body)) for p in positions]
            r = int(format(i, "03b")[::-1], 2)
            for seg, br in ((body[:pe], "scc1"), (body[pe:pl], "scc0")):
                for x in seg: A(x)
                uid[0] += 1; n = uid[0]
                A(f"s_cmp_gt_u32 s{sMode}, {r}")
                A(f"s_cbranch_{br} L_skip{n}")
                issue_fn()
                A.label(f"L_skip{n}")
            for x in body[pl:]: A(x)
            return
        pos = sorted(set(min(p, len(body)) for p in positions))
        last = 0
        for p in pos:
            for x in body[last:p]: A(x)
            last = p
            ks = [k for k, q in enumerate(positions) if min(q, len(body)) == p]
            if len(ks) < len(positions):
                uid[0] += 1
                assert ks == list(range(ks[0], ks[-1]+1))
                if len(ks) == 1: A(f"s_cmp_eq_u32 s{sMode}, {ks[0]}")
                elif ks[0] == 0: A(f"s_cmp_le_u32 s{sMode}, {ks[-1]}")
                else:
                    assert ks[-1] == len(positions)-1
                    A(f"s_cmp_ge_u32 s{sMode}, {ks[0]}")
                A(f"s_cbranch_scc0 L_skip{uid[0]}")
                n = uid[0]
                issue_fn()
                A.label(f"L_skip{n}")
            else:
                issue_fn()
        for x in body[last:]: A(x)

    def feedback_tail(i, bias, gain, phase):
        if fb != "time": return
        uid[0] += 1; n = uid[0]
        if i == 0 and fbst:
            A("s_waitcnt lgkmcnt(0)")
            A(f"v_mov_b32 v{vPoll}, s{sNow}")
            A("s_mov_b64 exec, 1")
            A(f"buffer_store_dword v{vPoll}, v{vPollA}, s[{SRD_D}:{SRD_D+3}], s{sProg} offen sc1")
            A("s_mov_b64 exec, -1")
        if i in (rs - 1, rs) and fbld and not dither:
            A(f"s_cmp_lg_u32 s{sW}, 0")
            A(f"s_cbranch_scc1 L_skip{n}")
        if i == rs - 1 and fbld:
            A(f"s_load_dwordx8 s[{sRef}:{sRef+7}], s[{sFbP}:{sFbP+1}], s{sProg}")
            if not dither: A.label(f"L_skip{n}")
        if i == 6 and not dither:
            A(f"ds_read_b32 v{vMode}, v{vModeA}")
        if i == 7 and not dither:
            A("s_waitcnt lgkmcnt(0)")
            A(f"v_readfirstlane_b32 s{sMode}, v{vMode}")
            A("s_nop 3")
        if i == rs and fbld:
            A("s_waitcnt lgkmcnt(0)")
            for k in range(8):
                A(f"s_sub_i32 s{sRef+k}, s{sRef+k}, s{sNow}")
            A(f"s_min_i32 s{sT0}, s{sRef}, s{sRef+1}"); A(f"s_max_i32 s{sT1}, s{sRef}, s{sRef+1}")
            A(f"s_add_i32 s{sT2}, s{sRef}, s{sRef+1}")
            for k in range(2, 8):
                A(f"s_min_i32 s{sT0}, s{sT0}, s{sRef+k}"); A(f"s_max_i32 s{sT1}, s{sT1}, s{sRef+k}")
                A(f"s_add_i32 s{sT2}, s{sT2}, s{sRef+k}")
            A(f"s_mul_i32 s{sT2}, s{sT2}, {gain}")
            A(f"s_add_i32 s{sT2}, s{sT2}, {int(bias*4096) + 2048}")
            A(f"s_ashr_i32 s{sT2}, s{sT2}, 12")
            A(f"s_max_i32 s{sT2}, s{sT2}, 0")
            A(f"s_min_i32 s{sT2}, s{sT2}, {8 if dither else len(kpos)-1}")
            A(f"s_cmp_gt_i32 s{sT0}, {-TAGW}")
            A(f"s_cselect_b32 s{sT2}, s{sT2}, s{sMode}")
            A(f"s_cmp_lt_i32 s{sT1}, {TAGW}")
            if dither:
                A(f"s_cselect_b32 s{sMode}, s{sT2}, s{sMode}")
            else:
                A(f"s_cselect_b32 s{sT2}, s{sT2}, s{sMode}")
                A(f"v_mov_b32 v{vPoll}, s{sT2}")
                A(f"ds_write_b32 v{vModeA}, v{vPoll}")
                A.label(f"L_skip{n}")
        if i == 7:
            A(f"s_add_u32 s{sProg}, s{sProg}, 256")
            if stamp:
                A(f"s_lshl_b32 s{sT0}, s{sMode}, {16 if phase == 'K' else 24}")
                A(f"s_add_u32 s{sRep}, s{sRep}, s{sT0}")

    def feedback(i):
        if fb == "time" and i == 0 and (fbst or fbld):
            A(f"s_memrealtime s[{sNow}:{sNow+1}]")
        if fb != "rank": return
        uid[0] += 1; n = uid[0]
        if i in (0, 1):
            A(f"s_and_b32 s{sT2}, s{sProg}, {every-1}")
            A(f"s_or_b32 s{sT2}, s{sT2}, s{sW}")
            A(f"s_cbranch_scc1 L_skip{n}")
        if i == 0:
            A(f"s_mul_i32 s{sT1}, s{sProg}, {256//grp*256}")
            A(f"v_mov_b32 v{vPoll}, s{sTag}")
            A(f"s_mov_b64 exec, s[{sOwn}:{sOwn+1}]")
            if fbst: A(f"buffer_store_dword v{vPoll}, v{vPollA}, s[{SRD_D}:{SRD_D+3}], s{sT1} offen sc1")
            A("s_mov_b64 exec, -1")
            if fbld: A(f"buffer_load_dword v{vPoll}, v{vPollA}, s[{SRD_D}:{SRD_D+3}], s{sT1} offen sc1")
        elif i == 1:
            A(f"s_sub_u32 s{sT1}, {TAGW}, s{sTag}")
            A(f"v_add_u32 v{vPoll}, s{sT1}, v{vPoll}")
            A(f"v_cmp_gt_u32 vcc, {2*TAGW}, v{vPoll}")
            A("s_nop 4")
            A(f"s_bcnt1_i32_b64 s{sT2}, vcc")
            A(f"s_mov_b32 s{sT1}, 0")
            for t in thr:
                A(f"s_cmp_lt_u32 s{sT2}, {t}")
                A(f"s_addc_u32 s{sT1}, s{sT1}, 0")
            A(f"v_mov_b32 v{vPoll}, s{sT1}")
            A(f"ds_write_b32 v{vModeA}, v{vPoll}")
        elif i == 2:
            A(f"ds_read_b32 v{vMode}, v{vModeA}")
        elif i == 3:
            A("s_waitcnt lgkmcnt(0)")
            A(f"v_readfirstlane_b32 s{sMode}, v{vMode}")
            A("s_nop 3")
        elif i == 7:
            A(f"s_add_u32 s{sProg}, s{sProg}, 1")
        if i in (0, 1):
            A.label(f"L_skip{n}")

    A.label("L_kblk")
    next_base()
    for i in range(8):
        b = i % 4
        A.c(f"K step {i}")
        A(f"s_waitcnt vmcnt({1 if fb == 'time' and i == 1 and fbst else 0})")
        feedback(i)
        vF = vBuf[i % 2]
        body = [f"v_cvt_f32_i32 v{vF+k}, v{vF+k}" for k in range(24)]
        body.append("s_waitcnt lgkmcnt(0)")
        for e in range(2):
            o = e*12
            if pk:
                body += [f"v_pk_add_f32 {vr(vF+o+k, 2)}, {vr(vF+o+k, 2)}, {vr(vZ+o+k, 2)} neg_lo:[0,1] neg_hi:[0,1]" for k in range(0, 12, 2)]
            else:
                body += [f"v_sub_f32 v{vF+o+k}, v{vF+o+k}, v{vZ+o+k}" for k in range(12)]
            body += [f"v_cvt_pk_bf16_f32 v{vF+o+k}, 0, v{vF+o+k}" for k in range(12)]
            if pk:
                body += [f"v_pk_mul_f32 {vr(vF+o+k, 2)}, {vr(vF+o+k, 2)}, {vr(vS+o+k, 2)}" for k in range(0, 12, 2)]
            else:
                body += [f"v_mul_f32 v{vF+o+k}, v{vF+o+k}, v{vS+o+k}" for k in range(12)]
            packs = [f"v_cvt_pk_bf16_f32 v{vKb+e*6+k}, v{vF+o+2*k}, v{vF+o+2*k+1}" for k in range(6)]
            if e == 1:
                d = dpp_sum(0, b)
                packs = packs[0:2] + d[0:1] + packs[2:4] + d[1:2] + packs[4:6] + d[2:3]
            body += packs
            D = vr(vD+4*e, 4)
            for j in range(3):
                body.append(f"v_mfma_f32_16x16x16_bf16 {D}, {vr(vKb+e*6+2*j, 2)}, {vr(vQ+2*j, 2)}, {'0' if j == 0 else D}")
        def kissue(i=i):
            if i < 7:
                for x in issue(i+1, vKo, SRD_K, sCur): A(x)
            else:
                uid[0] += 1; n = uid[0]
                A(f"s_cmp_eq_u32 s{sBlk}, 15")
                A(f"s_cbranch_scc1 L_kissue_v{n}")
                for x in issue(0, vKo, SRD_K, sNext): A(x)
                A(f"s_branch L_kissue_done{n}")
                A.label(f"L_kissue_v{n}")
                for x in issue(0, vVo, SRD_V, sFirst): A(x)
                A.label(f"L_kissue_done{n}")
        emit_step(body, kpos, kissue, i)
        feedback_tail(i, kbias, kgain, 'K')
        if i == 7:
            A(f"s_mul_i32 s{sLdsBlk}, s{sLbN}, {4*768}")
        pr = par_reads((i+1) % 8, i == 7)
        d = dpp_sum(1, b)
        for x in pr[:9] + d[0:1] + pr[9:11] + d[1:2] + pr[11:14] + d[2:3]: A(x)
        if b == 3:
            A(f"v_cvt_pk_bf16_f32 v{vT1}, 0, v{vLa}")
            A(f"v_cvt_pk_bf16_f32 v{vT2}, 0, v{vLb}")
            A(f"v_mul_f32 v{vT1}, s{sScale}, v{vT1}")
            A(f"v_mul_f32 v{vT2}, s{sScale}, v{vT2}")
            A(f"v_cvt_pk_bf16_f32 v{vT3}, v{vT1}, v{vT2}")
            A(f"v_max3_f32 v{vM}, v{vM}, v{vT1}, v{vT2}")
            A(f"ds_write_b32 v{vLogA}, v{vT3} offset:{(i//4)*256}")
    A(f"v_add_u32 v{vLogA}, 512, v{vLogA}")
    A(f"s_mov_b32 s{sCur}, s{sNext}")
    A(f"s_add_u32 s{sBlk}, s{sBlk}, 1")
    A(f"s_and_b32 s{sT2}, s{sBlk}, {NBLK-1}")
    A("s_cbranch_scc1 L_kblk")
    A.c("end of a K round: park the per-lane max, rotate q")
    A(f"ds_write_b32 v{vMaxA}, v{vM}")
    A(f"v_add_u32 v{vMaxA}, 256, v{vMaxA}")
    for k in range(6*(G-1)):
        A(f"v_mov_b32 v{vQ+k}, v{vQ+6+k}")
    A(f"v_mov_b32 v{vM}, 0xff800000")
    A(f"s_cmp_lt_u32 s{sBlk}, 16")
    A("s_cbranch_scc1 L_kblk")

    A(f"v_subrev_u32 v{vLogA}, 8192, v{vLogA}")
    A(f"v_subrev_u32 v{vMaxA}, {G*256}, v{vMaxA}")
    for k in range(4): A(f"v_mov_b32 v{vP+k}, 0")
    A(f"s_mov_b32 s{sCur}, s{sFirst}")
    A(f"s_mov_b32 s{sBlk}, 0")
    A(f"s_lshl_b32 s{sLb}, s{sRot}, 10")
    A(f"s_mul_i32 s{sSlot}, s{sW}, 3072")
    if dbg or stamp or hold: A("s_memrealtime s[88:89]")
    A("s_waitcnt lgkmcnt(0)")
    A("s_barrier")
    def p_reads(g):
        return [f"v_add_u32 v{vSZ}, s{sLb}, v{vPa+2*g}",
                f"v_add_u32 v{vSZ+1}, s{sLb}, v{vPa+2*g+1}",
                f"ds_read_b32 v{vLg}, v{vLogA} offset:{g*256}",
                f"ds_read_b32 v{vSZ}, v{vSZ}",
                f"ds_read_b32 v{vSZ+1}, v{vSZ+1}"]
    for x in p_reads(0): A(x)

    def xlane(op, r, t):
        A("s_nop 1")
        A(f"{op}_dpp v{r}, v{r}, v{r} row_ror:4 row_mask:0xf bank_mask:0xf")
        A("s_nop 1")
        A(f"{op}_dpp v{r}, v{r}, v{r} row_ror:8 row_mask:0xf bank_mask:0xf")
        for sw in ("v_permlane16_swap_b32", "v_permlane32_swap_b32"):
            A(f"v_mov_b32 v{t}, v{r}")
            A("s_nop 1")
            A(f"{sw} v{r}, v{t}")
            A(f"{op} v{r}, v{r}, v{t}")

    A.label("L_vround")
    A(f"ds_read_b32 v{vM}, v{vMaxA}")
    for k in range(48): A(f"v_mov_b32 v{vAcc+k}, 0")
    A(f"v_mov_b32 v{vSum}, 0"); A(f"v_mov_b32 v{vCor}, 0")
    A("s_waitcnt lgkmcnt(0)")
    xlane("v_max_f32", vM, vT1)
    A(f"v_cvt_pk_bf16_f32 v{vM}, 0, v{vM}")
    A(f"v_mul_f32 v{vM}, s{sLog2e}, v{vM}")
    A.label("L_vblk")
    next_base()
    for i in range(8):
        b = i % 4
        g = i//4
        A.c(f"V step {i}")
        pre = []
        if b == 0:
            E = vE
            pre += ["s_waitcnt lgkmcnt(0)",
                    f"v_lshlrev_b32 v{E}, 16, v{vLg}",
                    f"v_and_b32 v{E+1}, s{sHi}, v{vLg}",
                    f"v_fma_f32 v{E}, v{E}, s{sLog2e}, -v{vM}",
                    f"v_fma_f32 v{E+1}, v{E+1}, s{sLog2e}, -v{vM}",
                    f"v_exp_f32 v{E}, v{E}",
                    f"v_exp_f32 v{E+1}, v{E+1}",
                    f"v_and_b32 v{E+2}, s{sHi}, v{vSZ}",
                    f"v_and_b32 v{E+3}, s{sHi}, v{vSZ+1}",
                    f"v_mul_f32 v{E+2}, v{E}, v{E+2}",
                    f"v_mul_f32 v{E+3}, v{E+1}, v{E+3}",
                    f"v_add_f32 v{vSum}, v{vSum}, v{E}",
                    f"v_cvt_pk_bf16_f32 v{E+2}, v{E+2}, v{E+3}",
                    f"v_add_f32 v{vSum}, v{vSum}, v{E+1}",
                    f"v_lshlrev_b32 v{E+4}, 16, v{vSZ}",
                    f"v_lshlrev_b32 v{E+5}, 16, v{vSZ+1}",
                    f"v_lshlrev_b32 v{E}, 16, v{E+2}",
                    f"v_and_b32 v{E+1}, s{sHi}, v{E+2}",
                    f"v_fmac_f32 v{vCor}, v{E}, v{E+4}",
                    f"v_fmac_f32 v{vCor}, v{E+1}, v{E+5}"]
            pre += [f"v_mov_b32_dpp v{vP+k}, v{E+2} quad_perm:[0,1,2,3] row_mask:0xf bank_mask:{1 << k:#x}" for k in range(4)]
            if g == 1:
                pre += [f"v_add_u32 v{vLogA}, 512, v{vLogA}", f"s_lshl_b32 s{sLb}, s{sLbN}, 10"]
                pre += p_reads(0)
            else:
                pre += p_reads(1)
        A(f"s_waitcnt vmcnt({1 if fb == 'time' and i == 1 and fbst else 0})")
        feedback(i)
        vF = vBuf[i % 2]
        body = [f"v_cvt_f32_i32 v{vF+k}, v{vF+k}" for k in range(24)]
        body += [f"v_cvt_pk_bf16_f32 v{vB+k*4+b}, v{vF+k}, v{vF+12+k}" for k in range(12)]
        body += pre
        if b == 3:
            body += [f"v_mfma_f32_16x16x32_bf16 {vr(vAcc+4*k, 4)}, {vr(vP, 4)}, {vr(vB+4*k, 4)}, {vr(vAcc+4*k, 4)}" for k in range(12)]
        def vissue(i=i):
            if i < 7:
                for x in issue(i+1, vVo, SRD_V, sCur): A(x)
            else:
                uid[0] += 1; n = uid[0]
                A(f"s_cmp_eq_u32 s{sBlk}, 15")
                A(f"s_cbranch_scc1 L_vissue_done{n}")
                for x in issue(0, vVo, SRD_V, sNext): A(x)
                A.label(f"L_vissue_done{n}")
        emit_step(body, vpos, vissue, i)
        feedback_tail(i, vbias, vgain, 'V')
    A(f"s_mov_b32 s{sCur}, s{sNext}")
    A(f"s_add_u32 s{sBlk}, s{sBlk}, 1")
    A(f"s_and_b32 s{sT2}, s{sBlk}, {NBLK-1}")
    A("s_cbranch_scc1 L_vblk")
    A.c("end of a V round: reduce over lane groups, park O and (m, l, c) in LDS")
    xlane("v_add_f32", vSum, vT1)
    xlane("v_add_f32", vCor, vT1)
    A(f"v_mov_b32 v{vF}, v{vM}"); A(f"v_mov_b32 v{vF+1}, v{vSum}"); A(f"v_mov_b32 v{vF+2}, v{vCor}"); A(f"v_mov_b32 v{vF+3}, 0")
    A(f"v_lshlrev_b32 v{vT1}, 2, v{vLane}")
    A(f"v_sub_u32 v{vT1}, v{vMaxA}, v{vT1}")
    A(f"v_and_b32 v{vT2}, 3, v{vLane}")
    A(f"v_lshl_add_u32 v{vT1}, v{vT2}, 4, v{vT1}")
    A(f"ds_write_b128 v{vT1}, {vr(vF, 4)}")
    A(f"v_add_u32 v{vMaxA}, 256, v{vMaxA}")
    for k in range(12):
        a = vAcc + 4*k
        A(f"v_permlane32_swap_b32 v{a}, v{a+2}")
        A(f"v_permlane32_swap_b32 v{a+1}, v{a+3}")
    for k in range(12):
        a = vAcc + 4*k
        A(f"v_add_f32 v{a}, v{a}, v{a+2}")
        A(f"v_add_f32 v{a+1}, v{a+1}, v{a+3}")
    A("s_nop 1")
    for k in range(12):
        a = vAcc + 4*k
        A(f"v_permlane16_swap_b32 v{a}, v{a+1}")
    for k in range(12):
        a = vAcc + 4*k
        A(f"v_add_f32 v{vF+4+k}, v{a}, v{a+1}")
    A(f"v_lshrrev_b32 v{vT1}, 4, v{vLane}")
    A(f"v_mul_u32_u24 v{vT1}, 768, v{vT1}")
    A(f"v_and_b32 v{vT2}, 15, v{vLane}")
    A(f"v_lshl_add_u32 v{vT1}, v{vT2}, 4, v{vT1}")
    A(f"v_add_u32 v{vT2}, s{sSlot}, v{vT1}")
    for j in range(3):
        A(f"ds_write_b128 v{vT2}, {vr(vF+4+4*j, 4)} offset:{j*256}")
    A(f"s_add_u32 s{sSlot}, s{sSlot}, {4*3072}")
    A(f"s_cmp_lt_u32 s{sBlk}, 16")
    A("s_cbranch_scc1 L_vround")

    A("s_waitcnt lgkmcnt(0)")
    A("s_barrier")
    if G < 4:
        A(f"s_cmp_ge_u32 s{sW}, {G}")
        A("s_cbranch_scc1 L_fin")
    if G == 1: srd(SRD_O, 18, 256*1536)
    else:      srd(SRD_O, 22, WS_STAT + 256*G*64)
    A(f"s_mov_b32 s{sRnd}, s{sW}")
    A.label("L_comb")
    A(f"s_mul_i32 s{sT0}, s{sRnd}, {4*3072}")
    A(f"v_add_u32 v{vT2}, s{sT0}, v{vT1}")
    A(f"s_lshl_b32 s{sT0}, s{sRnd}, 8")
    A(f"s_add_u32 s{sT0}, s{sT0}, {L_MAX}")
    A(f"v_and_b32 v{vT3}, 48, v{vLane}")
    A(f"v_add_u32 v{vT3}, s{sT0}, v{vT3}")
    St = vX; O = vAcc
    for w in range(4):
        A(f"ds_read_b128 {vr(St+4*w, 4)}, v{vT3} offset:{w*G*256}")
    for w in range(4):
        for j in range(3):
            A(f"ds_read_b128 {vr(O+12*w+4*j, 4)}, v{vT2} offset:{w*3072 + j*256}")
    A("s_waitcnt lgkmcnt(12)")
    combine(A, 4, St, O, vM, vSum, vE, True, "lgkmcnt(0)")
    A(f"s_lshl_b32 s{sT0}, s{sRnd}, 8")
    A(f"s_add_u32 s{sT0}, s{sT0}, s2")
    if G == 1:
        finish_out(A, O, vSum, vT1, vT2, SRD_O, sT0, sT1)
    else:
        A(f"s_mul_i32 s{sT1}, s{sT0}, 3072")
        for j in range(3):
            A(f"buffer_store_dwordx4 {vr(O+4*j, 4)}, v{vT1}, s[{SRD_O}:{SRD_O+3}], s{sT1} offen offset:{j*256}")
        A(f"s_lshl_b32 s{sT1}, s{sT0}, 6")
        A(f"s_add_u32 s{sT1}, s{sT1}, {WS_STAT}")
        A(f"v_mov_b32 v{St}, v{vM}"); A(f"v_mov_b32 v{St+1}, v{vSum}")
        A(f"v_and_b32 v{vT3}, 48, v{vLane}")
        A(f"buffer_store_dwordx2 {vr(St, 2)}, v{vT3}, s[{SRD_O}:{SRD_O+3}], s{sT1} offen")
        if G == 8:
            A(f"s_add_u32 s{sRnd}, s{sRnd}, 4")
            A(f"s_cmp_lt_u32 s{sRnd}, 8")
            A("s_cbranch_scc1 L_comb")
    A.label("L_fin")
    if stamp:
        A("s_waitcnt vmcnt(0)")
        A("s_memrealtime s[82:83]")
        A("s_getreg_b32 s84, hwreg(HW_REG_XCC_ID)")
        A("s_getreg_b32 s85, hwreg(HW_REG_HW_ID)")
        A("s_and_b32 s85, s85, 0xffff")
        if fb == "time": A(f"s_or_b32 s85, s85, s{sRep}")
        A("s_waitcnt lgkmcnt(0)")
        srd(76, 22, WS_STAMP + 1024*32)
        for k, sr in enumerate((80, 81, 82, 83, 84, 85, 86, 88)): A(f"v_mov_b32 v{vX+k}, s{sr}")
        A(f"s_lshl_b32 s85, s2, 2"); A(f"s_add_u32 s85, s85, s{sW}"); A("s_lshl_b32 s85, s85, 5")
        A(f"s_add_u32 s85, s85, {WS_STAMP}")
        A(f"v_mov_b32 v{vT3}, 0")
        A("s_mov_b64 exec, 1")
        A(f"buffer_store_dwordx4 {vr(vX, 4)}, v{vT3}, s[76:79], s85 offen")
        A(f"buffer_store_dwordx4 {vr(vX+4, 4)}, v{vT3}, s[76:79], s85 offen offset:16")
    if hold:
        base, mult, sreg = hold[:3]
        if len(hold) > 3:
            A(f"s_and_b32 s84, s2, {hold[4]}")
            A(f"s_cmp_lg_u32 s84, {hold[3]}")
            A("s_cbranch_scc1 L_end")
        A("s_waitcnt vmcnt(0)")
        A("s_memrealtime s[82:83]")
        A("s_waitcnt lgkmcnt(0)")
        A(f"s_sub_u32 s84, s{sreg}, s80")
        A(f"s_mul_i32 s84, s84, {mult}")
        A(f"s_add_u32 s84, s84, {base}")
        A("s_min_u32 s84, s84, 200000")
        A.label("L_hold")
        A("s_sleep 4")
        A("s_memrealtime s[82:83]")
        A("s_waitcnt lgkmcnt(0)")
        A("s_sub_u32 s85, s82, s80")
        A("s_cmp_lt_u32 s85, s84")
        A("s_cbranch_scc1 L_hold")
    if dbg:
        A("s_waitcnt vmcnt(0)")
        A("s_memrealtime s[82:83]")
        A("s_waitcnt lgkmcnt(0)")
        srd(76, 20, 256)
        A("s_mov_b64 exec, 1")
        A(f"v_mov_b32 v{vT3}, 0")
        for k, (sr, inv) in enumerate(((80, 1), (80, 0), (86, 1), (86, 0), (88, 1), (88, 0), (82, 1), (82, 0))):
            A(f"v_mov_b32 v{vX}, s{sr}")
            if inv: A(f"v_not_b32 v{vX}, v{vX}")
            A(f"buffer_atomic_umax v{vX}, v{vT3}, s[76:79], 0 offen offset:{4*k}")
            A("s_waitcnt vmcnt(0)")
    A.label("L_end")
    A("s_endpgm")
    main = A.text()

    kn = name + "_kernel"
    hdr = open(f"/code/{NAME}.s.ref").read().split("; Override launch")[0]
    if G == 1:
        launch = f"; @launch grid=(256,1,1) block=(256,1,1) lds={LDS}\n"
    else:
        launch = (f"; @launch kernel={kn} grid=(256,1,1) block=(256,1,1) lds={LDS}\n"
                  f"; @launch kernel=combine_kernel grid=(256,1,1) block=(64,1,1) lds=0\n")
    s = hdr + launch + f""".amdgcn_target "amdgcn-amd-amdhsa--gfx950"
.text
.globl {kn}
.p2align 8
.type {kn},@function
{kn}:
{main}
"""
    kds = [(kn, 256, 100)]
    if G > 1:
        s += f""".globl combine_kernel
.p2align 8
.type combine_kernel,@function
combine_kernel:
{gen_combine(G, WS_STAT)}
"""
        kds.append(("combine_kernel", 32 + 16*G, 40))
    s += '.section .rodata,"a"\n'
    for k, nv, ns in kds:
        s += f""".p2align 6
.amdhsa_kernel {k}
  .amdhsa_next_free_vgpr {nv}
  .amdhsa_next_free_sgpr {ns}
  .amdhsa_accum_offset {nv}
  .amdhsa_group_segment_fixed_size 0
  .amdhsa_kernarg_size 80
  .amdhsa_user_sgpr_count 2
  .amdhsa_user_sgpr_kernarg_segment_ptr 1
  .amdhsa_system_sgpr_workgroup_id_x 1
  .amdhsa_float_denorm_mode_32 3
.end_amdhsa_kernel
"""
    spec = f"{kn}:256:256:{LDS}" + ("+combine_kernel:256:64:0" if G > 1 else "")
    return s, kn, spec

def combine(A, n, St, O, vM, vSum, vE, has_corr, wait):
    A(f"v_mov_b32 v{vM}, v{St}")
    for w in range(1, n): A(f"v_max_f32 v{vM}, v{vM}, v{St+4*w}")
    for w in range(n): A(f"v_sub_f32 v{St+4*w}, v{St+4*w}, v{vM}")
    for w in range(n): A(f"v_exp_f32 v{St+4*w}, v{St+4*w}")
    A("s_nop 0")
    A(f"v_mul_f32 v{vSum}, v{St}, v{St+1}")
    for w in range(1, n): A(f"v_fmac_f32 v{vSum}, v{St+4*w}, v{St+4*w+1}")
    A(f"s_waitcnt {wait}")
    for w in range(n):
        for k in range(12):
            r = O + 12*w + k
            if has_corr: A(f"v_sub_f32 v{r}, v{r}, v{St+4*w+2}")
            if w == 0: A(f"v_mul_f32 v{r}, v{r}, v{St}")
            else:      A(f"v_fmac_f32 v{O+k}, v{r}, v{St+4*w}")

def finish_out(A, O, vSum, vOff, vT, srdn, sHead, sT):
    A(f"v_rcp_f32 v{vSum}, v{vSum}")
    A(f"v_lshrrev_b32 v{vT}, 1, v{vOff}")
    A(f"s_mul_i32 s{sT}, s{sHead}, 1536")
    for k in range(12): A(f"v_mul_f32 v{O+k}, v{O+k}, v{vSum}")
    for k in range(6): A(f"v_cvt_pk_bf16_f32 v{O+12+k}, v{O+2*k}, v{O+2*k+1}")
    for j in range(3):
        A(f"buffer_store_dwordx2 {vr(O+12+2*j, 2)}, v{vT}, s[{srdn}:{srdn+3}], s{sT} offen offset:{j*128}")

def gen_combine(G, WS_STAT):
    A = Asm()
    A("s_cmp_ge_u32 s2, 256")
    A("s_cbranch_scc1 Lc_end")
    A("s_load_dwordx2 s[4:5], s[0:1], 56")
    A("s_load_dwordx2 s[6:7], s[0:1], 72")
    A("v_lshrrev_b32 v1, 4, v0")
    A("v_mul_u32_u24 v1, 768, v1")
    A("v_and_b32 v2, 15, v0")
    A("v_lshl_add_u32 v1, v2, 4, v1")
    A("v_and_b32 v2, 48, v0")
    A(f"s_mul_i32 s16, s2, {G*3072}")
    A(f"s_mul_i32 s17, s2, {G*64}")
    A(f"s_add_u32 s17, s17, {WS_STAT}")
    A("s_waitcnt lgkmcnt(0)")
    for d, p, nb in ((8, 4, 256*1536), (12, 6, WS_STAT + 256*G*64)):
        A(f"s_mov_b32 s{d}, s{p}"); A(f"s_and_b32 s{d+1}, s{p+1}, 0xffff")
        A(f"s_mov_b32 s{d+2}, {nb}"); A(f"s_mov_b32 s{d+3}, 0x20000")
    St = 8; O = 8 + 4*G
    for w in range(G):
        A(f"buffer_load_dwordx2 {vr(St+4*w, 2)}, v2, s[12:15], s17 offen offset:{w*64}")
    for w in range(G):
        for j in range(3):
            A(f"buffer_load_dwordx4 {vr(O+12*w+4*j, 4)}, v1, s[12:15], s16 offen offset:{j*256}")
        A("s_add_u32 s16, s16, 3072")
    A(f"s_waitcnt vmcnt({3*G})")
    combine(A, G, St, O, 3, 4, 5, False, "vmcnt(0)")
    A("s_mov_b32 s18, s2")
    finish_out(A, O, 4, 1, 2, 8, 18, 19)
    A.label("Lc_end")
    A("s_endpgm")
    return A.text()

if __name__ == "__main__":
    kw = {}
    out = f"/code/{NAME}.s"
    for a in sys.argv[1:]:
        k, v = a.split("=")
        if k == "out": out = v
        else: kw[k] = eval(v)
    s, kn, spec = gen(**kw)
    open(out, "w").write(s)
    print(out, spec)
```

```python
import sys
from gen_kernel import Asm, VAlloc, vr, NAME, LOG2E, SCALE

def gen(thr0=18.0, step=0.5, nlev=7, bias=3, gain=8, igain=0, rs=6, late=450, rot=None, lead=0, lead0=24, pk=False,
        stamp=False, nocomp=False, prio=3, pre=6, early=1, spec=True, nofin=False, chan=True, trickle=0, qf='nt', nst=4, slow=None, tlb=False, stf='sc1', name=NAME):
    KV_BYTES = 256*4096*768
    L_RING, L_PAR = 0, 73728
    L_VSZ = L_PAR + 17*3072
    L_STAT = L_VSZ + 16384
    L_SLOT = L_STAT + 256
    LDS = L_SLOT + 4*3072
    WS_STAMP, WS_FB = 8 << 20, 16 << 20
    FB_END = WS_FB + 33*256
    TAGW = 5000
    fb = nlev > 1
    A = Asm()
    va = VAlloc(1)
    vLane = va(); vW = va(); vT1 = va(); vT2 = va(); vT3 = va(); vT4 = va()
    vPa = va(4); vLogA = va(); vRing = va(); vRd = va()
    vM = va(); vLa = va(); vLb = va()
    vPar = va(16); vPad = va(2)
    vX = va(24, 4)
    vZ = va(24, 4); vS = va(24, 4)
    vB = vZ
    vRaw = va(24, 4)
    vKb = va(12, 4); vD = va(8, 4); vGb = va(); vMs = va(3)
    vAcc = va(48, 4)
    vQ = vAcc
    vP = va(4, 4)
    vSum = va(); vCor = va(); vLg = va(); vSZ = va(4); vE = va(6)
    NV = va.n
    assert NV <= 256, NV
    sW, sBase, sT0, sT1, sT2, sBlk, sSlot, sPar = 56, 57, 58, 59, 60, 61, 62, 63
    sLog2e, sScale, sHi, s768 = 64, 65, 66, 67
    sC, sM, sLev, sProg, sRot, sHead, sInt, sLevSum = 68, 69, 70, 71, 72, 73, 74, 75
    sNow, sFbP, sRef = 96, 98, 84
    sC1, sC2, sLead, sJ, sP, sRnd = 3, 73, 72, 100, 101, 74
    WS_PART = 0
    SRD_L, SRD_KS, SRD_KZ, SRD_VS, SRD_VZ, SRD_Q, SRD_O, SRD_D = 24, 28, 32, 36, 40, 44, 48, 52
    def srd(d, p, nbytes):
        A(f"s_mov_b32 s{d}, s{p}"); A(f"s_and_b32 s{d+1}, s{p+1}, 0xffff")
        A(f"s_mov_b32 s{d+2}, {nbytes}"); A(f"s_mov_b32 s{d+3}, 0x20000")
    def tok_of(dst, n, isb, t, u):
        A(f"v_cmp_le_u32 vcc, 43, v{n}")
        A(f"v_add_u32 v{t}, 43, v{n}")
        A(f"v_mov_b32 v{u}, 42")
        A(f"v_cndmask_b32 v{dst}, v{n}, v{t}, vcc")
        A(f"v_cmp_le_u32 vcc, 86, v{n}")
        A(f"v_add_u32 v{t}, 43, v{dst}")
        A("s_nop 0")
        A(f"v_cndmask_b32 v{dst}, v{dst}, v{t}, vcc")
        A(f"v_cndmask_b32 v{u}, 43, v{u}, vcc")
        A(f"v_mad_u32_u24 v{dst}, v{u}, v{isb}, v{dst}")
    def stamp_out(idx_expr):
        A("s_waitcnt vmcnt(0)")
        A("s_memrealtime s[82:83]")
        A("s_getreg_b32 s84, hwreg(HW_REG_XCC_ID)")
        A("s_getreg_b32 s85, hwreg(HW_REG_HW_ID)")
        A("s_and_b32 s85, s85, 0xffff")
        A(f"s_or_b32 s85, s85, s{sLevSum}")
        A("s_waitcnt lgkmcnt(0)")
        srd(76, 22, WS_STAMP + 1536*32)
        for k, sr in enumerate((80, 81, 82, 83, 84, 85, 92, 94)): A(f"v_mov_b32 v{vX+k}, s{sr}")
        A("s_mul_i32 s85, s2, 6"); A(f"s_add_u32 s85, s85, s{sW}"); A("s_lshl_b32 s85, s85, 5")
        A(f"s_add_u32 s85, s85, {WS_STAMP}")
        A(f"v_mov_b32 v{vT3}, 0")
        A("s_mov_b64 exec, 1")
        A(f"buffer_store_dwordx4 {vr(vX, 4)}, v{vT3}, s[76:79], s85 offen")
        A(f"buffer_store_dwordx4 {vr(vX+4, 4)}, v{vT3}, s[76:79], s85 offen offset:16")

    A("s_cmp_ge_u32 s2, 256")
    A("s_cbranch_scc1 L_end")
    A("s_load_dwordx16 s[4:19], s[0:1], 0")
    A("s_load_dwordx4 s[20:23], s[0:1], 64")
    if stamp:
        A("s_memrealtime s[80:81]")
        A(f"s_mov_b32 s{sLevSum}, 0"); A("s_mov_b32 s92, 0"); A("s_mov_b32 s94, 0")
    if slow:
        A(f"s_mul_i32 s{sT0}, s2, {slow[0]}"); A(f"s_bfe_u32 s{sT0}, s{sT0}, {4 | (2 << 16)}")
        A(f"s_mul_i32 s{sT0}, s{sT0}, {slow[1]}")
        A.label("L_slow")
        A("s_sleep 32")
        A(f"s_sub_i32 s{sT0}, s{sT0}, 1")
        A(f"s_cmp_gt_i32 s{sT0}, 0")
        A("s_cbranch_scc1 L_slow")
    A(f"v_lshrrev_b32 v{vW}, 6, v0")
    A(f"v_and_b32 v{vLane}, 63, v0")
    A(f"v_readfirstlane_b32 s{sW}, v{vW}")
    A(f"s_mov_b32 s{s768}, 768")
    A.c("lane k < 16: vGb = global 256-token block visited at sequence position k")
    A(f"s_mul_i32 s{sJ}, s2, 43691"); A(f"s_lshr_b32 s{sJ}, s{sJ}, 17")
    A(f"s_mul_i32 s{sP}, s{sJ}, 3"); A(f"s_sub_u32 s{sP}, s2, s{sP}")
    A(f"s_cmp_eq_u32 s2, 255"); A(f"s_cselect_b32 s{sC2}, 16, 11")
    A(f"s_cmp_eq_u32 s{sP}, 1"); A(f"s_cselect_b32 s{sC1}, 5, s{sC2}"); A(f"s_cselect_b32 s{sC2}, 10, s{sC2}")
    if lead: A(f"s_cselect_b32 s{sLead}, {-2*lead}, {lead}")
    A(f"s_mul_i32 s{sT0}, s{sP}, 21"); A(f"s_add_u32 s{sT0}, s{sT0}, 1"); A(f"s_lshr_b32 s{sT0}, s{sT0}, 1")
    A(f"s_lshl_b32 s{sT1}, s{sJ}, 5"); A(f"s_add_u32 s{sBase}, s{sT0}, s{sT1}")
    A(f"s_mul_i32 s{sT0}, s{sP}, 11"); A(f"s_lshr_b32 s{sT0}, s{sT0}, 1")
    A(f"s_lshl_b32 s{sT1}, s{sJ}, 4"); A(f"s_add_u32 s{sT0}, s{sT0}, s{sT1}")
    A(f"s_add_u32 s{sT0}, s{sT0}, {171*16}"); A(f"s_sub_u32 s{sT0}, s{sT0}, s{sC2}")
    A(f"v_cmp_le_u32 vcc, s{sC2}, v{vLane}")
    A(f"v_add_u32 v{vT1}, s{sBase}, v{vLane}")
    A(f"v_add_u32 v{vT2}, s{sT0}, v{vLane}")
    A(f"v_cndmask_b32 v{vGb}, v{vT1}, v{vT2}, vcc")
    A(f"s_cmp_eq_u32 s{sW}, 5")
    A("s_cbranch_scc1 L_finisher")
    A(f"s_cmp_eq_u32 s{sW}, 4")
    A("s_cbranch_scc0 L_consumer")

    lT1, lIsB, lPart, lAddr, lN, lTa, lTb, lLin, lRep, lVal = range(8, 18)
    def layout(kind):
        if kind == "K":
            A(f"v_bfe_u32 v{lT1}, v{vLane}, 2, 1"); A(f"v_bfe_u32 v{lIsB}, v{vLane}, 3, 1")
            A(f"v_lshrrev_b32 v{lTa}, 4, v{vLane}"); A(f"v_and_b32 v{lTb}, 3, v{vLane}")
            A(f"v_lshl_add_u32 v{lPart}, v{lTa}, 2, v{lTb}"); A(f"v_lshlrev_b32 v{lPart}, 4, v{lPart}")
        else:
            A(f"v_bfe_u32 v{lT1}, v{vLane}, 4, 1"); A(f"v_lshrrev_b32 v{lIsB}, 5, v{vLane}")
            A(f"v_and_b32 v{lPart}, 15, v{vLane}"); A(f"v_lshlrev_b32 v{lPart}, 4, v{lPart}")
    def burst(thr):
        A(f"s_and_b32 s{sT0}, s{sC}, 63")
        A(f"v_lshl_add_u32 v{lN}, s{sT0}, 1, v{lT1}")
        tok_of(lAddr, lN, lIsB, lTa, lTb)
        A(f"v_mad_u32_u24 v{lAddr}, v{lAddr}, s{s768}, v{lPart}")
        A(f"s_mov_b32 m0, s{sM}")
        if thr is None: A("s_nop 0")
        else: A(f"s_waitcnt vmcnt({thr})")
        for j in range(3):
            A(f"buffer_load_dwordx4 v{lAddr}, s[{SRD_L}:{SRD_L+3}], s{sBase} offen offset:{j*256} nt lds")
            if j < 2:
                A("s_add_u32 m0, m0, 768")
                A(f"s_add_u32 s{sM if j == 0 else sC}, s{sM if j == 0 else sC}, {3072 if j == 0 else 1}")
    if prio: A(f"s_setprio {prio}")
    layout("K")
    A(f"s_mov_b32 s{sC}, 0"); A(f"s_mov_b32 s{sM}, {L_RING}")
    A(f"s_mul_i32 s{sBase}, s{sBase}, {256*768}")
    A("s_waitcnt lgkmcnt(0)")
    if stamp: A("s_memrealtime s[92:93]")
    srd(SRD_L, 6, KV_BYTES)
    for k in range(pre): burst(None)
    if stamp == 2:
        A(f"s_waitcnt vmcnt({3*pre-1})")
        A("s_memrealtime s[94:95]")
    A(f"s_mov_b32 s{sLev}, {bias}")
    if fb:
        srd(SRD_D, 22, FB_END)
        A(f"s_mov_b32 s{sProg}, 0"); A(f"s_mov_b32 s{sInt}, 0")
        A(f"s_add_u32 s{sFbP}, s22, {WS_FB}"); A(f"s_addc_u32 s{sFbP+1}, s23, 0")
        A(f"s_lshl_b32 s{sT1}, s2, 2"); A(f"s_add_u32 s{sT1}, s{sT1}, {WS_FB}")
        A(f"v_mov_b32 v{lRep}, s{sT1}")
        A(f"s_memrealtime s[{sNow}:{sNow+1}]")
    A("s_branch L_lsel")

    A.label("L_ldisp")
    A.c("unit boundary: release the previous unit, then per-block events")
    A(f"s_cmp_eq_u32 s{sM}, {L_RING + 73728}")
    A(f"s_cselect_b32 s{sM}, {L_RING}, s{sM}")
    A(f"s_cmp_le_u32 s{sC}, 16")
    A("s_cbranch_scc1 L_lfirst")
    A.label("L_lbar")
    A("s_barrier")
    A.label("L_lnobar")
    A(f"s_bfe_u32 s{sT0}, s{sC}, {3 | (3 << 16)}")
    ev = [0] + ([1, rs, rs+1] if fb else [])
    for e in ev:
        A(f"s_cmp_eq_u32 s{sT0}, {e}")
        A(f"s_cbranch_scc1 L_lev{e}")
    A.label("L_lsel")
    for l in range(nlev-1):
        A(f"s_cmp_eq_u32 s{sLev}, {l}")
        A(f"s_cbranch_scc1 L_lvl{l}")
    for l in reversed(range(nlev)):
        t = thr0 + (bias - l)*step
        ta, tb = int(t), int(t + 0.5)
        assert 0 < ta and tb <= 21
        A.label(f"L_lvl{l}")
        burst(ta); burst(tb)
        A(f"s_and_b32 s{sT0}, s{sC}, 7")
        A(f"s_cbranch_scc1 L_lvl{l}")
        A("s_branch L_ldisp")

    A.label("L_lev0")
    A(f"s_cmp_eq_u32 s{sC}, 2048")
    A("s_cbranch_scc1 L_ldone")
    if fb: A(f"s_memrealtime s[{sNow}:{sNow+1}]")
    A(f"s_bfe_u32 s{sT0}, s{sC}, {6 | (4 << 16)}")
    A(f"v_readlane_b32 s{sBase}, v{vGb}, s{sT0}")
    A("s_nop 3")
    A(f"s_mul_i32 s{sBase}, s{sBase}, {256*768}")
    A(f"s_cmp_eq_u32 s{sC}, 1024")
    A("s_cbranch_scc0 L_lsel")
    A(f"s_mov_b32 s{SRD_L}, s8"); A(f"s_and_b32 s{SRD_L+1}, s9, 0xffff")
    layout("V")
    A("s_branch L_lsel")

    A.label("L_lfirst")
    A(f"s_cmp_eq_u32 s{sC}, 8")
    A("s_cbranch_scc1 L_lnobar")
    A("s_barrier")
    A("s_branch L_lbar")

    if fb:
        A.label("L_lev1")
        A("s_waitcnt lgkmcnt(0)")
        if lead:
            A(f"s_lshr_b32 s{sT0}, s{sC}, 6")
            A(f"s_sub_i32 s{sT0}, s{sT0}, {lead0}")
            A(f"s_max_i32 s{sT0}, s{sT0}, 0")
            A(f"s_mul_i32 s{sT0}, s{sT0}, s{sLead}")
            A(f"s_add_u32 s{sNow}, s{sNow}, s{sT0}")
        A("s_cmp_lt_u32 s2, 8")
        A("s_cbranch_scc0 L_lsel")
        A(f"v_mov_b32 v{lVal}, s{sNow}")
        A("s_mov_b64 exec, 1")
        A(f"buffer_store_dword v{lVal}, v{lRep}, s[{SRD_D}:{SRD_D+3}], s{sProg} offen sc1")
        A("s_mov_b64 exec, -1")
        A("s_branch L_lsel")
        A.label(f"L_lev{rs}")
        A(f"s_load_dwordx8 s[{sRef}:{sRef+7}], s[{sFbP}:{sFbP+1}], s{sProg}")
        A(f"s_add_u32 s{sProg}, s{sProg}, 256")
        A("s_branch L_lsel")
        A.label(f"L_lev{rs+1}")
        A("s_waitcnt lgkmcnt(0)")
        A(f"s_mov_b32 s{sT0}, 0")
        for k in range(8):
            A(f"s_sub_i32 s{sT1}, s{sRef+k}, s{sNow}")
            A(f"s_add_i32 s{sT2}, s{sT1}, {TAGW}")
            A(f"s_cmp_lt_u32 s{sT2}, {2*TAGW}")
            A(f"s_cselect_b32 s{sT1}, s{sT1}, {late}")
            A(f"s_add_i32 s{sT0}, s{sT0}, s{sT1}")
        if igain:
            A(f"s_mul_i32 s{sT1}, s{sT0}, {igain}"); A(f"s_add_i32 s{sInt}, s{sInt}, s{sT1}")
            A(f"s_max_i32 s{sInt}, s{sInt}, {-bias*4096}"); A(f"s_min_i32 s{sInt}, s{sInt}, {(nlev-1-bias)*4096}")
        A(f"s_mul_i32 s{sT0}, s{sT0}, {gain}")
        if igain: A(f"s_add_i32 s{sT0}, s{sT0}, s{sInt}")
        A(f"s_add_i32 s{sT0}, s{sT0}, {bias*4096 + 2048}")
        A(f"s_ashr_i32 s{sT0}, s{sT0}, 12")
        A(f"s_max_i32 s{sT0}, s{sT0}, 0")
        A(f"s_min_i32 s{sLev}, s{sT0}, {nlev-1}")
        if stamp:
            A(f"s_cmp_lt_u32 s{sC}, 1024"); A(f"s_cselect_b32 s{sT0}, 16, 24")
            A(f"s_lshl_b32 s{sT0}, s{sLev}, s{sT0}"); A(f"s_add_u32 s{sLevSum}, s{sLevSum}, s{sT0}")
        A("s_branch L_lsel")

    A.label("L_ldone")
    A("s_waitcnt vmcnt(0)")
    A("s_barrier")
    if stamp: A("s_branch L_fin")
    else: A("s_endpgm")

    A.label("L_consumer")
    A.c("q fragments: lane = kg*16 + h'*4 + qi")
    A(f"v_lshrrev_b32 v{vT1}, 2, v{vLane}")
    A(f"v_lshlrev_b32 v{vT1}, 3, v{vT1}")
    A(f"v_and_b32 v{vT2}, 3, v{vLane}")
    A(f"v_mul_u32_u24 v{vT3}, 384, v{vT2}")
    A(f"v_add_u32 v{vT1}, v{vT1}, v{vT3}")
    A(f"v_lshlrev_b32 v{vT4}, 4, v{vLane}")
    A(f"s_mul_i32 s{sPar}, s{sW}, 3072")
    A(f"s_add_u32 s{sPar}, s{sPar}, {L_PAR + 3072}")
    for k in range(4):
        A(f"s_add_u32 s{sT0}, s{sW}, {4*k}")
        A(f"v_readlane_b32 s{sRef+k}, v{vGb}, s{sT0}")
    A(f"v_readlane_b32 s{sRef+4}, v{vGb}, 0")
    A(f"s_min_u32 s{sT0}, s{sC1}, 15")
    A(f"v_readlane_b32 s{sRef+5}, v{vGb}, s{sT0}")
    A(f"v_readlane_b32 s{sRef+6}, v{vGb}, 15")
    A("s_waitcnt lgkmcnt(0)")
    srd(SRD_KZ, 12, 256*24576); srd(SRD_KS, 10, 256*24576)
    A.c("kz / ks of sequence blocks w, w+4, w+8, w+12 -> LDS (two groups per instruction)")
    A("s_mov_b32 exec_hi, 0xffff")
    for k in range(4):
        A(f"s_add_u32 m0, s{sPar}, {k*4*3072}")
        A(f"s_mul_i32 s{sT0}, s{sRef+k}, 1536")
        for a, sr in enumerate((SRD_KZ, SRD_KS)):
            A(f"buffer_load_dwordx4 v{vT4}, s[{sr}:{sr+3}], s{sT0} offen nt lds")
            A(f"buffer_load_dwordx4 v{vT4}, s[{sr}:{sr+3}], s{sT0} offen offset:768 nt lds")
            if a == 0:
                A("s_add_u32 m0, m0, 1536"); A("s_nop 0")
    srd(SRD_VS, 14, 256*8192); srd(SRD_VZ, 16, 256*8192)
    A("s_mov_b32 exec_hi, 0")
    A(f"s_lshl_b32 s{sT2}, s{sW}, 10")
    for k in range(4):
        A(f"s_add_u32 m0, s{sT2}, {L_VSZ + k*4096}")
        A(f"s_lshl_b32 s{sT0}, s{sRef+k}, 9")
        A(f"buffer_load_dwordx4 v{vT4}, s[{SRD_VS}:{SRD_VS+3}], s{sT0} offen nt lds")
        A("s_add_u32 m0, m0, 512"); A("s_nop 0")
        A(f"buffer_load_dwordx4 v{vT4}, s[{SRD_VZ}:{SRD_VZ+3}], s{sT0} offen nt lds")
    A("s_mov_b32 exec_hi, -1")
    srd(SRD_Q, 4, 256*1536)
    for r in range(3):
        A(f"s_lshr_b32 s{sT0}, s{sRef+4+r}, 4")
        A(f"s_mul_i32 s{sT0}, s{sT0}, 1536")
        for j in range(3):
            A(f"buffer_load_dwordx2 {vr(vQ + r*6 + j*2, 2)}, v{vT1}, s[{SRD_Q}:{SRD_Q+3}], s{sT0} offen offset:{j*128} {qf}")
    A(f"s_mov_b32 s{sLog2e}, {LOG2E:#x}"); A(f"s_mov_b32 s{sScale}, {SCALE:#x}")
    A(f"s_mov_b32 s{sHi}, 0xffff0000")
    A.c("K param LDS addresses: (tok>>6)*384 + (kg*4+h)*8")
    n0, isb, part = vX, vX+1, vX+2
    A(f"v_bfe_u32 v{n0}, v{vLane}, 2, 1"); A(f"v_lshl_add_u32 v{n0}, v{vW}, 2, v{n0}")
    A(f"v_bfe_u32 v{isb}, v{vLane}, 3, 1")
    A(f"v_lshrrev_b32 v{part}, 4, v{vLane}"); A(f"v_lshl_add_u32 v{part}, v{part}, 2, v{vT2}")
    A(f"v_lshlrev_b32 v{part}, 3, v{part}"); A(f"v_add_u32 v{part}, {L_PAR}, v{part}")
    A(f"s_movk_i32 s{sT0}, 384")
    for i in range(8):
        for e in range(2):
            d = vPar + 2*i + e
            A(f"v_add_u32 v{vT1}, {16*i + 2*e}, v{n0}")
            tok_of(d, vT1, isb, vT3, vT4)
            A(f"v_lshrrev_b32 v{d}, 6, v{d}")
            A(f"v_mad_u32_u24 v{d}, v{d}, s{sT0}, v{part}")
    A.c("P layout: lane = t*16 + b*4 + qi ; n = 64g + 16b + 4w + 2e + (t&1)")
    A(f"v_bfe_u32 v{n0}, v{vLane}, 4, 1"); A(f"v_lshl_add_u32 v{n0}, v{vW}, 2, v{n0}")
    A(f"v_bfe_u32 v{vT1}, v{vLane}, 2, 2"); A(f"v_lshl_add_u32 v{n0}, v{vT1}, 4, v{n0}")
    A(f"v_lshrrev_b32 v{isb}, 5, v{vLane}")
    A(f"s_mov_b32 s{sT0}, {L_VSZ}")
    for g in range(2):
        for e in range(2):
            d = vPa + 2*g + e
            A(f"v_add_u32 v{vT1}, {64*g + 2*e}, v{n0}")
            tok_of(d, vT1, isb, vT3, vT4)
            A(f"v_lshl_add_u32 v{d}, v{d}, 1, s{sT0}")
    A(f"v_lshlrev_b32 v{vLogA}, 2, v{vLane}")
    A(f"v_lshl_add_u32 v{vLogA}, v{vW}, 9, v{vLogA}")
    A(f"v_add_u32 v{vLogA}, {L_PAR}, v{vLogA}")
    A(f"v_mul_u32_u24 v{vRing}, 6144, v{vW}")
    A(f"v_lshl_add_u32 v{vRing}, v{vLane}, 4, v{vRing}")
    A(f"v_mov_b32 v{vM}, 0xff800000")
    A(f"s_mov_b32 s{sRnd}, 0")
    A(f"s_mov_b32 s{sBlk}, 0"); A(f"s_mov_b32 s{sSlot}, {L_RING}"); A(f"s_movk_i32 s{sPar}, 3072")
    A("s_waitcnt vmcnt(0)")
    A("s_barrier")
    if stamp: A("s_memrealtime s[92:93]")

    def par_reads(i):
        out = [f"v_add_u32 v{vPad+e}, s{sPar}, v{vPar+2*i+e}" for e in range(2)]
        for e in range(2):
            for j in range(3):
                out.append(f"ds_read_b64 {vr(vRaw+e*12+j*4, 2)}, v{vPad+e} offset:{j*128}")
                out.append(f"ds_read_b64 {vr(vRaw+e*12+j*4+2, 2)}, v{vPad+e} offset:{1536 + j*128}")
        return out
    def par_unpack():
        A("s_waitcnt lgkmcnt(0)")
        for k in range(6):
            for dst, src in ((vZ+4*k, vRaw+4*k), (vS+4*k, vRaw+4*k+2)):
                for h in range(2):
                    A(f"v_lshlrev_b32 v{dst+2*h}, 16, v{src+h}")
                    A(f"v_and_b32 v{dst+2*h+1}, s{sHi}, v{src+h}")
    def fetch_unit():
        A(f"v_add_u32 v{vRd}, s{sSlot}, v{vRing}")
        A(f"s_add_u32 s{sSlot}, s{sSlot}, 24576")
        A(f"s_cmp_eq_u32 s{sSlot}, {L_RING + 73728}")
        A(f"s_cselect_b32 s{sSlot}, {L_RING}, s{sSlot}")
        A("s_barrier")
        if nocomp: return
        for k in range(6):
            A(f"ds_read_b128 {vr(vX+4*k, 4)}, v{vRd} offset:{k*1024}")
    def dpp_sum(e, b):
        D = vD + 4*e
        L = vLa if e == 0 else vLb
        t = vT1 + e
        return [f"v_add_f32_dpp v{t}, v{D+(b+1) % 4}, v{D+b} row_ror:12 row_mask:0xf bank_mask:0xf",
                f"v_add_f32_dpp v{t}, v{D+(b+2) % 4}, v{t} row_ror:8 row_mask:0xf bank_mask:0xf",
                f"v_add_f32_dpp v{L}, v{D+(b+3) % 4}, v{t} row_ror:4 row_mask:0xf bank_mask:{1 << b:#x}"]

    for x in par_reads(0): A(x)
    par_unpack()
    A.label("L_kblk")
    for i in range(8):
        b = i % 4
        A.c(f"K step {i}")
        fetch_unit()
        if nocomp: continue
        for e in range(2):
            o = e*12
            A(f"s_waitcnt lgkmcnt({3 - 3*e})")
            for k in range(12): A(f"v_cvt_f32_i32 v{vX+o+k}, v{vX+o+k}")
            if pk:
                for k in range(0, 12, 2): A(f"v_pk_add_f32 {vr(vX+o+k, 2)}, {vr(vX+o+k, 2)}, {vr(vZ+o+k, 2)} neg_lo:[0,1] neg_hi:[0,1]")
            else:
                for k in range(12): A(f"v_sub_f32 v{vX+o+k}, v{vX+o+k}, v{vZ+o+k}")
            for k in range(12): A(f"v_cvt_pk_bf16_f32 v{vX+o+k}, 0, v{vX+o+k}")
            if pk:
                for k in range(0, 12, 2): A(f"v_pk_mul_f32 {vr(vX+o+k, 2)}, {vr(vX+o+k, 2)}, {vr(vS+o+k, 2)}")
            else:
                for k in range(12): A(f"v_mul_f32 v{vX+o+k}, v{vX+o+k}, v{vS+o+k}")
            packs = [f"v_cvt_pk_bf16_f32 v{vKb+e*6+k}, v{vX+o+2*k}, v{vX+o+2*k+1}" for k in range(6)]
            if e == 1:
                d = dpp_sum(0, b)
                packs = packs[0:2] + d[0:1] + packs[2:4] + d[1:2] + packs[4:6] + d[2:3]
            for x in packs: A(x)
            D = vr(vD+4*e, 4)
            for j in range(3):
                A(f"v_mfma_f32_16x16x16_bf16 {D}, {vr(vKb+e*6+2*j, 2)}, {vr(vQ+2*j, 2)}, {'0' if j == 0 else D}")
        if i == 7: A(f"s_add_u32 s{sPar}, s{sPar}, 3072")
        pr = par_reads((i+1) % 8)
        d = dpp_sum(1, b)
        for x in pr[:9] + d[0:1] + pr[9:11] + d[1:2] + pr[11:14] + d[2:3]: A(x)
        if b == 3:
            A(f"v_cvt_pk_bf16_f32 v{vT1}, 0, v{vLa}")
            A(f"v_cvt_pk_bf16_f32 v{vT2}, 0, v{vLb}")
            A(f"v_mul_f32 v{vT1}, s{sScale}, v{vT1}")
            A(f"v_mul_f32 v{vT2}, s{sScale}, v{vT2}")
            A(f"v_cvt_pk_bf16_f32 v{vT3}, v{vT1}, v{vT2}")
            A(f"v_max3_f32 v{vM}, v{vM}, v{vT1}, v{vT2}")
            A(f"ds_write_b32 v{vLogA}, v{vT3} offset:{(i//4)*256}")
        par_unpack()
    def round_end_test(loop):
        A(f"s_add_u32 s{sBlk}, s{sBlk}, 1")
        A(f"s_cmp_eq_u32 s{sBlk}, s{sC1}")
        A(f"s_cbranch_scc1 {loop}_end")
        A(f"s_cmp_eq_u32 s{sBlk}, s{sC2}")
        A(f"s_cbranch_scc1 {loop}_end")
        A(f"s_cmp_lt_u32 s{sBlk}, 16")
        A(f"s_cbranch_scc1 {loop}")
        A.label(f"{loop}_end")
    A(f"v_add_u32 v{vLogA}, 3072, v{vLogA}")
    round_end_test("L_kblk")
    A.c("end of a K round: park the per-lane max, rotate q")
    for r in range(3):
        A(f"s_cmp_eq_u32 s{sRnd}, {r}")
        A("s_cselect_b64 vcc, -1, 0")
        A(f"v_cndmask_b32 v{vMs+r}, v{vMs+r}, v{vM}, vcc")
    A(f"s_add_u32 s{sRnd}, s{sRnd}, 1")
    for k in range(12): A(f"v_mov_b32 v{vQ+k}, v{vQ+6+k}")
    A(f"v_mov_b32 v{vM}, 0xff800000")
    A(f"s_cmp_lt_u32 s{sBlk}, 16")
    A("s_cbranch_scc1 L_kblk")

    if stamp: A("s_memrealtime s[94:95]")
    def p_reads(g):
        return [f"v_add_u32 v{vSZ}, s{sPar}, v{vPa+2*g}",
                f"v_add_u32 v{vSZ+1}, s{sPar}, v{vPa+2*g+1}",
                f"ds_read_b32 v{vLg}, v{vLogA} offset:{g*256}",
                f"ds_read_u16 v{vSZ+2}, v{vSZ} offset:512",
                f"ds_read_u16 v{vSZ+3}, v{vSZ+1} offset:512",
                f"ds_read_u16 v{vSZ}, v{vSZ}",
                f"ds_read_u16 v{vSZ+1}, v{vSZ+1}"]
    def xlane(op, r, t):
        A("s_nop 1")
        A(f"{op}_dpp v{r}, v{r}, v{r} row_ror:4 row_mask:0xf bank_mask:0xf")
        A("s_nop 1")
        A(f"{op}_dpp v{r}, v{r}, v{r} row_ror:8 row_mask:0xf bank_mask:0xf")
        for sw in ("v_permlane16_swap_b32", "v_permlane32_swap_b32"):
            A(f"v_mov_b32 v{t}, v{r}")
            A("s_nop 1")
            A(f"{sw} v{r}, v{t}")
            A(f"{op} v{r}, v{r}, v{t}")
    A(f"v_subrev_u32 v{vLogA}, {16*3072}, v{vLogA}")
    A(f"s_mov_b32 s{sPar}, 0")
    for x in p_reads(0): A(x)
    for k in range(4): A(f"v_mov_b32 v{vP+k}, 0")
    A(f"s_mov_b32 s{sBlk}, 0")
    if stamp: A("s_waitcnt lgkmcnt(0)")

    A.label("L_vround")
    A(f"v_mov_b32 v{vM}, v{vMs}"); A(f"v_mov_b32 v{vMs}, v{vMs+1}"); A(f"v_mov_b32 v{vMs+1}, v{vMs+2}")
    for k in range(48): A(f"v_mov_b32 v{vAcc+k}, 0")
    A(f"v_mov_b32 v{vSum}, 0"); A(f"v_mov_b32 v{vCor}, 0")
    xlane("v_max_f32", vM, vT1)
    A(f"v_cvt_pk_bf16_f32 v{vM}, 0, v{vM}")
    A(f"v_mul_f32 v{vM}, s{sLog2e}, v{vM}")
    A.label("L_vblk")
    for i in range(8):
        b, g = i % 4, i//4
        A.c(f"V step {i}")
        fetch_unit()
        if nocomp: continue
        if b == 0:
            E = vE
            for x in ["s_waitcnt lgkmcnt(6)",
                      f"v_lshlrev_b32 v{E}, 16, v{vLg}",
                      f"v_and_b32 v{E+1}, s{sHi}, v{vLg}",
                      f"v_fma_f32 v{E}, v{E}, s{sLog2e}, -v{vM}",
                      f"v_fma_f32 v{E+1}, v{E+1}, s{sLog2e}, -v{vM}",
                      f"v_exp_f32 v{E}, v{E}",
                      f"v_exp_f32 v{E+1}, v{E+1}",
                      f"v_lshlrev_b32 v{E+2}, 16, v{vSZ}",
                      f"v_lshlrev_b32 v{E+3}, 16, v{vSZ+1}",
                      f"v_mul_f32 v{E+2}, v{E}, v{E+2}",
                      f"v_mul_f32 v{E+3}, v{E+1}, v{E+3}",
                      f"v_add_f32 v{vSum}, v{vSum}, v{E}",
                      f"v_cvt_pk_bf16_f32 v{E+2}, v{E+2}, v{E+3}",
                      f"v_add_f32 v{vSum}, v{vSum}, v{E+1}",
                      f"v_lshlrev_b32 v{E+4}, 16, v{vSZ+2}",
                      f"v_lshlrev_b32 v{E+5}, 16, v{vSZ+3}",
                      f"v_lshlrev_b32 v{E}, 16, v{E+2}",
                      f"v_and_b32 v{E+1}, s{sHi}, v{E+2}",
                      f"v_fmac_f32 v{vCor}, v{E}, v{E+4}",
                      f"v_fmac_f32 v{vCor}, v{E+1}, v{E+5}"]: A(x)
            for k in range(4):
                A(f"v_mov_b32_dpp v{vP+k}, v{E+2} quad_perm:[0,1,2,3] row_mask:0xf bank_mask:{1 << k:#x}")
        A("s_waitcnt lgkmcnt(3)")
        for k in range(12): A(f"v_cvt_f32_i32 v{vX+k}, v{vX+k}")
        A("s_waitcnt lgkmcnt(0)")
        for k in range(12, 24): A(f"v_cvt_f32_i32 v{vX+k}, v{vX+k}")
        for k in range(12): A(f"v_cvt_pk_bf16_f32 v{vB+k*4+b}, v{vX+k}, v{vX+12+k}")
        if b == 0:
            if g == 1:
                A(f"v_add_u32 v{vLogA}, 3072, v{vLogA}")
                A(f"s_add_u32 s{sPar}, s{sPar}, 1024")
            for x in p_reads(1-g): A(x)
        if b == 3:
            for k in range(12):
                A(f"v_mfma_f32_16x16x32_bf16 {vr(vAcc+4*k, 4)}, {vr(vP, 4)}, {vr(vB+4*k, 4)}, {vr(vAcc+4*k, 4)}")
    round_end_test("L_vblk")

    A.c("reduce over lane groups, park O and (m, l, c) in LDS")
    xlane("v_add_f32", vSum, vT1)
    xlane("v_add_f32", vCor, vT1)
    A(f"v_mov_b32 v{vX}, v{vM}"); A(f"v_mov_b32 v{vX+1}, v{vSum}"); A(f"v_mov_b32 v{vX+2}, v{vCor}"); A(f"v_mov_b32 v{vX+3}, 0")
    A(f"v_and_b32 v{vT2}, 3, v{vLane}")
    A(f"v_lshl_add_u32 v{vT2}, v{vW}, 2, v{vT2}")
    A(f"v_lshlrev_b32 v{vT2}, 4, v{vT2}")
    A(f"v_add_u32 v{vT2}, {L_STAT}, v{vT2}")
    A(f"ds_write_b128 v{vT2}, {vr(vX, 4)}")
    for k in range(12):
        a = vAcc + 4*k
        A(f"v_permlane32_swap_b32 v{a}, v{a+2}")
        A(f"v_permlane32_swap_b32 v{a+1}, v{a+3}")
    for k in range(12):
        a = vAcc + 4*k
        A(f"v_add_f32 v{a}, v{a}, v{a+2}")
        A(f"v_add_f32 v{a+1}, v{a+1}, v{a+3}")
    A("s_nop 1")
    for k in range(12):
        a = vAcc + 4*k
        A(f"v_permlane16_swap_b32 v{a}, v{a+1}")
    for k in range(12):
        a = vAcc + 4*k
        A(f"v_add_f32 v{vX+4+k}, v{a}, v{a+1}")
    A(f"v_lshrrev_b32 v{vT1}, 4, v{vLane}")
    A(f"v_mul_u32_u24 v{vT1}, 768, v{vT1}")
    A(f"v_and_b32 v{vT2}, 15, v{vLane}")
    A(f"v_lshl_add_u32 v{vT1}, v{vT2}, 4, v{vT1}")
    A(f"v_mul_u32_u24 v{vT2}, 3072, v{vW}")
    A(f"s_mov_b32 s{sT0}, {L_SLOT}")
    A(f"v_add3_u32 v{vT2}, v{vT2}, v{vT1}, s{sT0}")
    for j in range(3):
        A(f"ds_write_b128 v{vT2}, {vr(vX+4+4*j, 4)} offset:{j*256}")
    A("s_waitcnt lgkmcnt(0)")
    A(f"s_cmp_lt_u32 s{sBlk}, 16")
    A("s_cbranch_scc1 L_vround")
    A("s_barrier")
    A("s_branch L_fin")

    A.label("L_finisher")
    fOff, fLin, fTag, fM, fL, fT, fSta, fH, fHa = 8, 9, 10, 11, 12, 13, 14, 15, 7
    IMG = 4352
    fSt, fO = 16, 32
    R = [80, 100, 120]
    E = [140, 160]
    sN, sTag, sDone, sIa, sIb, sH1 = sM, sProg, sLev, sC, sSlot, sPar
    A(f"v_lshrrev_b32 v{fOff}, 4, v{vLane}")
    A(f"v_mul_u32_u24 v{fOff}, 768, v{fOff}")
    A(f"v_and_b32 v{fT}, 15, v{vLane}")
    A(f"v_lshl_add_u32 v{fOff}, v{fT}, 4, v{fOff}")
    A(f"v_lshlrev_b32 v{fLin}, 4, v{vLane}")
    A(f"v_and_b32 v{fSta}, 48, v{vLane}")
    A(f"s_memrealtime s[{sNow}:{sNow+1}]")
    A("s_waitcnt lgkmcnt(0)")
    srd(SRD_O, 18, 256*1536); srd(SRD_D, 20, 256); srd(SRD_L, 22, 600*IMG)
    def claim_tag():
        A(f"s_or_b32 s{sTag}, s{sNow}, 1")
        A(f"v_mov_b32 v{fSt}, s{sTag}"); A(f"v_mov_b32 v{fSt+1}, 0")
        A("s_mov_b64 exec, 1")
        A(f"buffer_atomic_cmpswap {vr(fSt, 2)}, v{fLin}, s[{SRD_D}:{SRD_D+3}], 0 offen sc0 sc1")
        A("s_mov_b64 exec, -1")
        A("s_waitcnt vmcnt(0)")
        A(f"v_readfirstlane_b32 s{sT0}, v{fSt}")
        A("s_nop 3")
        A(f"s_cmp_eq_u32 s{sT0}, 0")
        A(f"s_cselect_b32 s{sTag}, s{sTag}, s{sT0}")
    A("s_cmp_eq_u32 s2, 0")
    A("s_cbranch_scc0 L_fk")
    claim_tag()
    A.label("L_fk")
    uid = [0]
    def barriers(n):
        uid[0] += 1
        A(f"s_movk_i32 s{sN}, {n}")
        A.label(f"L_fb{uid[0]}")
        A("s_barrier")
        A(f"s_sub_u32 s{sN}, s{sN}, 1")
        A(f"s_cmp_lg_u32 s{sN}, 0")
        A(f"s_cbranch_scc1 L_fb{uid[0]}")
    barriers(128)
    A(f"s_load_dword s{sTag}, s[20:21], 0")
    A("s_barrier")
    A("s_waitcnt lgkmcnt(0)")
    A(f"s_cmp_eq_u32 s{sTag}, 0")
    A("s_cbranch_scc0 L_ftag")
    claim_tag()
    A.label("L_ftag")
    A(f"v_mov_b32 v{fTag}, s{sTag}")
    A.c("image numbers: region-2 head j part p -> 3j+p; region-1 head h -> 256+2h (owner), 257+2h (helper)")
    A(f"s_mul_i32 s{sIa}, s{sJ}, {3*IMG}")
    A(f"s_lshr_b32 s{sH1}, s{sP}, 1"); A(f"s_lshl_b32 s{sT0}, s{sJ}, 1"); A(f"s_add_u32 s{sH1}, s{sH1}, s{sT0}")
    A(f"s_mul_i32 s{sIb}, s{sH1}, {2*IMG}"); A(f"s_add_u32 s{sIb}, s{sIb}, {256*IMG}")
    def combine(I):
        A(f"v_add_u32 v{fT}, {L_STAT}, v{fSta}")
        A(f"v_add_u32 v{fM}, {L_SLOT}, v{fOff}")
        for w in range(4): A(f"ds_read_b128 {vr(fSt+4*w, 4)}, v{fT} offset:{w*64}")
        for w in range(4):
            for j in range(3):
                A(f"ds_read_b128 {vr(fO+12*w+4*j, 4)}, v{fM} offset:{w*3072 + j*256}")
                if w == 2 and j == 2: A("s_waitcnt lgkmcnt(9)")
        A(f"v_max_f32 v{I+16}, v{fSt}, v{fSt+4}")
        A(f"v_max3_f32 v{I+16}, v{I+16}, v{fSt+8}, v{fSt+12}")
        for w in range(4): A(f"v_sub_f32 v{fSt+4*w}, v{fSt+4*w}, v{I+16}")
        for w in range(4): A(f"v_exp_f32 v{fSt+4*w}, v{fSt+4*w}")
        for k in range(5): A(f"v_mov_b32 v{I+4*k+3}, v{fTag}")
        A(f"v_mul_f32 v{I+17}, v{fSt}, v{fSt+1}")
        A(f"v_mul_f32 v{I+18}, v{fSt}, v{fSt+2}")
        for w in range(1, 4):
            A(f"v_fmac_f32 v{I+17}, v{fSt+4*w}, v{fSt+4*w+1}")
            A(f"v_fmac_f32 v{I+18}, v{fSt+4*w}, v{fSt+4*w+2}")
        for w in range(4):
            A(f"s_waitcnt lgkmcnt({9 - 3*w})")
            for k in range(12):
                o = I + (k//3)*4 + k % 3
                if w == 0: A(f"v_fma_f32 v{o}, v{fO+k}, v{fSt}, -v{I+18}")
                else:      A(f"v_fmac_f32 v{o}, v{fO+12*w+k}, v{fSt+4*w}")
    def load(I, sb, off):
        A(f"s_add_u32 s{sT0}, s{sb}, {off}"); A(f"s_add_u32 s{sT1}, s{sb}, {off + 4096}")
        A(f"buffer_load_dwordx4 {vr(I+16, 4)}, v{fSta}, s[{SRD_L}:{SRD_L+3}], s{sT1} offen sc1")
        for k in range(4):
            A(f"buffer_load_dwordx4 {vr(I+4*k, 4)}, v{fLin}, s[{SRD_L}:{SRD_L+3}], s{sT0} offen offset:{k*1024} sc1")
    def publish(I, sb, off):
        A(f"s_add_u32 s{sT0}, s{sb}, {off}"); A(f"s_add_u32 s{sT1}, s{sb}, {off + 4096}")
        for k in range(4):
            A(f"buffer_store_dwordx4 {vr(I+4*k, 4)}, v{fLin}, s[{SRD_L}:{SRD_L+3}], s{sT0} offen offset:{k*1024} sc1")
        A("s_mov_b32 exec_lo, 0x00010001"); A("s_mov_b32 exec_hi, 0x00010001")
        A(f"buffer_store_dwordx4 {vr(I+16, 4)}, v{fSta}, s[{SRD_L}:{SRD_L+3}], s{sT1} offen sc1")
        A("s_mov_b64 exec, -1")
    def check(imgs):
        g = [I+4*k+3 for I in imgs for k in range(5)]
        A(f"v_xor_b32 v{fT}, v{fTag}, v{g[0]}")
        for r in g[1:]:
            A(f"v_xor_b32 v{fM}, v{fTag}, v{r}")
            A(f"v_or_b32 v{fT}, v{fT}, v{fM}")
        A(f"v_cmp_ne_u32 vcc, 0, v{fT}")
        A("s_nop 4")
        A("s_cmp_eq_u64 vcc, 0")
    def merge(imgs, shead, add):
        n = len(imgs)
        F = fSt
        if n == 3: A(f"v_max3_f32 v{fM}, v{imgs[0]+16}, v{imgs[1]+16}, v{imgs[2]+16}")
        else:      A(f"v_max_f32 v{fM}, v{imgs[0]+16}, v{imgs[-1]+16}")
        for p in range(n): A(f"v_sub_f32 v{F+p}, v{imgs[p]+16}, v{fM}")
        for p in range(n): A(f"v_exp_f32 v{F+p}, v{F+p}")
        A(f"v_lshrrev_b32 v{fT}, 1, v{fOff}")
        A(f"v_mul_f32 v{fL}, v{F}, v{imgs[0]+17}")
        for p in range(1, n): A(f"v_fmac_f32 v{fL}, v{F+p}, v{imgs[p]+17}")
        A(f"v_rcp_f32 v{fL}, v{fL}")
        A(f"s_add_u32 s{sT0}, s{shead}, {add}")
        A(f"s_mul_i32 s{sT0}, s{sT0}, 1536")
        for p in range(n): A(f"v_mul_f32 v{F+p}, v{F+p}, v{fL}")
        for k in range(12):
            o = (k//3)*4 + k % 3
            A(f"v_mul_f32 v{fO+k}, v{imgs[0]+o}, v{F}")
            for p in range(1, n): A(f"v_fmac_f32 v{fO+k}, v{imgs[p]+o}, v{F+p}")
        for k in range(6): A(f"v_cvt_pk_bf16_f32 v{fO+12+k}, v{fO+2*k}, v{fO+2*k+1}")
        for j in range(3):
            A(f"buffer_store_dwordx2 {vr(fO+12+2*j, 2)}, v{fT}, s[{SRD_O}:{SRD_O+3}], s{sT0} offen offset:{j*128}")
    A("s_cmp_eq_u32 s2, 255")
    A("s_cbranch_scc1 L_fsolo")
    A(f"s_cmp_eq_u32 s{sP}, 1")
    A("s_cbranch_scc1 L_fmid")

    A.c("outer workgroup: owns a region-1 head, helps with the region-2 head")
    barriers(89)
    combine(E[0])
    barriers(39)
    if spec: load(E[1], sIb, IMG)
    A("s_barrier")
    A(f"s_cmp_eq_u32 s{sP}, 2")
    A("s_cbranch_scc1 L_fo2")
    for p in (0, 2):
        if p == 2: A.label("L_fo2")
        combine(R[p])
        if nofin: A("s_branch L_fin")
        publish(R[p], sIa, p*IMG)
        A(f"s_mov_b32 s{sDone}, 0")
        if spec:
            A("s_waitcnt vmcnt(5)")
            check([E[1]])
            A(f"s_cbranch_scc0 L_fo3{p}")
            merge(E, sH1, 0)
            A(f"s_mov_b32 s{sDone}, 1")
            A("s_waitcnt vmcnt(0)")
            A(f"s_branch L_fo4{p}")
            A.label(f"L_fo3{p}")
        A("s_waitcnt vmcnt(0)")
        load(E[1], sIb, IMG)
        A.label(f"L_fo4{p}")
        load(R[2-p], sIa, (2-p)*IMG)
        if p == 0: A("s_branch L_fo5")
    A.label("L_fo5")
    load(R[1], sIa, IMG)
    A("s_waitcnt vmcnt(0)")
    check(R)
    A("s_cbranch_scc0 L_fo6")
    merge(R, sJ, 171)
    A.label("L_fo6")
    A(f"s_cmp_eq_u32 s{sDone}, 1")
    A("s_cbranch_scc1 L_fin")
    check([E[1]])
    A("s_cbranch_scc1 L_fo7")
    publish(E[0], sIb, 0)
    A("s_waitcnt vmcnt(0)")
    load(E[1], sIb, IMG)
    A("s_waitcnt vmcnt(0)")
    check([E[1]])
    A("s_cbranch_scc0 L_fin")
    A.label("L_fo7")
    merge(E, sH1, 0)
    A("s_branch L_fin")

    A.label("L_fmid")
    A.c("middle workgroup: helps with two region-1 heads, has the largest part of the region-2 head")
    A(f"v_and_b32 v{fHa}, 1, v{vLane}")
    A(f"v_mul_u32_u24 v{fHa}, {2*IMG}, v{fHa}")
    A(f"v_add_u32 v{fHa}, {4096 + 12}, v{fHa}")
    barriers(41)
    combine(E[0])
    barriers(40)
    combine(E[1])
    barriers(47 - early)
    if not nofin:
        publish(E[0], sIb, IMG)
        publish(E[1], sIb, 3*IMG)
    for k in range(early): A("s_barrier")
    if not nofin:
        load(R[0], sIa, 0); load(R[2], sIa, 2*IMG)
    A("s_barrier")
    combine(R[1])
    if nofin: A("s_branch L_fin")
    A("s_waitcnt vmcnt(0)")
    A(f"buffer_load_dword v{fH}, v{fHa}, s[{SRD_L}:{SRD_L+3}], s{sIb} offen sc1")
    check([R[0], R[2]])
    A("s_cbranch_scc1 L_fm1")
    publish(R[1], sIa, IMG)
    A("s_waitcnt vmcnt(0)")
    load(R[0], sIa, 0); load(R[2], sIa, 2*IMG)
    A("s_waitcnt vmcnt(0)")
    check([R[0], R[2]])
    A("s_cbranch_scc0 L_fm2")
    A.label("L_fm1")
    merge(R, sJ, 171)
    A("s_waitcnt vmcnt(3)")
    A.label("L_fm2")
    A.c("an owner that missed its helper image has published its own: finish that head here")
    A(f"v_cmp_eq_u32 vcc, v{fH}, v{fTag}")
    A("s_nop 4")
    A(f"s_and_b32 s{sDone}, vcc_lo, 3")
    A("s_cbranch_scc0 L_fin")
    for h in range(2):
        A(f"s_bitcmp1_b32 s{sDone}, {h}")
        A(f"s_cbranch_scc0 L_fm3{h}")
        A("s_waitcnt vmcnt(0)")
        load(R[0], sIb, 2*h*IMG)
        A("s_waitcnt vmcnt(0)")
        check([R[0]])
        A(f"s_cbranch_scc0 L_fm3{h}")
        merge([R[0], E[h]], sH1, h)
        A.label(f"L_fm3{h}")
    A("s_branch L_fin")

    A.label("L_fsolo")
    barriers(129)
    combine(R[0])
    merge([R[0]], sH1, 0)
    A.label("L_fin")
    if stamp: stamp_out(None)
    A.label("L_end")
    A("s_endpgm")

    kn = name + "_kernel"
    hdr = open(f"/code/{NAME}.s.ref").read().split("; Override launch")[0]
    nv = (NV + 7)//8*8
    s = hdr + f"""; @launch grid=(256,1,1) block=(384,1,1) lds={LDS}
.amdgcn_target "amdgcn-amd-amdhsa--gfx950"
.text
.globl {kn}
.p2align 8
.type {kn},@function
{kn}:
{A.text()}
.section .rodata,"a"
.p2align 6
.amdhsa_kernel {kn}
  .amdhsa_next_free_vgpr {nv}
  .amdhsa_next_free_sgpr 102
  .amdhsa_accum_offset {nv}
  .amdhsa_group_segment_fixed_size 0
  .amdhsa_kernarg_size 80
  .amdhsa_user_sgpr_count 2
  .amdhsa_user_sgpr_kernarg_segment_ptr 1
  .amdhsa_system_sgpr_workgroup_id_x 1
  .amdhsa_float_denorm_mode_32 3
.end_amdhsa_kernel
"""
    return s, kn, f"{kn}:256:384:{LDS}"

if __name__ == "__main__":
    kw = {}
    out = f"/code/{NAME}.s"
    for a in sys.argv[1:]:
        k, v = a.split("=")
        if k == "out": out = v
        else: kw[k] = eval(v)
    s, kn, spec = gen(**kw)
    open(out, "w").write(s)
    print(out, spec)
```

```python
import sys
from gen_kernel import Asm, VAlloc, vr, NAME, LOG2E, SCALE

def gen(thr0=18.5, lo=16, gain=6, per=4, late=200, lead=0, lead0=48, boost=0, boost0=63, gain2=24, inl=False, desc=True, skip=2, g2at=29/32, pk=False,
        stamp=False, nocomp=False, prio=3, early=1, first=1, spec=True, nofin=False, nst=4, qf='nt', slow=None,
        warm=8, name=NAME):
    KV_BYTES = 256*4096*768
    L_RING, L_PAR = 0, 73728
    L_VSZ = L_PAR + 17*3072
    L_STAT = L_VSZ + 16384
    L_SLOT = L_STAT + 256
    L_THR = L_SLOT + 4*3072
    LDS = L_THR + 64
    WS_STAMP, WS_FB = 8 << 20, 16 << 20
    FB_END = WS_FB + (256//per + 1)*256
    TAGW = 5000
    A = Asm()
    va = VAlloc(1)
    vLane = va(); vW = va(); vT1 = va(); vT2 = va(); vT3 = va(); vT4 = va()
    vPa = va(4); vLogA = va(); vRing = va(); vRd = va()
    vM = va(); vLa = va(); vLb = va()
    vPar = va(16); vPad = va(2)
    vX = va(24, 4)
    vZ = va(24, 4); vS = va(24, 4)
    vB = vZ
    vRaw = va(24, 4)
    vKb = va(12, 4); vD = va(8, 4); vGb = va(); vMs = va(3)
    vAcc = va(48, 4)
    vQ = vAcc
    vP = va(4, 4)
    vSum = va(); vCor = va(); vLg = va(); vSZ = va(4); vE = va(6)
    NV = va.n
    assert NV <= 256, NV
    sW, sBase, sT0, sT1, sT2, sBlk, sSlot, sPar = 56, 57, 58, 59, 60, 61, 62, 63
    sLog2e, sScale, sHi, s768 = 64, 65, 66, 67
    sC, sM, sLev, sProg, sRot, sHead, sInt, sLevSum = 68, 69, 70, 71, 72, 73, 74, 75
    sNow, sFbP, sRef = 96, 98, 84
    sC1, sC2, sLead, sJ, sP, sRnd = 3, 73, 72, 100, 101, 74
    WS_PART = 0
    SRD_L, SRD_KS, SRD_KZ, SRD_VS, SRD_VZ, SRD_Q, SRD_O, SRD_D = 24, 28, 32, 36, 40, 44, 48, 52
    def srd(d, p, nbytes):
        A(f"s_mov_b32 s{d}, s{p}"); A(f"s_and_b32 s{d+1}, s{p+1}, 0xffff")
        A(f"s_mov_b32 s{d+2}, {nbytes}"); A(f"s_mov_b32 s{d+3}, 0x20000")
    def tok_of(dst, n, isb, t, u):
        A(f"v_cmp_le_u32 vcc, 43, v{n}")
        A(f"v_add_u32 v{t}, 43, v{n}")
        A(f"v_mov_b32 v{u}, 42")
        A(f"v_cndmask_b32 v{dst}, v{n}, v{t}, vcc")
        A(f"v_cmp_le_u32 vcc, 86, v{n}")
        A(f"v_add_u32 v{t}, 43, v{dst}")
        A("s_nop 0")
        A(f"v_cndmask_b32 v{dst}, v{dst}, v{t}, vcc")
        A(f"v_cndmask_b32 v{u}, 43, v{u}, vcc")
        A(f"v_mad_u32_u24 v{dst}, v{u}, v{isb}, v{dst}")
    def stamp_out(idx_expr):
        A("s_waitcnt vmcnt(0)")
        A("s_memrealtime s[82:83]")
        A("s_getreg_b32 s84, hwreg(HW_REG_XCC_ID)")
        A("s_getreg_b32 s85, hwreg(HW_REG_HW_ID)")
        A("s_and_b32 s85, s85, 0xffff")
        A(f"s_or_b32 s85, s85, s{sLevSum}")
        A("s_waitcnt lgkmcnt(0)")
        srd(76, 22, WS_STAMP + 1792*32)
        for k, sr in enumerate((80, 81, 82, 83, 84, 85, 92, 94)): A(f"v_mov_b32 v{vX+k}, s{sr}")
        A("s_mul_i32 s85, s2, 7"); A(f"s_add_u32 s85, s85, s{sW}"); A("s_lshl_b32 s85, s85, 5")
        A(f"s_add_u32 s85, s85, {WS_STAMP}")
        A(f"v_mov_b32 v{vT3}, 0")
        A("s_mov_b64 exec, 1")
        A(f"buffer_store_dwordx4 {vr(vX, 4)}, v{vT3}, s[76:79], s85 offen")
        A(f"buffer_store_dwordx4 {vr(vX+4, 4)}, v{vT3}, s[76:79], s85 offen offset:16")

    A("s_cmp_ge_u32 s2, 256")
    A("s_cbranch_scc1 L_end")
    A("s_load_dwordx16 s[4:19], s[0:1], 0")
    A("s_load_dwordx4 s[20:23], s[0:1], 64")
    if stamp:
        A("s_memrealtime s[80:81]")
        A(f"s_mov_b32 s{sLevSum}, 0"); A("s_mov_b32 s92, 0"); A("s_mov_b32 s94, 0")
    if slow:
        A(f"s_mul_i32 s{sT0}, s2, {slow[0]}"); A(f"s_bfe_u32 s{sT0}, s{sT0}, {4 | (2 << 16)}")
        A(f"s_mul_i32 s{sT0}, s{sT0}, {slow[1]}")
        A.label("L_slow")
        A("s_sleep 32")
        A(f"s_sub_i32 s{sT0}, s{sT0}, 1")
        A(f"s_cmp_gt_i32 s{sT0}, 0")
        A("s_cbranch_scc1 L_slow")
    A(f"v_lshrrev_b32 v{vW}, 6, v0")
    A(f"v_and_b32 v{vLane}, 63, v0")
    A(f"v_readfirstlane_b32 s{sW}, v{vW}")
    A(f"s_mov_b32 s{s768}, 768")
    A.c("lane k < 16: vGb = global 256-token block visited at sequence position k")
    A(f"s_mul_i32 s{sJ}, s2, 43691"); A(f"s_lshr_b32 s{sJ}, s{sJ}, 17")
    A(f"s_mul_i32 s{sP}, s{sJ}, 3"); A(f"s_sub_u32 s{sP}, s2, s{sP}")
    A(f"s_cmp_eq_u32 s2, 255"); A(f"s_cselect_b32 s{sC2}, 16, 11")
    A(f"s_cmp_eq_u32 s{sP}, 1"); A(f"s_cselect_b32 s{sC1}, 5, s{sC2}"); A(f"s_cselect_b32 s{sC2}, 10, s{sC2}")
    if lead: A(f"s_cselect_b32 s{sLead}, {-2*lead}, {lead}")
    A(f"s_mul_i32 s{sT0}, s{sP}, 21"); A(f"s_add_u32 s{sT0}, s{sT0}, 1"); A(f"s_lshr_b32 s{sT0}, s{sT0}, 1")
    A(f"s_lshl_b32 s{sT1}, s{sJ}, 5"); A(f"s_add_u32 s{sBase}, s{sT0}, s{sT1}")
    A(f"s_mul_i32 s{sT0}, s{sP}, 11"); A(f"s_lshr_b32 s{sT0}, s{sT0}, 1")
    A(f"s_lshl_b32 s{sT1}, s{sJ}, 4"); A(f"s_add_u32 s{sT0}, s{sT0}, s{sT1}")
    A(f"s_add_u32 s{sT0}, s{sT0}, {171*16}"); A(f"s_sub_u32 s{sT0}, s{sT0}, s{sC2}")
    A(f"v_cmp_le_u32 vcc, s{sC2}, v{vLane}")
    A(f"v_add_u32 v{vT1}, s{sBase}, v{vLane}")
    A(f"v_add_u32 v{vT2}, s{sT0}, v{vLane}")
    A(f"v_cndmask_b32 v{vGb}, v{vT1}, v{vT2}, vcc")
    A(f"s_cmp_eq_u32 s{sW}, 4")
    A("s_cbranch_scc0 L_roles")

    lT1, lIsB, lPart, lAddr, lN, lTa, lTb, lLin, lRep, lVal = range(8, 18)
    def layout(kind):
        if kind == "K":
            A(f"v_bfe_u32 v{lT1}, v{vLane}, 2, 1"); A(f"v_bfe_u32 v{lIsB}, v{vLane}, 3, 1")
            A(f"v_lshrrev_b32 v{lTa}, 4, v{vLane}"); A(f"v_and_b32 v{lTb}, 3, v{vLane}")
            A(f"v_lshl_add_u32 v{lPart}, v{lTa}, 2, v{lTb}")
        else:
            A(f"v_bfe_u32 v{lT1}, v{vLane}, 4, 1"); A(f"v_lshrrev_b32 v{lIsB}, 5, v{vLane}")
            A(f"v_and_b32 v{lPart}, 15, v{vLane}")
        A(f"v_mul_u32_u24 v{lTa}, {43*768}, v{lIsB}"); A(f"v_lshl_add_u32 v{lPart}, v{lPart}, 4, v{lTa}")
    sOff, sAcc, sThr, s1536 = sBase, sInt, sLev, sProg
    lThr, lThrA, lT43 = lLin, lRep, lVal
    def layout2(kind):
        layout(kind)
        A(f"v_add_u32 v{lT43}, 43, v{lT1}")
        A(f"v_sub_u32 v{lIsB}, 43, v{lIsB}")
        A(f"v_mad_u32_u24 v{lAddr}, v{lT1}, s{s768}, v{lPart}")
    if prio: A(f"s_setprio {prio}")
    layout2("K")
    A(f"s_mov_b32 s{sC}, 0"); A(f"s_mov_b32 m0, {L_RING}"); A(f"s_movk_i32 s{s1536}, 1536")
    A(f"s_mul_i32 s{sOff}, s{sBase}, {256*768}")
    A(f"s_mov_b32 s{sThr}, {int(thr0)}"); A(f"s_mov_b32 s{sAcc}, 0")
    A(f"v_mov_b32 v{lThr}, {int(thr0*256)}"); A(f"v_mov_b32 v{lThrA}, {L_THR}")
    A(f"ds_write_b32 v{lThrA}, v{lThr}")
    A("s_waitcnt lgkmcnt(0)")
    if stamp: A("s_memrealtime s[92:93]")
    srd(SRD_L, 6, KV_BYTES)
    A.c("one chain per pass; the entry point sets the window; the next chain's lane offsets are formed between the loads")
    for n in range(lo, 22):
        A.label(f"L_lw{n}")
        A(f"s_waitcnt vmcnt({n})")
    A(f"buffer_load_dwordx4 v{lAddr}, s[{SRD_L}:{SRD_L+3}], s{sOff} offen nt lds")
    A(f"s_add_u32 m0, m0, s{s768}")
    A(f"s_add_u32 s{sC}, s{sC}, 1")
    A(f"s_and_b32 s{sT0}, s{sC}, 63")
    A(f"v_lshl_add_u32 v{lN}, s{sT0}, 1, v{lT1}")
    A(f"v_cmp_le_u32 vcc, 43, v{lN}")
    A(f"buffer_load_dwordx4 v{lAddr}, s[{SRD_L}:{SRD_L+3}], s{sOff} offen offset:256 nt lds")
    A(f"s_add_u32 m0, m0, s{s768}")
    A(f"v_cndmask_b32 v{lTa}, v{lT1}, v{lT43}, vcc")
    A(f"v_cmp_le_u32 vcc, 86, v{lN}")
    A(f"v_add_u32 v{lTb}, v{lTa}, v{lIsB}")
    A(f"buffer_load_dwordx4 v{lAddr}, s[{SRD_L}:{SRD_L+3}], s{sOff} offen offset:512 nt lds")
    A(f"s_add_u32 m0, m0, s{s1536}")
    A(f"s_add_u32 s{sOff}, s{sOff}, s{s1536}")
    A(f"v_cndmask_b32 v{lTa}, v{lTa}, v{lTb}, vcc")
    A(f"v_mad_u32_u24 v{lAddr}, v{lTa}, s{s768}, v{lPart}")
    A(f"s_and_b32 s{sT1}, s{sC}, 7")
    if inl:
        A("s_cbranch_scc1 L_lad")
    else:
        A("s_cbranch_scc0 L_lunit")
    def ladder():
        A.label("L_lad")
        order = list(range(21, lo-1, -1)) if desc else sorted(range(lo, 22), key=lambda n: abs(n - thr0 - 0.25))
        for n in order[:-1]:
            A(f"s_cmp_eq_u32 s{sThr}, {n}")
            A(f"s_cbranch_scc1 L_lw{n}")
        A(f"s_branch L_lw{order[-1]}")
    if not inl: ladder()
    A.label("L_lunit")
    A.c("unit boundary: release the previous unit, pick up the window size")
    A(f"s_cmp_le_u32 s{sC}, 16")
    A("s_cbranch_scc1 L_lfirst")
    A.label("L_lbar")
    A("s_barrier")
    A.label("L_lnobar")
    A("s_waitcnt lgkmcnt(0)")
    A(f"v_readfirstlane_b32 s{sT1}, v{lThr}")
    A(f"ds_read_b32 v{lThr}, v{lThrA}")
    A(f"s_cmp_eq_u32 m0, {L_RING + 73728}")
    A(f"s_cselect_b32 m0, {L_RING}, m0")
    A(f"s_and_b32 s{sAcc}, s{sAcc}, 255")
    A(f"s_add_u32 s{sAcc}, s{sAcc}, s{sT1}")
    A(f"s_lshr_b32 s{sThr}, s{sAcc}, 8")
    A(f"s_cmp_eq_u32 s{sT0}, 0")
    if inl:
        A("s_cbranch_scc1 L_lblock")
        ladder()
    else:
        A("s_cbranch_scc0 L_lad")
    A.label("L_lblock")
    A(f"s_bfe_u32 s{sT0}, s{sC}, {6 | (4 << 16)}")
    A(f"v_readlane_b32 s{sOff}, v{vGb}, s{sT0}")
    A("s_nop 3")
    A(f"s_mul_i32 s{sOff}, s{sOff}, {256*768}")
    A(f"s_cmp_eq_u32 s{sT0}, 0")
    A("s_cbranch_scc0 L_lad")
    A(f"s_cmp_eq_u32 s{sC}, 2048")
    A("s_cbranch_scc1 L_ldone")
    A(f"s_mov_b32 s{SRD_L}, s8"); A(f"s_and_b32 s{SRD_L+1}, s9, 0xffff")
    layout2("V")
    A("s_branch L_lad")
    A.label("L_lfirst")
    A(f"s_cmp_eq_u32 s{sC}, 8")
    A("s_cbranch_scc1 L_lnobar")
    A("s_barrier")
    A("s_branch L_lbar")
    A.label("L_ldone")
    A("s_waitcnt vmcnt(0)")
    A("s_barrier")
    if stamp: A("s_branch L_fin")
    else: A("s_endpgm")

    A.label("L_roles")
    A(f"s_cmp_lt_u32 s{sW}, 4")
    A("s_cbranch_scc1 L_consumer")
    A(f"s_cmp_eq_u32 s{sW}, 5")
    A("s_cbranch_scc1 L_finisher")

    pRep, pVal, pThrA, pLog = 8, 9, 10, 20
    if warm:
        A.c("a few workgroups pull the code into their L2 ahead of its first use")
        A(f"s_sub_u32 s{sT0}, s2, 8")
        A(f"s_cmp_lt_u32 s{sT0}, {warm}")
        A("s_cbranch_scc0 L_pw")
        A(f"s_getpc_b64 s[{SRD_Q}:{SRD_Q+1}]")
        A.label("L_pc")
        A(f"s_and_b32 s{SRD_Q+1}, s{SRD_Q+1}, 0xffff")
        A(f"s_mov_b32 s{SRD_Q+2}, L_end - L_pc"); A(f"s_mov_b32 s{SRD_Q+3}, 0x20000")
        A(f"v_lshlrev_b32 v{pVal}, 7, v{vLane}")
        for k in range(4):
            A(f"s_movk_i32 s{sT0}, {k*8192}")
            A(f"buffer_load_dword v{12+k}, v{pVal}, s[{SRD_Q}:{SRD_Q+3}], s{sT0} offen")
        A.label("L_pw")
    A("s_waitcnt lgkmcnt(0)")
    srd(SRD_D, 22, FB_END)
    A(f"s_mov_b32 s{sProg}, 0")
    A(f"s_add_u32 s{sFbP}, s22, {WS_FB}"); A(f"s_addc_u32 s{sFbP+1}, s23, 0")
    A(f"s_lshl_b32 s{sT1}, s2, 2"); A(f"s_add_u32 s{sT1}, s{sT1}, {WS_FB}")
    A(f"v_mov_b32 v{pRep}, s{sT1}"); A(f"v_mov_b32 v{pThrA}, {L_THR}")
    A(f"s_mov_b32 s{sNow}, 0")
    A("s_mov_b64 exec, 1")
    A("s_barrier")
    sPrev, sOn = sSlot, sPar
    A(f"s_mov_b32 s{sOn}, 0")
    A.label("L_pace")
    for u in range(per):
        A("s_barrier")
        if u == 0:
            A(f"s_mov_b32 s{sPrev}, s{sNow}")
            A(f"s_memrealtime s[{sNow}:{sNow+1}]")
            A("s_waitcnt lgkmcnt(0)")
            if stamp == 5:
                A(f"s_lshr_b32 m0, s{sProg}, {8 + (8//per).bit_length() - 1}")
                A(f"s_sub_u32 s{sT0}, s{sNow}, s80")
                A(f"v_writelane_b32 v{pLog}, s{sT0}, m0")
                A("s_add_u32 m0, m0, 32"); A("s_nop 0")
                A(f"v_writelane_b32 v{pLog}, s{sLev}, m0")
            if lead:
                A(f"s_lshr_b32 s{sT0}, s{sProg}, 8")
                A(f"s_sub_i32 s{sT0}, s{sT0}, {lead0}")
                A(f"s_max_i32 s{sT0}, s{sT0}, 0")
                A(f"s_mul_i32 s{sT0}, s{sT0}, s{sLead}")
                A(f"s_add_u32 s{sNow}, s{sNow}, s{sT0}")
            A.c("window from the lead over the reporters in the previous period")
            A(f"s_cmp_eq_u32 s{sOn}, 0")
            A("s_cbranch_scc1 L_pnext")
            A(f"s_mov_b32 s{sT0}, 0")
            for k in range(8):
                A(f"s_sub_i32 s{sT1}, s{sRef+k}, s{sPrev}")
                A(f"s_add_i32 s{sT2}, s{sT1}, {TAGW}")
                A(f"s_cmp_lt_u32 s{sT2}, {2*TAGW}")
                A(f"s_cselect_b32 s{sT1}, s{sT1}, {late}")
                A(f"s_add_i32 s{sT0}, s{sT0}, s{sT1}")
            A(f"s_mul_i32 s{sT0}, s{sT0}, s{sOn}")
            A(f"s_ashr_i32 s{sT0}, s{sT0}, 5")
            A(f"s_sub_i32 s{sT0}, {int(thr0*256)}, s{sT0}")
            if boost:
                A(f"s_cmp_ge_u32 s{sProg}, {boost0*256}")
                A(f"s_cselect_b32 s{sT1}, {int(boost*256)}, 0")
                A(f"s_add_i32 s{sT0}, s{sT0}, s{sT1}")
            A(f"s_max_i32 s{sT0}, s{sT0}, {lo*256}")
            A(f"s_min_i32 s{sLev}, s{sT0}, {21*256}")
            A(f"v_mov_b32 v{pVal}, s{sLev}")
            A(f"ds_write_b32 v{pThrA}, v{pVal}")
            A.label("L_pnext")
            A.c("gain of this period (0: period not used)")
            A(f"s_and_b32 s{sT0}, s{sProg}, {(skip-1)*256}")
            A(f"s_cselect_b32 s{sOn}, 0, {gain}")
            if gain2:
                A(f"s_cmp_ge_u32 s{sProg}, {int(g2at*256/per)*256}")
                A(f"s_cselect_b32 s{sOn}, {gain2}, s{sOn}")
            A(f"s_cmp_eq_u32 s{sOn}, 0")
            A(f"s_cselect_b32 s{sT0}, 8, s2")
            A(f"s_cmp_lt_u32 s{sT0}, 8")
            A("s_cbranch_scc0 L_pnorep")
            A(f"v_mov_b32 v{pVal+2}, s{sNow}")
            A(f"buffer_store_dword v{pVal+2}, v{pRep}, s[{SRD_D}:{SRD_D+3}], s{sProg} offen sc1")
            A.label("L_pnorep")
        if u == per - 1:
            A(f"s_cmp_eq_u32 s{sOn}, 0")
            A("s_cbranch_scc1 L_pnold")
            A(f"s_load_dwordx8 s[{sRef}:{sRef+7}], s[{sFbP}:{sFbP+1}], s{sProg}")
            A.label("L_pnold")
    A(f"s_add_u32 s{sProg}, s{sProg}, 256")
    A(f"s_cmp_lt_u32 s{sProg}, {256//per*256}")
    A("s_cbranch_scc1 L_pace")
    A("s_waitcnt lgkmcnt(0)")
    A("s_mov_b64 exec, -1")
    if stamp == 5:
        srd(76, 22, (9 << 20) + 65536)
        A(f"v_lshlrev_b32 v21, 2, v{vLane}")
        A(f"s_lshl_b32 s{sT0}, s2, 8"); A(f"s_add_u32 s{sT0}, s{sT0}, {9 << 20}")
        A(f"buffer_store_dword v{pLog}, v21, s[76:79], s{sT0} offen")
    if stamp: A("s_branch L_fin")
    else: A("s_endpgm")

    A.label("L_consumer")
    A.c("q fragments: lane = kg*16 + h'*4 + qi")
    A(f"v_lshrrev_b32 v{vT1}, 2, v{vLane}")
    A(f"v_lshlrev_b32 v{vT1}, 3, v{vT1}")
    A(f"v_and_b32 v{vT2}, 3, v{vLane}")
    A(f"v_mul_u32_u24 v{vT3}, 384, v{vT2}")
    A(f"v_add_u32 v{vLa}, v{vT1}, v{vT3}")
    A(f"v_lshlrev_b32 v{vRd}, 4, v{vLane}")
    A(f"s_mul_i32 s{sPar}, s{sW}, 3072")
    A(f"s_add_u32 s{sPar}, s{sPar}, {L_PAR + 3072}")
    for k in range(4):
        A(f"s_add_u32 s{sT0}, s{sW}, {4*k}")
        A(f"v_readlane_b32 s{sRef+k}, v{vGb}, s{sT0}")
    A(f"v_readlane_b32 s{sRef+4}, v{vGb}, 0")
    A(f"s_min_u32 s{sT0}, s{sC1}, 15")
    A(f"v_readlane_b32 s{sRef+5}, v{vGb}, s{sT0}")
    A(f"v_readlane_b32 s{sRef+6}, v{vGb}, 15")
    A("s_waitcnt lgkmcnt(0)")
    srd(SRD_KZ, 12, 256*24576); srd(SRD_KS, 10, 256*24576)
    if stamp == 3: A("s_memrealtime s[92:93]")
    def par_dma(ks):
        A("s_mov_b32 exec_hi, 0xffff")
        for k in ks:
            A(f"s_add_u32 m0, s{sPar}, {k*4*3072}")
            A(f"s_mul_i32 s{sT0}, s{sRef+k}, 1536")
            for a, sr in enumerate((SRD_KZ, SRD_KS)):
                A(f"buffer_load_dwordx4 v{vRd}, s[{sr}:{sr+3}], s{sT0} offen nt lds")
                A(f"buffer_load_dwordx4 v{vRd}, s[{sr}:{sr+3}], s{sT0} offen offset:768 nt lds")
                if a == 0:
                    A("s_add_u32 m0, m0, 1536"); A("s_nop 0")
        A("s_mov_b32 exec_hi, -1")
    def vsz_dma():
        srd(SRD_VS, 14, 256*8192); srd(SRD_VZ, 16, 256*8192)
        A("s_mov_b32 exec_hi, 0")
        A(f"s_lshl_b32 s{sT2}, s{sW}, 10")
        for k in range(4):
            A(f"s_add_u32 m0, s{sT2}, {L_VSZ + k*4096}")
            A(f"s_lshl_b32 s{sT0}, s{sRef+k}, 9")
            A(f"buffer_load_dwordx4 v{vRd}, s[{SRD_VS}:{SRD_VS+3}], s{sT0} offen nt lds")
            A("s_add_u32 m0, m0, 512"); A("s_nop 0")
            A(f"buffer_load_dwordx4 v{vRd}, s[{SRD_VZ}:{SRD_VZ+3}], s{sT0} offen nt lds")
        A("s_mov_b32 exec_hi, -1")
    def q_loads(rs_):
        for r in rs_:
            A(f"s_lshr_b32 s{sT0}, s{sRef+4+r}, 4")
            A(f"s_mul_i32 s{sT0}, s{sT0}, 1536")
            for j in range(3):
                A(f"buffer_load_dwordx2 {vr(vQ + r*6 + j*2, 2)}, v{vLa}, s[{SRD_Q}:{SRD_Q+3}], s{sT0} offen offset:{j*128} {qf}")
    par_dma(range(first))
    srd(SRD_Q, 4, 256*1536)
    q_loads([0])
    if stamp == 4: A("s_memrealtime s[92:93]")
    A(f"s_mov_b32 s{sLog2e}, {LOG2E:#x}"); A(f"s_mov_b32 s{sScale}, {SCALE:#x}")
    A(f"s_mov_b32 s{sHi}, 0xffff0000")
    A.c("K param LDS addresses: (tok>>6)*384 + (kg*4+h)*8")
    n0, isb, part = vX, vX+1, vX+2
    A(f"v_bfe_u32 v{n0}, v{vLane}, 2, 1"); A(f"v_lshl_add_u32 v{n0}, v{vW}, 2, v{n0}")
    A(f"v_bfe_u32 v{isb}, v{vLane}, 3, 1")
    A(f"v_lshrrev_b32 v{part}, 4, v{vLane}"); A(f"v_lshl_add_u32 v{part}, v{part}, 2, v{vT2}")
    A(f"v_lshlrev_b32 v{part}, 3, v{part}"); A(f"v_add_u32 v{part}, {L_PAR}, v{part}")
    A(f"s_movk_i32 s{sT0}, 384")
    for i in range(8):
        for e in range(2):
            d = vPar + 2*i + e
            A(f"v_add_u32 v{vT1}, {16*i + 2*e}, v{n0}")
            tok_of(d, vT1, isb, vT3, vT4)
            A(f"v_lshrrev_b32 v{d}, 6, v{d}")
            A(f"v_mad_u32_u24 v{d}, v{d}, s{sT0}, v{part}")
    A.c("P layout: lane = t*16 + b*4 + qi ; n = 64g + 16b + 4w + 2e + (t&1)")
    A(f"v_bfe_u32 v{n0}, v{vLane}, 4, 1"); A(f"v_lshl_add_u32 v{n0}, v{vW}, 2, v{n0}")
    A(f"v_bfe_u32 v{vT1}, v{vLane}, 2, 2"); A(f"v_lshl_add_u32 v{n0}, v{vT1}, 4, v{n0}")
    A(f"v_lshrrev_b32 v{isb}, 5, v{vLane}")
    A(f"s_mov_b32 s{sT0}, {L_VSZ}")
    for g in range(2):
        for e in range(2):
            d = vPa + 2*g + e
            A(f"v_add_u32 v{vT1}, {64*g + 2*e}, v{n0}")
            tok_of(d, vT1, isb, vT3, vT4)
            A(f"v_lshl_add_u32 v{d}, v{d}, 1, s{sT0}")
    A(f"v_lshlrev_b32 v{vLogA}, 2, v{vLane}")
    A(f"v_lshl_add_u32 v{vLogA}, v{vW}, 9, v{vLogA}")
    A(f"v_add_u32 v{vLogA}, {L_PAR}, v{vLogA}")
    A(f"v_mul_u32_u24 v{vRing}, 6144, v{vW}")
    A(f"v_lshl_add_u32 v{vRing}, v{vLane}, 4, v{vRing}")
    A(f"v_mov_b32 v{vM}, 0xff800000")
    par_dma(range(first, 4))
    vsz_dma()
    q_loads([1, 2])
    A(f"s_mov_b32 s{sRnd}, 0")
    A(f"s_mov_b32 s{sBlk}, 0"); A(f"s_mov_b32 s{sSlot}, {L_RING}"); A(f"s_movk_i32 s{sPar}, 3072")
    if stamp == 4: A("s_memrealtime s[94:95]")
    A(f"s_waitcnt vmcnt({4*(4-first) + 14})")
    if stamp == 3: A("s_memrealtime s[94:95]")
    A("s_barrier")
    if stamp and stamp not in (3, 4): A("s_memrealtime s[92:93]")

    def par_reads(i):
        out = [f"v_add_u32 v{vPad+e}, s{sPar}, v{vPar+2*i+e}" for e in range(2)]
        for e in range(2):
            for j in range(3):
                out.append(f"ds_read_b64 {vr(vRaw+e*12+j*4, 2)}, v{vPad+e} offset:{j*128}")
                out.append(f"ds_read_b64 {vr(vRaw+e*12+j*4+2, 2)}, v{vPad+e} offset:{1536 + j*128}")
        return out
    def par_unpack():
        A("s_waitcnt lgkmcnt(0)")
        for k in range(6):
            for dst, src in ((vZ+4*k, vRaw+4*k), (vS+4*k, vRaw+4*k+2)):
                for h in range(2):
                    A(f"v_lshlrev_b32 v{dst+2*h}, 16, v{src+h}")
                    A(f"v_and_b32 v{dst+2*h+1}, s{sHi}, v{src+h}")
    def fetch_unit():
        A(f"v_add_u32 v{vRd}, s{sSlot}, v{vRing}")
        A(f"s_add_u32 s{sSlot}, s{sSlot}, 24576")
        A(f"s_cmp_eq_u32 s{sSlot}, {L_RING + 73728}")
        A(f"s_cselect_b32 s{sSlot}, {L_RING}, s{sSlot}")
        A("s_barrier")
        if nocomp: return
        for k in range(6):
            A(f"ds_read_b128 {vr(vX+4*k, 4)}, v{vRd} offset:{k*1024}")
    def dpp_sum(e, b):
        D = vD + 4*e
        L = vLa if e == 0 else vLb
        t = vT1 + e
        return [f"v_add_f32_dpp v{t}, v{D+(b+1) % 4}, v{D+b} row_ror:12 row_mask:0xf bank_mask:0xf",
                f"v_add_f32_dpp v{t}, v{D+(b+2) % 4}, v{t} row_ror:8 row_mask:0xf bank_mask:0xf",
                f"v_add_f32_dpp v{L}, v{D+(b+3) % 4}, v{t} row_ror:4 row_mask:0xf bank_mask:{1 << b:#x}"]

    for x in par_reads(0): A(x)
    par_unpack()
    A.label("L_kblk")
    for i in range(8):
        b = i % 4
        A.c(f"K step {i}")
        if i == 4: A("s_waitcnt vmcnt(0)")
        fetch_unit()
        if nocomp: continue
        for e in range(2):
            o = e*12
            A(f"s_waitcnt lgkmcnt({3 - 3*e})")
            for k in range(12): A(f"v_cvt_f32_i32 v{vX+o+k}, v{vX+o+k}")
            if pk:
                for k in range(0, 12, 2): A(f"v_pk_add_f32 {vr(vX+o+k, 2)}, {vr(vX+o+k, 2)}, {vr(vZ+o+k, 2)} neg_lo:[0,1] neg_hi:[0,1]")
            else:
                for k in range(12): A(f"v_sub_f32 v{vX+o+k}, v{vX+o+k}, v{vZ+o+k}")
            for k in range(12): A(f"v_cvt_pk_bf16_f32 v{vX+o+k}, 0, v{vX+o+k}")
            if pk:
                for k in range(0, 12, 2): A(f"v_pk_mul_f32 {vr(vX+o+k, 2)}, {vr(vX+o+k, 2)}, {vr(vS+o+k, 2)}")
            else:
                for k in range(12): A(f"v_mul_f32 v{vX+o+k}, v{vX+o+k}, v{vS+o+k}")
            packs = [f"v_cvt_pk_bf16_f32 v{vKb+e*6+k}, v{vX+o+2*k}, v{vX+o+2*k+1}" for k in range(6)]
            if e == 1:
                d = dpp_sum(0, b)
                packs = packs[0:2] + d[0:1] + packs[2:4] + d[1:2] + packs[4:6] + d[2:3]
            for x in packs: A(x)
            D = vr(vD+4*e, 4)
            for j in range(3):
                A(f"v_mfma_f32_16x16x16_bf16 {D}, {vr(vKb+e*6+2*j, 2)}, {vr(vQ+2*j, 2)}, {'0' if j == 0 else D}")
        if i == 7: A(f"s_add_u32 s{sPar}, s{sPar}, 3072")
        pr = par_reads((i+1) % 8)
        d = dpp_sum(1, b)
        for x in pr[:9] + d[0:1] + pr[9:11] + d[1:2] + pr[11:14] + d[2:3]: A(x)
        if b == 3:
            A(f"v_cvt_pk_bf16_f32 v{vT1}, 0, v{vLa}")
            A(f"v_cvt_pk_bf16_f32 v{vT2}, 0, v{vLb}")
            A(f"v_mul_f32 v{vT1}, s{sScale}, v{vT1}")
            A(f"v_mul_f32 v{vT2}, s{sScale}, v{vT2}")
            A(f"v_cvt_pk_bf16_f32 v{vT3}, v{vT1}, v{vT2}")
            A(f"v_max3_f32 v{vM}, v{vM}, v{vT1}, v{vT2}")
            A(f"ds_write_b32 v{vLogA}, v{vT3} offset:{(i//4)*256}")
        par_unpack()
    def round_end_test(loop):
        A(f"s_add_u32 s{sBlk}, s{sBlk}, 1")
        A(f"s_cmp_eq_u32 s{sBlk}, s{sC1}")
        A(f"s_cbranch_scc1 {loop}_end")
        A(f"s_cmp_eq_u32 s{sBlk}, s{sC2}")
        A(f"s_cbranch_scc1 {loop}_end")
        A(f"s_cmp_lt_u32 s{sBlk}, 16")
        A(f"s_cbranch_scc1 {loop}")
        A.label(f"{loop}_end")
    A(f"v_add_u32 v{vLogA}, 3072, v{vLogA}")
    round_end_test("L_kblk")
    A.c("end of a K round: park the per-lane max, rotate q")
    for r in range(3):
        A(f"s_cmp_eq_u32 s{sRnd}, {r}")
        A("s_cselect_b64 vcc, -1, 0")
        A(f"v_cndmask_b32 v{vMs+r}, v{vMs+r}, v{vM}, vcc")
    A(f"s_add_u32 s{sRnd}, s{sRnd}, 1")
    for k in range(12): A(f"v_mov_b32 v{vQ+k}, v{vQ+6+k}")
    A(f"v_mov_b32 v{vM}, 0xff800000")
    A(f"s_cmp_lt_u32 s{sBlk}, 16")
    A("s_cbranch_scc1 L_kblk")

    if stamp and stamp not in (3, 4): A("s_memrealtime s[94:95]")
    def p_reads(g):
        return [f"v_add_u32 v{vSZ}, s{sPar}, v{vPa+2*g}",
                f"v_add_u32 v{vSZ+1}, s{sPar}, v{vPa+2*g+1}",
                f"ds_read_b32 v{vLg}, v{vLogA} offset:{g*256}",
                f"ds_read_u16 v{vSZ+2}, v{vSZ} offset:512",
                f"ds_read_u16 v{vSZ+3}, v{vSZ+1} offset:512",
                f"ds_read_u16 v{vSZ}, v{vSZ}",
                f"ds_read_u16 v{vSZ+1}, v{vSZ+1}"]
    def xlane(op, r, t):
        A("s_nop 1")
        A(f"{op}_dpp v{r}, v{r}, v{r} row_ror:4 row_mask:0xf bank_mask:0xf")
        A("s_nop 1")
        A(f"{op}_dpp v{r}, v{r}, v{r} row_ror:8 row_mask:0xf bank_mask:0xf")
        for sw in ("v_permlane16_swap_b32", "v_permlane32_swap_b32"):
            A(f"v_mov_b32 v{t}, v{r}")
            A("s_nop 1")
            A(f"{sw} v{r}, v{t}")
            A(f"{op} v{r}, v{r}, v{t}")
    A(f"v_subrev_u32 v{vLogA}, {16*3072}, v{vLogA}")
    A(f"s_mov_b32 s{sPar}, 0")
    for x in p_reads(0): A(x)
    for k in range(4): A(f"v_mov_b32 v{vP+k}, 0")
    A(f"s_mov_b32 s{sBlk}, 0")
    if stamp: A("s_waitcnt lgkmcnt(0)")

    A.label("L_vround")
    A(f"v_mov_b32 v{vM}, v{vMs}"); A(f"v_mov_b32 v{vMs}, v{vMs+1}"); A(f"v_mov_b32 v{vMs+1}, v{vMs+2}")
    for k in range(48): A(f"v_mov_b32 v{vAcc+k}, 0")
    A(f"v_mov_b32 v{vSum}, 0"); A(f"v_mov_b32 v{vCor}, 0")
    xlane("v_max_f32", vM, vT1)
    A(f"v_cvt_pk_bf16_f32 v{vM}, 0, v{vM}")
    A(f"v_mul_f32 v{vM}, s{sLog2e}, v{vM}")
    A.label("L_vblk")
    for i in range(8):
        b, g = i % 4, i//4
        A.c(f"V step {i}")
        fetch_unit()
        if nocomp: continue
        if b == 0:
            E = vE
            for x in ["s_waitcnt lgkmcnt(6)",
                      f"v_lshlrev_b32 v{E}, 16, v{vLg}",
                      f"v_and_b32 v{E+1}, s{sHi}, v{vLg}",
                      f"v_fma_f32 v{E}, v{E}, s{sLog2e}, -v{vM}",
                      f"v_fma_f32 v{E+1}, v{E+1}, s{sLog2e}, -v{vM}",
                      f"v_exp_f32 v{E}, v{E}",
                      f"v_exp_f32 v{E+1}, v{E+1}",
                      f"v_lshlrev_b32 v{E+2}, 16, v{vSZ}",
                      f"v_lshlrev_b32 v{E+3}, 16, v{vSZ+1}",
                      f"v_mul_f32 v{E+2}, v{E}, v{E+2}",
                      f"v_mul_f32 v{E+3}, v{E+1}, v{E+3}",
                      f"v_add_f32 v{vSum}, v{vSum}, v{E}",
                      f"v_cvt_pk_bf16_f32 v{E+2}, v{E+2}, v{E+3}",
                      f"v_add_f32 v{vSum}, v{vSum}, v{E+1}",
                      f"v_lshlrev_b32 v{E+4}, 16, v{vSZ+2}",
                      f"v_lshlrev_b32 v{E+5}, 16, v{vSZ+3}",
                      f"v_lshlrev_b32 v{E}, 16, v{E+2}",
                      f"v_and_b32 v{E+1}, s{sHi}, v{E+2}",
                      f"v_fmac_f32 v{vCor}, v{E}, v{E+4}",
                      f"v_fmac_f32 v{vCor}, v{E+1}, v{E+5}"]: A(x)
            for k in range(4):
                A(f"v_mov_b32_dpp v{vP+k}, v{E+2} quad_perm:[0,1,2,3] row_mask:0xf bank_mask:{1 << k:#x}")
        A("s_waitcnt lgkmcnt(3)")
        for k in range(12): A(f"v_cvt_f32_i32 v{vX+k}, v{vX+k}")
        A("s_waitcnt lgkmcnt(0)")
        for k in range(12, 24): A(f"v_cvt_f32_i32 v{vX+k}, v{vX+k}")
        for k in range(12): A(f"v_cvt_pk_bf16_f32 v{vB+k*4+b}, v{vX+k}, v{vX+12+k}")
        if b == 0:
            if g == 1:
                A(f"v_add_u32 v{vLogA}, 3072, v{vLogA}")
                A(f"s_add_u32 s{sPar}, s{sPar}, 1024")
            for x in p_reads(1-g): A(x)
        if b == 3:
            for k in range(12):
                A(f"v_mfma_f32_16x16x32_bf16 {vr(vAcc+4*k, 4)}, {vr(vP, 4)}, {vr(vB+4*k, 4)}, {vr(vAcc+4*k, 4)}")
    round_end_test("L_vblk")

    A.c("reduce over lane groups, park O and (m, l, c) in LDS")
    xlane("v_add_f32", vSum, vT1)
    xlane("v_add_f32", vCor, vT1)
    A(f"v_mov_b32 v{vX}, v{vM}"); A(f"v_mov_b32 v{vX+1}, v{vSum}"); A(f"v_mov_b32 v{vX+2}, v{vCor}"); A(f"v_mov_b32 v{vX+3}, 0")
    A(f"v_and_b32 v{vT2}, 3, v{vLane}")
    A(f"v_lshl_add_u32 v{vT2}, v{vW}, 2, v{vT2}")
    A(f"v_lshlrev_b32 v{vT2}, 4, v{vT2}")
    A(f"v_add_u32 v{vT2}, {L_STAT}, v{vT2}")
    A(f"ds_write_b128 v{vT2}, {vr(vX, 4)}")
    for k in range(12):
        a = vAcc + 4*k
        A(f"v_permlane32_swap_b32 v{a}, v{a+2}")
        A(f"v_permlane32_swap_b32 v{a+1}, v{a+3}")
    for k in range(12):
        a = vAcc + 4*k
        A(f"v_add_f32 v{a}, v{a}, v{a+2}")
        A(f"v_add_f32 v{a+1}, v{a+1}, v{a+3}")
    A("s_nop 1")
    for k in range(12):
        a = vAcc + 4*k
        A(f"v_permlane16_swap_b32 v{a}, v{a+1}")
    for k in range(12):
        a = vAcc + 4*k
        A(f"v_add_f32 v{vX+4+k}, v{a}, v{a+1}")
    A(f"v_lshrrev_b32 v{vT1}, 4, v{vLane}")
    A(f"v_mul_u32_u24 v{vT1}, 768, v{vT1}")
    A(f"v_and_b32 v{vT2}, 15, v{vLane}")
    A(f"v_lshl_add_u32 v{vT1}, v{vT2}, 4, v{vT1}")
    A(f"v_mul_u32_u24 v{vT2}, 3072, v{vW}")
    A(f"s_mov_b32 s{sT0}, {L_SLOT}")
    A(f"v_add3_u32 v{vT2}, v{vT2}, v{vT1}, s{sT0}")
    for j in range(3):
        A(f"ds_write_b128 v{vT2}, {vr(vX+4+4*j, 4)} offset:{j*256}")
    A("s_waitcnt lgkmcnt(0)")
    A(f"s_cmp_lt_u32 s{sBlk}, 16")
    A("s_cbranch_scc1 L_vround")
    A("s_barrier")
    A("s_branch L_fin")

    A.label("L_finisher")
    fOff, fLin, fTag, fM, fL, fT, fSta, fH, fHa = 8, 9, 10, 11, 12, 13, 14, 15, 7
    IMG = 4352
    fSt, fO = 16, 32
    R = [80, 100, 120]
    E = [140, 160]
    sN, sTag, sDone, sIa, sIb, sH1 = sM, sProg, sLev, sC, sSlot, sPar
    A(f"v_lshrrev_b32 v{fOff}, 4, v{vLane}")
    A(f"v_mul_u32_u24 v{fOff}, 768, v{fOff}")
    A(f"v_and_b32 v{fT}, 15, v{vLane}")
    A(f"v_lshl_add_u32 v{fOff}, v{fT}, 4, v{fOff}")
    A(f"v_lshlrev_b32 v{fLin}, 4, v{vLane}")
    A(f"v_and_b32 v{fSta}, 48, v{vLane}")
    A(f"s_memrealtime s[{sNow}:{sNow+1}]")
    A("s_waitcnt lgkmcnt(0)")
    srd(SRD_O, 18, 256*1536); srd(SRD_D, 20, 256); srd(SRD_L, 22, 600*IMG)
    def claim_tag():
        A(f"s_or_b32 s{sTag}, s{sNow}, 1")
        A(f"v_mov_b32 v{fSt}, s{sTag}"); A(f"v_mov_b32 v{fSt+1}, 0")
        A("s_mov_b64 exec, 1")
        A(f"buffer_atomic_cmpswap {vr(fSt, 2)}, v{fLin}, s[{SRD_D}:{SRD_D+3}], 0 offen sc0 sc1")
        A("s_mov_b64 exec, -1")
        A("s_waitcnt vmcnt(0)")
        A(f"v_readfirstlane_b32 s{sT0}, v{fSt}")
        A("s_nop 3")
        A(f"s_cmp_eq_u32 s{sT0}, 0")
        A(f"s_cselect_b32 s{sTag}, s{sTag}, s{sT0}")
    A("s_cmp_eq_u32 s2, 0")
    A("s_cbranch_scc0 L_fk")
    claim_tag()
    A.label("L_fk")
    uid = [0]
    def barriers(n):
        uid[0] += 1
        A(f"s_movk_i32 s{sN}, {n}")
        A.label(f"L_fb{uid[0]}")
        A("s_barrier")
        A(f"s_sub_u32 s{sN}, s{sN}, 1")
        A(f"s_cmp_lg_u32 s{sN}, 0")
        A(f"s_cbranch_scc1 L_fb{uid[0]}")
    barriers(128)
    A(f"s_load_dword s{sTag}, s[20:21], 0")
    A("s_barrier")
    A("s_waitcnt lgkmcnt(0)")
    A(f"s_cmp_eq_u32 s{sTag}, 0")
    A("s_cbranch_scc0 L_ftag")
    claim_tag()
    A.label("L_ftag")
    A(f"v_mov_b32 v{fTag}, s{sTag}")
    A.c("image numbers: region-2 head j part p -> 3j+p; region-1 head h -> 256+2h (owner), 257+2h (helper)")
    A(f"s_mul_i32 s{sIa}, s{sJ}, {3*IMG}")
    A(f"s_lshr_b32 s{sH1}, s{sP}, 1"); A(f"s_lshl_b32 s{sT0}, s{sJ}, 1"); A(f"s_add_u32 s{sH1}, s{sH1}, s{sT0}")
    A(f"s_mul_i32 s{sIb}, s{sH1}, {2*IMG}"); A(f"s_add_u32 s{sIb}, s{sIb}, {256*IMG}")
    def combine(I):
        A(f"v_add_u32 v{fT}, {L_STAT}, v{fSta}")
        A(f"v_add_u32 v{fM}, {L_SLOT}, v{fOff}")
        for w in range(4): A(f"ds_read_b128 {vr(fSt+4*w, 4)}, v{fT} offset:{w*64}")
        for w in range(4):
            for j in range(3):
                A(f"ds_read_b128 {vr(fO+12*w+4*j, 4)}, v{fM} offset:{w*3072 + j*256}")
                if w == 2 and j == 2: A("s_waitcnt lgkmcnt(9)")
        A(f"v_max_f32 v{I+16}, v{fSt}, v{fSt+4}")
        A(f"v_max3_f32 v{I+16}, v{I+16}, v{fSt+8}, v{fSt+12}")
        for w in range(4): A(f"v_sub_f32 v{fSt+4*w}, v{fSt+4*w}, v{I+16}")
        for w in range(4): A(f"v_exp_f32 v{fSt+4*w}, v{fSt+4*w}")
        for k in range(5): A(f"v_mov_b32 v{I+4*k+3}, v{fTag}")
        A(f"v_mul_f32 v{I+17}, v{fSt}, v{fSt+1}")
        A(f"v_mul_f32 v{I+18}, v{fSt}, v{fSt+2}")
        for w in range(1, 4):
            A(f"v_fmac_f32 v{I+17}, v{fSt+4*w}, v{fSt+4*w+1}")
            A(f"v_fmac_f32 v{I+18}, v{fSt+4*w}, v{fSt+4*w+2}")
        for w in range(4):
            A(f"s_waitcnt lgkmcnt({9 - 3*w})")
            for k in range(12):
                o = I + (k//3)*4 + k % 3
                if w == 0: A(f"v_fma_f32 v{o}, v{fO+k}, v{fSt}, -v{I+18}")
                else:      A(f"v_fmac_f32 v{o}, v{fO+12*w+k}, v{fSt+4*w}")
    def load(I, sb, off):
        A(f"s_add_u32 s{sT0}, s{sb}, {off}"); A(f"s_add_u32 s{sT1}, s{sb}, {off + 4096}")
        A(f"buffer_load_dwordx4 {vr(I+16, 4)}, v{fSta}, s[{SRD_L}:{SRD_L+3}], s{sT1} offen sc1")
        for k in range(nst):
            A(f"buffer_load_dwordx4 {vr(I+4*k, 4)}, v{fLin}, s[{SRD_L}:{SRD_L+3}], s{sT0} offen offset:{k*1024} sc1")
    def publish(I, sb, off):
        A(f"s_add_u32 s{sT0}, s{sb}, {off}"); A(f"s_add_u32 s{sT1}, s{sb}, {off + 4096}")
        for k in range(nst):
            A(f"buffer_store_dwordx4 {vr(I+4*k, 4)}, v{fLin}, s[{SRD_L}:{SRD_L+3}], s{sT0} offen offset:{k*1024} sc1")
        A("s_mov_b32 exec_lo, 0x00010001"); A("s_mov_b32 exec_hi, 0x00010001")
        A(f"buffer_store_dwordx4 {vr(I+16, 4)}, v{fSta}, s[{SRD_L}:{SRD_L+3}], s{sT1} offen sc1")
        A("s_mov_b64 exec, -1")
    def check(imgs):
        g = [I+4*k+3 for I in imgs for k in list(range(nst)) + [4]]
        A(f"v_xor_b32 v{fT}, v{fTag}, v{g[0]}")
        for r in g[1:]:
            A(f"v_xor_b32 v{fM}, v{fTag}, v{r}")
            A(f"v_or_b32 v{fT}, v{fT}, v{fM}")
        A(f"v_cmp_ne_u32 vcc, 0, v{fT}")
        A("s_nop 4")
        A("s_cmp_eq_u64 vcc, 0")
    def merge(imgs, shead, add):
        n = len(imgs)
        F = fSt
        if n == 3: A(f"v_max3_f32 v{fM}, v{imgs[0]+16}, v{imgs[1]+16}, v{imgs[2]+16}")
        else:      A(f"v_max_f32 v{fM}, v{imgs[0]+16}, v{imgs[-1]+16}")
        for p in range(n): A(f"v_sub_f32 v{F+p}, v{imgs[p]+16}, v{fM}")
        for p in range(n): A(f"v_exp_f32 v{F+p}, v{F+p}")
        A(f"v_lshrrev_b32 v{fT}, 1, v{fOff}")
        A(f"v_mul_f32 v{fL}, v{F}, v{imgs[0]+17}")
        for p in range(1, n): A(f"v_fmac_f32 v{fL}, v{F+p}, v{imgs[p]+17}")
        A(f"v_rcp_f32 v{fL}, v{fL}")
        A(f"s_add_u32 s{sT0}, s{shead}, {add}")
        A(f"s_mul_i32 s{sT0}, s{sT0}, 1536")
        for p in range(n): A(f"v_mul_f32 v{F+p}, v{F+p}, v{fL}")
        for k in range(12):
            o = (k//3)*4 + k % 3
            A(f"v_mul_f32 v{fO+k}, v{imgs[0]+o}, v{F}")
            for p in range(1, n): A(f"v_fmac_f32 v{fO+k}, v{imgs[p]+o}, v{F+p}")
        for k in range(6): A(f"v_cvt_pk_bf16_f32 v{fO+12+k}, v{fO+2*k}, v{fO+2*k+1}")
        for j in range(3):
            A(f"buffer_store_dwordx2 {vr(fO+12+2*j, 2)}, v{fT}, s[{SRD_O}:{SRD_O+3}], s{sT0} offen offset:{j*128}")
    A("s_cmp_eq_u32 s2, 255")
    A("s_cbranch_scc1 L_fsolo")
    A(f"s_cmp_eq_u32 s{sP}, 1")
    A("s_cbranch_scc1 L_fmid")

    A.c("outer workgroup: owns a region-1 head, helps with the region-2 head")
    barriers(89)
    combine(E[0])
    barriers(39)
    if spec: load(E[1], sIb, IMG)
    A("s_barrier")
    A(f"s_cmp_eq_u32 s{sP}, 2")
    A("s_cbranch_scc1 L_fo2")
    for p in (0, 2):
        if p == 2: A.label("L_fo2")
        combine(R[p])
        if nofin: A("s_branch L_fin")
        publish(R[p], sIa, p*IMG)
        A(f"s_mov_b32 s{sDone}, 0")
        if spec:
            A(f"s_waitcnt vmcnt({nst+1})")
            check([E[1]])
            A(f"s_cbranch_scc0 L_fo3{p}")
            merge(E, sH1, 0)
            A(f"s_mov_b32 s{sDone}, 1")
            A("s_waitcnt vmcnt(0)")
            A(f"s_branch L_fo4{p}")
            A.label(f"L_fo3{p}")
        A("s_waitcnt vmcnt(0)")
        load(E[1], sIb, IMG)
        A.label(f"L_fo4{p}")
        load(R[2-p], sIa, (2-p)*IMG)
        if p == 0: A("s_branch L_fo5")
    A.label("L_fo5")
    load(R[1], sIa, IMG)
    A("s_waitcnt vmcnt(0)")
    check(R)
    A("s_cbranch_scc0 L_fo6")
    merge(R, sJ, 171)
    A.label("L_fo6")
    A(f"s_cmp_eq_u32 s{sDone}, 1")
    A("s_cbranch_scc1 L_fin")
    check([E[1]])
    A("s_cbranch_scc1 L_fo7")
    publish(E[0], sIb, 0)
    A("s_waitcnt vmcnt(0)")
    load(E[1], sIb, IMG)
    A("s_waitcnt vmcnt(0)")
    check([E[1]])
    A("s_cbranch_scc0 L_fin")
    A.label("L_fo7")
    merge(E, sH1, 0)
    A("s_branch L_fin")

    A.label("L_fmid")
    A.c("middle workgroup: helps with two region-1 heads, has the largest part of the region-2 head")
    A(f"v_and_b32 v{fHa}, 1, v{vLane}")
    A(f"v_mul_u32_u24 v{fHa}, {2*IMG}, v{fHa}")
    A(f"v_add_u32 v{fHa}, {4096 + 12}, v{fHa}")
    barriers(41)
    combine(E[0])
    barriers(40)
    combine(E[1])
    barriers(47 - early)
    if not nofin:
        publish(E[0], sIb, IMG)
        publish(E[1], sIb, 3*IMG)
    for k in range(early): A("s_barrier")
    if not nofin:
        load(R[0], sIa, 0); load(R[2], sIa, 2*IMG)
    A("s_barrier")
    combine(R[1])
    if nofin: A("s_branch L_fin")
    A("s_waitcnt vmcnt(0)")
    A(f"buffer_load_dword v{fH}, v{fHa}, s[{SRD_L}:{SRD_L+3}], s{sIb} offen sc1")
    check([R[0], R[2]])
    A("s_cbranch_scc1 L_fm1")
    publish(R[1], sIa, IMG)
    A("s_waitcnt vmcnt(0)")
    load(R[0], sIa, 0); load(R[2], sIa, 2*IMG)
    A("s_waitcnt vmcnt(0)")
    check([R[0], R[2]])
    A("s_cbranch_scc0 L_fm2")
    A.label("L_fm1")
    merge(R, sJ, 171)
    A("s_waitcnt vmcnt(3)")
    A.label("L_fm2")
    A.c("an owner that missed its helper image has published its own: finish that head here")
    A(f"v_cmp_eq_u32 vcc, v{fH}, v{fTag}")
    A("s_nop 4")
    A(f"s_and_b32 s{sDone}, vcc_lo, 3")
    A("s_cbranch_scc0 L_fin")
    for h in range(2):
        A(f"s_bitcmp1_b32 s{sDone}, {h}")
        A(f"s_cbranch_scc0 L_fm3{h}")
        A("s_waitcnt vmcnt(0)")
        load(R[0], sIb, 2*h*IMG)
        A("s_waitcnt vmcnt(0)")
        check([R[0]])
        A(f"s_cbranch_scc0 L_fm3{h}")
        merge([R[0], E[h]], sH1, h)
        A.label(f"L_fm3{h}")
    A("s_branch L_fin")

    A.label("L_fsolo")
    barriers(129)
    combine(R[0])
    merge([R[0]], sH1, 0)
    A.label("L_fin")
    if stamp: stamp_out(None)
    A.label("L_end")
    A("s_endpgm")

    kn = name + "_kernel"
    hdr = open(f"/code/{NAME}.s.ref").read().split("; Override launch")[0]
    nv = (NV + 7)//8*8
    s = hdr + f"""; @launch grid=(256,1,1) block=(448,1,1) lds={LDS}
.amdgcn_target "amdgcn-amd-amdhsa--gfx950"
.text
.globl {kn}
.p2align 8
.type {kn},@function
{kn}:
{A.text()}
.section .rodata,"a"
.p2align 6
.amdhsa_kernel {kn}
  .amdhsa_next_free_vgpr {nv}
  .amdhsa_next_free_sgpr 102
  .amdhsa_accum_offset {nv}
  .amdhsa_group_segment_fixed_size 0
  .amdhsa_kernarg_size 80
  .amdhsa_user_sgpr_count 2
  .amdhsa_user_sgpr_kernarg_segment_ptr 1
  .amdhsa_system_sgpr_workgroup_id_x 1
  .amdhsa_float_denorm_mode_32 3
.end_amdhsa_kernel
"""
    return s, kn, f"{kn}:256:448:{LDS}"

if __name__ == "__main__":
    kw = {}
    out = f"/code/{NAME}.s"
    for a in sys.argv[1:]:
        k, v = a.split("=")
        if k == "out": out = v
        else: kw[k] = eval(v)
    s, kn, spec = gen(**kw)
    open(out, "w").write(s)
    print(out, spec)
```

```python
import sys
from gen_kernel import Asm, VAlloc, vr, NAME, LOG2E, SCALE

def gen(thr0=19.0, lo=16, gain=5, per=4, late=200, lead=0, lead0=48, boost=0, boost0=63, gain2=24,  skip=4, gcap=12, sep=False, hi=25, top=21, hstep=2, align=0, ff=1.0, g2at=29/32, pk=False,
        stamp=False, nocomp=False, prio=3, early=1, first=1, spec=True, nofin=False, nst=4, qf='nt', slow=None,
        warm=8, name=NAME):
    KV_BYTES = 256*4096*768
    L_RING, L_PAR = 0, 73728
    L_VSZ = L_PAR + 17*3072
    L_STAT = L_VSZ + 16384
    L_SLOT = L_STAT + 256
    L_THR = L_SLOT + 4*3072
    LDS = L_THR + 64
    WS_STAMP, WS_FB = 8 << 20, 16 << 20
    RSTR = 4096*17 if sep else 4
    FB_END = WS_FB + 8*RSTR + (256//per + 1)*256
    TAGW = 5000
    A = Asm()
    va = VAlloc(1)
    vLane = va(); vW = va(); vT1 = va(); vT2 = va(); vT3 = va(); vT4 = va()
    vPa = va(4); vLogA = va(); vRing = va(); vRd = va()
    vM = va(); vLa = va(); vLb = va()
    vPar = va(16); vPad = va(2)
    vX = va(24, 4)
    vZ = va(24, 4); vS = va(24, 4)
    vB = vZ
    vRaw = va(24, 4)
    vKb = va(12, 4); vD = va(8, 4); vGb = va(); vMs = va(3)
    vAcc = va(48, 4)
    vQ = vAcc
    vP = va(4, 4)
    vSum = va(); vCor = va(); vLg = va(); vSZ = va(4); vE = va(6)
    NV = va.n
    assert NV <= 256, NV
    sW, sBase, sT0, sT1, sT2, sBlk, sSlot, sPar = 56, 57, 58, 59, 60, 61, 62, 63
    sLog2e, sScale, sHi, s768 = 64, 65, 66, 67
    sC, sM, sLev, sProg, sRot, sHead, sInt, sLevSum = 68, 69, 70, 71, 72, 73, 74, 75
    sNow, sFbP, sRef = 96, 98, 84
    sC1, sC2, sLead, sJ, sP, sRnd = 3, 73, 72, 100, 101, 74
    WS_PART = 0
    SRD_L, SRD_KS, SRD_KZ, SRD_VS, SRD_VZ, SRD_Q, SRD_O, SRD_D = 24, 28, 32, 36, 40, 44, 48, 52
    def srd(d, p, nbytes):
        A(f"s_mov_b32 s{d}, s{p}"); A(f"s_and_b32 s{d+1}, s{p+1}, 0xffff")
        A(f"s_mov_b32 s{d+2}, {nbytes}"); A(f"s_mov_b32 s{d+3}, 0x20000")
    def tok_of(dst, n, isb, t, u):
        A(f"v_cmp_le_u32 vcc, 43, v{n}")
        A(f"v_add_u32 v{t}, 43, v{n}")
        A(f"v_mov_b32 v{u}, 42")
        A(f"v_cndmask_b32 v{dst}, v{n}, v{t}, vcc")
        A(f"v_cmp_le_u32 vcc, 86, v{n}")
        A(f"v_add_u32 v{t}, 43, v{dst}")
        A("s_nop 0")
        A(f"v_cndmask_b32 v{dst}, v{dst}, v{t}, vcc")
        A(f"v_cndmask_b32 v{u}, 43, v{u}, vcc")
        A(f"v_mad_u32_u24 v{dst}, v{u}, v{isb}, v{dst}")
    def stamp_out(idx_expr):
        A("s_waitcnt vmcnt(0)")
        A("s_memrealtime s[82:83]")
        A("s_getreg_b32 s84, hwreg(HW_REG_XCC_ID)")
        A("s_getreg_b32 s85, hwreg(HW_REG_HW_ID)")
        A("s_and_b32 s85, s85, 0xffff")
        A(f"s_or_b32 s85, s85, s{sLevSum}")
        A("s_waitcnt lgkmcnt(0)")
        srd(76, 22, WS_STAMP + 1792*32)
        for k, sr in enumerate((80, 81, 82, 83, 84, 85, 92, 94)): A(f"v_mov_b32 v{vX+k}, s{sr}")
        A("s_mul_i32 s85, s2, 7"); A(f"s_add_u32 s85, s85, s{sW}"); A("s_lshl_b32 s85, s85, 5")
        A(f"s_add_u32 s85, s85, {WS_STAMP}")
        A(f"v_mov_b32 v{vT3}, 0")
        A("s_mov_b64 exec, 1")
        A(f"buffer_store_dwordx4 {vr(vX, 4)}, v{vT3}, s[76:79], s85 offen")
        A(f"buffer_store_dwordx4 {vr(vX+4, 4)}, v{vT3}, s[76:79], s85 offen offset:16")

    A("s_cmp_ge_u32 s2, 256")
    A("s_cbranch_scc1 L_end")
    A("s_load_dwordx16 s[4:19], s[0:1], 0")
    A("s_load_dwordx4 s[20:23], s[0:1], 64")
    if stamp:
        A("s_memrealtime s[80:81]")
        A(f"s_mov_b32 s{sLevSum}, 0"); A("s_mov_b32 s92, 0"); A("s_mov_b32 s94, 0")
    if slow:
        A(f"s_mul_i32 s{sT0}, s2, {slow[0]}"); A(f"s_bfe_u32 s{sT0}, s{sT0}, {4 | (2 << 16)}")
        A(f"s_mul_i32 s{sT0}, s{sT0}, {slow[1]}")
        A.label("L_slow")
        A("s_sleep 32")
        A(f"s_sub_i32 s{sT0}, s{sT0}, 1")
        A(f"s_cmp_gt_i32 s{sT0}, 0")
        A("s_cbranch_scc1 L_slow")
    A(f"v_lshrrev_b32 v{vW}, 6, v0")
    A(f"v_and_b32 v{vLane}, 63, v0")
    A(f"v_readfirstlane_b32 s{sW}, v{vW}")
    A(f"s_mov_b32 s{s768}, 768")
    A.c("lane k < 16: vGb = global 256-token block visited at sequence position k")
    A(f"s_mul_i32 s{sJ}, s2, 43691"); A(f"s_lshr_b32 s{sJ}, s{sJ}, 17")
    A(f"s_mul_i32 s{sP}, s{sJ}, 3"); A(f"s_sub_u32 s{sP}, s2, s{sP}")
    A(f"s_cmp_eq_u32 s2, 255"); A(f"s_cselect_b32 s{sC2}, 16, 11")
    A(f"s_cmp_eq_u32 s{sP}, 1"); A(f"s_cselect_b32 s{sC1}, 5, s{sC2}"); A(f"s_cselect_b32 s{sC2}, 10, s{sC2}")
    if lead: A(f"s_cselect_b32 s{sLead}, {-2*lead}, {lead}")
    A(f"s_mul_i32 s{sT0}, s{sP}, 21"); A(f"s_add_u32 s{sT0}, s{sT0}, 1"); A(f"s_lshr_b32 s{sT0}, s{sT0}, 1")
    A(f"s_lshl_b32 s{sT1}, s{sJ}, 5"); A(f"s_add_u32 s{sBase}, s{sT0}, s{sT1}")
    A(f"s_mul_i32 s{sT0}, s{sP}, 11"); A(f"s_lshr_b32 s{sT0}, s{sT0}, 1")
    A(f"s_lshl_b32 s{sT1}, s{sJ}, 4"); A(f"s_add_u32 s{sT0}, s{sT0}, s{sT1}")
    A(f"s_add_u32 s{sT0}, s{sT0}, {171*16}"); A(f"s_sub_u32 s{sT0}, s{sT0}, s{sC2}")
    A(f"v_cmp_le_u32 vcc, s{sC2}, v{vLane}")
    A(f"v_add_u32 v{vT1}, s{sBase}, v{vLane}")
    A(f"v_add_u32 v{vT2}, s{sT0}, v{vLane}")
    A(f"v_cndmask_b32 v{vGb}, v{vT1}, v{vT2}, vcc")
    A(f"s_cmp_eq_u32 s{sW}, 4")
    A("s_cbranch_scc0 L_roles")

    sOff, sAcc, sThr, s1024, sAl, sBe, sJmp = sBase, sInt, sLev, sProg, sM, sSlot, sPar
    his = [(a, min(a+hstep-1, hi)) for a in range(top+1, hi+1, hstep)]
    lBase, lOdd, lIsB, lAddr, lThr, lThrA, lTa = 8, 11, 14, 17, 20, 21, 22
    if prio: A(f"s_setprio {prio}")
    A.c("a chain is rows A, A+1, B, B+1 (3 KiB) laid end to end; instruction k moves bytes [1024k, 1024k+1024)")
    for k in range(3):
        A(f"v_add_u32 v{lAddr+k}, {64*k}, v{vLane}")
        A(f"v_mul_u32_u24 v{lTa}, 1366, v{lAddr+k}")
        A(f"v_bfe_u32 v{lOdd+k}, v{lTa}, 16, 1"); A(f"v_lshrrev_b32 v{lIsB+k}, 17, v{lTa}")
        A(f"v_mul_u32_u24 v{lTa}, {41*768}, v{lIsB+k}")
        A(f"v_lshl_add_u32 v{lAddr+k}, v{lAddr+k}, 4, v{lTa}")
        A(f"v_mov_b32 v{lBase+k}, v{lAddr+k}")
    A(f"s_mov_b32 s{sC}, 0"); A(f"s_mov_b32 m0, {L_RING}"); A(f"s_movk_i32 s{s1024}, 1024")
    A(f"s_mul_i32 s{sOff}, s{sBase}, {256*768}")
    sMsk, s1536 = 84, 86
    A(f"s_mov_b32 s{sMsk}, {1 << 22:#x}"); A(f"s_mov_b32 s{sMsk+1}, {1 << (43-32):#x}"); A(f"s_movk_i32 s{s1536}, 1536")
    A(f"s_mov_b32 s{sThr}, {int(thr0)}"); A(f"s_mov_b32 s{sAcc}, 0")
    A(f"v_mov_b32 v{lThr}, {int(thr0*256)}"); A(f"v_mov_b32 v{lThrA}, {L_THR}")
    A(f"ds_write_b32 v{lThrA}, v{lThr}")
    A("s_waitcnt lgkmcnt(0)")
    if stamp: A("s_memrealtime s[92:93]")
    srd(SRD_L, 6, KV_BYTES)
    A.c("one chain per pass; the entry point sets the window; the next chain's lane offsets are formed between the loads")
    def chain_loop(a, b, tag):
        for n in range(a, b+1):
            A.label(f"L_lw{n}")
            A(f"s_waitcnt vmcnt({n})")
        def nxt(k):
            A(f"v_mad_i32_i24 v{lTa}, v{lIsB+k}, s{sAl}, v{lBase+k}")
            A(f"v_mad_u32_u24 v{lAddr+k}, v{lOdd+k}, s{sBe}, v{lTa}")
        A(f"buffer_load_dwordx4 v{lAddr}, s[{SRD_L}:{SRD_L+3}], s{sOff} offen nt lds")
        A(f"s_add_u32 m0, m0, s{s1024}")
        A(f"s_add_u32 s{sC}, s{sC}, 1")
        A(f"s_and_b32 s{sT0}, s{sC}, 63")
        A(f"s_cmp_ge_u32 s{sT0}, 43")
        A(f"s_cselect_b32 s{sAl}, -768, 0")
        A(f"buffer_load_dwordx4 v{lAddr+1}, s[{SRD_L}:{SRD_L+3}], s{sOff} offen nt lds")
        A(f"s_add_u32 m0, m0, s{s1024}")
        A(f"s_cmp_eq_u32 s{sT0}, 21")
        A(f"s_cselect_b32 s{sBe}, {43*768}, 0")
        A(f"v_mad_u32_u24 v{lAddr}, v{lOdd}, s{sBe}, v{lBase}")
        A(f"s_bitcmp1_b64 s[{sMsk}:{sMsk+1}], s{sT0}")
        A(f"s_cselect_b32 s{sJmp}, {45*768}, s{s1536}")
        A(f"buffer_load_dwordx4 v{lAddr+2}, s[{SRD_L}:{SRD_L+3}], s{sOff} offen nt lds")
        A(f"s_add_u32 m0, m0, s{s1024}")
        A(f"s_add_u32 s{sOff}, s{sOff}, s{sJmp}")
        nxt(1); nxt(2)
        A(f"s_and_b32 s{sT1}, s{sC}, 7")
        A("s_cbranch_scc0 L_lunit")
        A.label(f"L_lad{tag}")
        for n in range(b, a, -1):
            A(f"s_cmp_eq_u32 s{sThr}, {n}")
            A(f"s_cbranch_scc1 L_lw{n}")
        A(f"s_branch L_lw{a}")
    chain_loop(lo, top, "")
    A.label("L_lunit")
    A.c("unit boundary: release the previous unit, pick up the window size")
    if hi > 21: A("s_waitcnt vmcnt(24)")
    A(f"s_cmp_le_u32 s{sC}, 16")
    A("s_cbranch_scc1 L_lfirst")
    A.label("L_lbar")
    A("s_barrier")
    A.label("L_lnobar")
    A("s_waitcnt lgkmcnt(0)")
    A(f"v_readfirstlane_b32 s{sT1}, v{lThr}")
    A(f"ds_read_b32 v{lThr}, v{lThrA}")
    A(f"s_cmp_eq_u32 m0, {L_RING + 73728}")
    A(f"s_cselect_b32 m0, {L_RING}, m0")
    A(f"s_and_b32 s{sAcc}, s{sAcc}, 255")
    A(f"s_add_u32 s{sAcc}, s{sAcc}, s{sT1}")
    A(f"s_lshr_b32 s{sThr}, s{sAcc}, 8")
    A(f"s_cmp_eq_u32 s{sT0}, 0")
    if not his:
        A("s_cbranch_scc0 L_lad")
    else:
        A("s_cbranch_scc1 L_lblock")
        A.label("L_lsel")
        A(f"s_cmp_le_u32 s{sThr}, {top}")
        A("s_cbranch_scc1 L_lad")
        for a, b in his[:-1]:
            A(f"s_cmp_le_u32 s{sThr}, {b}")
            A(f"s_cbranch_scc1 L_lad{a}")
        A(f"s_branch L_lad{his[-1][0]}")
    back = "L_lsel" if his else "L_lad"
    A.label("L_lblock")
    A(f"s_bfe_u32 s{sT0}, s{sC}, {6 | (4 << 16)}")
    A(f"v_readlane_b32 s{sOff}, v{vGb}, s{sT0}")
    A("s_nop 3")
    A(f"s_mul_i32 s{sOff}, s{sOff}, {256*768}")
    A(f"s_cmp_eq_u32 s{sT0}, 0")
    A(f"s_cbranch_scc0 {back}")
    A(f"s_cmp_eq_u32 s{sC}, 2048")
    A("s_cbranch_scc1 L_ldone")
    A(f"s_mov_b32 s{SRD_L}, s8"); A(f"s_and_b32 s{SRD_L+1}, s9, 0xffff")
    A(f"s_branch {back}")
    A.label("L_lfirst")
    A(f"s_cmp_eq_u32 s{sC}, 8")
    A("s_cbranch_scc1 L_lnobar")
    A("s_barrier")
    A("s_branch L_lbar")
    A.label("L_ldone")
    A("s_waitcnt vmcnt(0)")
    A("s_barrier")
    if stamp: A("s_branch L_fin")
    else: A("s_endpgm")
    for a, b in his: chain_loop(a, b, str(a))

    A.label("L_roles")
    A(f"s_cmp_lt_u32 s{sW}, 4")
    A("s_cbranch_scc1 L_consumer")
    A(f"s_cmp_eq_u32 s{sW}, 5")
    A("s_cbranch_scc1 L_finisher")

    pRep, pVal, pThrA, pLog = 8, 9, 10, 20
    if warm:
        A.c("a few workgroups pull the code into their L2 ahead of its first use")
        A(f"s_sub_u32 s{sT0}, s2, 16")
        A(f"s_cmp_lt_u32 s{sT0}, {warm}")
        A("s_cbranch_scc0 L_pw")
        A(f"s_getpc_b64 s[{SRD_Q}:{SRD_Q+1}]")
        A.label("L_pc")
        A(f"s_and_b32 s{SRD_Q+1}, s{SRD_Q+1}, 0xffff")
        A(f"s_mov_b32 s{SRD_Q+2}, L_end - L_pc"); A(f"s_mov_b32 s{SRD_Q+3}, 0x20000")
        A(f"v_lshlrev_b32 v{pVal}, 7, v{vLane}")
        for k in range(4):
            A(f"s_movk_i32 s{sT0}, {k*8192}")
            A(f"buffer_load_dword v{12+k}, v{pVal}, s[{SRD_Q}:{SRD_Q+3}], s{sT0} offen")
        A.label("L_pw")
    A("s_waitcnt lgkmcnt(0)")
    srd(SRD_D, 22, FB_END)
    A(f"s_mov_b32 s{sProg}, 0")
    A(f"s_add_u32 s{sFbP}, s22, {WS_FB}"); A(f"s_addc_u32 s{sFbP+1}, s23, 0")
    sRepo, sD, sSl, sFf = sBlk, sBase, 92 if not stamp else 76, 94 if not stamp else 78
    A.c("reporters: workgroups 0, 9, 2, 3, 12, 5, 6, 15")
    A(f"s_min_u32 s{sT0}, s2, 16"); A(f"s_lshr_b32 s{sRepo}, {sum(1 << w for w in (0, 9, 2, 3, 12, 5, 6, 15)):#x}, s{sT0}")
    A(f"s_and_b32 s{sRepo}, s{sRepo}, 1")
    A(f"s_and_b32 s{sT1}, s2, 7"); A(f"s_mul_i32 s{sT1}, s{sT1}, {RSTR}"); A(f"s_add_u32 s{sT1}, s{sT1}, {WS_FB}")
    if align:
        A.c("schedule offsets that make all workgroups leave region 1 together")
        tau = 652*per//8
        sl = [[round(-align*tau/33), round(align*tau/15)], [round(align*tau/15), round(-align*tau/9)]]
        fw = [[round(align*ff*256*20.5*x) for x in (1/32, -1/16)], [round(align*ff*256*20.5*x) for x in (-1/16, 1/8)]]
        for k in range(2):
            for dst, tab in ((sSl, sl), (sFf, fw)):
                A(f"s_mov_b32 s{dst+k}, {tab[0][k]}")
                A(f"s_cmp_eq_u32 s{sP}, 1"); A(f"s_cselect_b32 s{dst+k}, {tab[1][k]}, s{dst+k}")
                A(f"s_cmp_eq_u32 s2, 255"); A(f"s_cselect_b32 s{dst+k}, 0, s{dst+k}")
        A(f"s_mov_b32 s{sD}, 0")
    A(f"v_mov_b32 v{pRep}, s{sT1}"); A(f"v_mov_b32 v{pThrA}, {L_THR}")
    A(f"s_mov_b32 s{sNow}, 0")
    A("s_mov_b64 exec, 1")
    A("s_barrier")
    sPrev, sOn = sSlot, sPar
    A(f"s_mov_b32 s{sOn}, 0")
    A.label("L_pace")
    for u in range(per):
        A("s_barrier")
        if u == 0:
            A(f"s_mov_b32 s{sPrev}, s{sNow}")
            A(f"s_memrealtime s[{sNow}:{sNow+1}]")
            A("s_waitcnt lgkmcnt(0)")
            if stamp == 5:
                A(f"s_lshr_b32 m0, s{sProg}, {8 + (8//per).bit_length() - 1}")
                A(f"s_sub_u32 s{sT0}, s{sNow}, s80")
                A(f"v_writelane_b32 v{pLog}, s{sT0}, m0")
                A("s_add_u32 m0, m0, 32"); A("s_nop 0")
                A(f"v_writelane_b32 v{pLog}, s{sLev}, m0")
            if lead:
                A(f"s_lshr_b32 s{sT0}, s{sProg}, 8")
                A(f"s_sub_i32 s{sT0}, s{sT0}, {lead0}")
                A(f"s_max_i32 s{sT0}, s{sT0}, 0")
                A(f"s_mul_i32 s{sT0}, s{sT0}, s{sLead}")
                A(f"s_add_u32 s{sNow}, s{sNow}, s{sT0}")
            if align:
                A(f"s_sub_u32 s{sNow}, s{sNow}, s{sD}")
                A(f"s_bfe_u32 s{sT0}, s{sProg}, {(8 + (8//per).bit_length() - 1) | (4 << 16)}")
                A(f"s_cmp_lt_u32 s{sT0}, s{sC2}")
                A(f"s_cselect_b32 s{sT0}, s{sSl}, s{sSl+1}")
                A(f"s_add_i32 s{sD}, s{sD}, s{sT0}")
            A.c("window from the lead over the reporters in the previous period")
            A(f"s_cmp_eq_u32 s{sOn}, 0")
            A("s_cbranch_scc1 L_pnext")
            A(f"s_mov_b32 s{sT0}, 0")
            for k in range(8):
                A(f"s_sub_i32 s{sT1}, s{sRef+k}, s{sPrev}")
                A(f"s_add_i32 s{sT2}, s{sT1}, {TAGW}")
                A(f"s_cmp_lt_u32 s{sT2}, {2*TAGW}")
                A(f"s_cselect_b32 s{sT1}, s{sT1}, {late}")
                A(f"s_add_i32 s{sT0}, s{sT0}, s{sT1}")
            if gcap:
                A(f"s_min_u32 s{sT1}, s{sOn}, {gcap}")
                A(f"s_cmp_gt_i32 s{sT0}, 0")
                A(f"s_cselect_b32 s{sOn}, s{sT1}, s{sOn}")
            A(f"s_mul_i32 s{sT0}, s{sT0}, s{sOn}")
            A(f"s_ashr_i32 s{sT0}, s{sT0}, 5")
            A(f"s_sub_i32 s{sT0}, {int(thr0*256)}, s{sT0}")
            if align:
                A(f"s_add_u32 s{sT1}, s{sProg}, 256")
                A(f"s_min_u32 s{sT1}, s{sT1}, {(256//per - 1)*256}")
                A(f"s_bfe_u32 s{sT1}, s{sT1}, {(8 + (8//per).bit_length() - 1) | (4 << 16)}")
                A(f"s_cmp_lt_u32 s{sT1}, s{sC2}")
                A(f"s_cselect_b32 s{sT1}, s{sFf}, s{sFf+1}")
                A(f"s_add_i32 s{sT0}, s{sT0}, s{sT1}")
            if boost:
                A(f"s_cmp_ge_u32 s{sProg}, {boost0*256}")
                A(f"s_cselect_b32 s{sT1}, {int(boost*256)}, 0")
                A(f"s_add_i32 s{sT0}, s{sT0}, s{sT1}")
            A(f"s_max_i32 s{sT0}, s{sT0}, {lo*256}")
            A(f"s_min_i32 s{sLev}, s{sT0}, {hi*256}")
            A(f"v_mov_b32 v{pVal}, s{sLev}")
            A(f"ds_write_b32 v{pThrA}, v{pVal}")
            A.label("L_pnext")
            A.c("gain of this period (0: period not used)")
            A(f"s_and_b32 s{sT0}, s{sProg}, {(skip-1)*256}")
            A(f"s_cselect_b32 s{sOn}, 0, {gain}")
            if gain2:
                A(f"s_cmp_ge_u32 s{sProg}, {int(g2at*256/per)*256}")
                A(f"s_cselect_b32 s{sOn}, {gain2}, s{sOn}")
            A(f"s_mul_i32 s{sT0}, s{sOn}, s{sRepo}")
            A(f"s_cmp_eq_u32 s{sT0}, 0")
            A("s_cbranch_scc1 L_pnorep")
            A(f"v_mov_b32 v{pVal+2}, s{sNow}")
            A(f"buffer_store_dword v{pVal+2}, v{pRep}, s[{SRD_D}:{SRD_D+3}], s{sProg} offen sc1")
            A.label("L_pnorep")
        if u == per - 1:
            A(f"s_cmp_eq_u32 s{sOn}, 0")
            A("s_cbranch_scc1 L_pnold")
            if sep:
                for k in range(8):
                    A(f"s_add_u32 s{sT0}, s{sProg}, {k*RSTR}")
                    A(f"s_load_dword s{sRef+k}, s[{sFbP}:{sFbP+1}], s{sT0}")
            else:
                A(f"s_load_dwordx8 s[{sRef}:{sRef+7}], s[{sFbP}:{sFbP+1}], s{sProg}")
            A.label("L_pnold")
    A(f"s_add_u32 s{sProg}, s{sProg}, 256")
    A(f"s_cmp_lt_u32 s{sProg}, {256//per*256}")
    A("s_cbranch_scc1 L_pace")
    A("s_waitcnt lgkmcnt(0)")
    A("s_mov_b64 exec, -1")
    if stamp == 5:
        srd(76, 22, (9 << 20) + 65536)
        A(f"v_lshlrev_b32 v21, 2, v{vLane}")
        A(f"s_lshl_b32 s{sT0}, s2, 8"); A(f"s_add_u32 s{sT0}, s{sT0}, {9 << 20}")
        A(f"buffer_store_dword v{pLog}, v21, s[76:79], s{sT0} offen")
    if stamp: A("s_branch L_fin")
    else: A("s_endpgm")

    A.label("L_consumer")
    A.c("q fragments: lane = kg*16 + h'*4 + qi")
    A(f"v_lshrrev_b32 v{vT1}, 2, v{vLane}")
    A(f"v_lshlrev_b32 v{vT1}, 3, v{vT1}")
    A(f"v_and_b32 v{vT2}, 3, v{vLane}")
    A(f"v_mul_u32_u24 v{vT3}, 384, v{vT2}")
    A(f"v_add_u32 v{vLa}, v{vT1}, v{vT3}")
    A(f"v_lshlrev_b32 v{vRd}, 4, v{vLane}")
    A(f"s_mul_i32 s{sPar}, s{sW}, 3072")
    A(f"s_add_u32 s{sPar}, s{sPar}, {L_PAR + 3072}")
    for k in range(4):
        A(f"s_add_u32 s{sT0}, s{sW}, {4*k}")
        A(f"v_readlane_b32 s{sRef+k}, v{vGb}, s{sT0}")
    A(f"v_readlane_b32 s{sRef+4}, v{vGb}, 0")
    A(f"s_min_u32 s{sT0}, s{sC1}, 15")
    A(f"v_readlane_b32 s{sRef+5}, v{vGb}, s{sT0}")
    A(f"v_readlane_b32 s{sRef+6}, v{vGb}, 15")
    A("s_waitcnt lgkmcnt(0)")
    srd(SRD_KZ, 12, 256*24576); srd(SRD_KS, 10, 256*24576)
    if stamp == 3: A("s_memrealtime s[92:93]")
    def par_dma(ks):
        A("s_mov_b32 exec_hi, 0xffff")
        for k in ks:
            A(f"s_add_u32 m0, s{sPar}, {k*4*3072}")
            A(f"s_mul_i32 s{sT0}, s{sRef+k}, 1536")
            for a, sr in enumerate((SRD_KZ, SRD_KS)):
                A(f"buffer_load_dwordx4 v{vRd}, s[{sr}:{sr+3}], s{sT0} offen nt lds")
                A(f"buffer_load_dwordx4 v{vRd}, s[{sr}:{sr+3}], s{sT0} offen offset:768 nt lds")
                if a == 0:
                    A("s_add_u32 m0, m0, 1536"); A("s_nop 0")
        A("s_mov_b32 exec_hi, -1")
    def vsz_dma():
        srd(SRD_VS, 14, 256*8192); srd(SRD_VZ, 16, 256*8192)
        A("s_mov_b32 exec_hi, 0")
        A(f"s_lshl_b32 s{sT2}, s{sW}, 10")
        for k in range(4):
            A(f"s_add_u32 m0, s{sT2}, {L_VSZ + k*4096}")
            A(f"s_lshl_b32 s{sT0}, s{sRef+k}, 9")
            A(f"buffer_load_dwordx4 v{vRd}, s[{SRD_VS}:{SRD_VS+3}], s{sT0} offen nt lds")
            A("s_add_u32 m0, m0, 512"); A("s_nop 0")
            A(f"buffer_load_dwordx4 v{vRd}, s[{SRD_VZ}:{SRD_VZ+3}], s{sT0} offen nt lds")
        A("s_mov_b32 exec_hi, -1")
    def q_loads(rs_):
        for r in rs_:
            A(f"s_lshr_b32 s{sT0}, s{sRef+4+r}, 4")
            A(f"s_mul_i32 s{sT0}, s{sT0}, 1536")
            for j in range(3):
                A(f"buffer_load_dwordx2 {vr(vQ + r*6 + j*2, 2)}, v{vLa}, s[{SRD_Q}:{SRD_Q+3}], s{sT0} offen offset:{j*128} {qf}")
    par_dma(range(first))
    srd(SRD_Q, 4, 256*1536)
    q_loads([0])
    if stamp == 4: A("s_memrealtime s[92:93]")
    A(f"s_mov_b32 s{sLog2e}, {LOG2E:#x}"); A(f"s_mov_b32 s{sScale}, {SCALE:#x}")
    A(f"s_mov_b32 s{sHi}, 0xffff0000")
    A.c("K param LDS addresses: (tok>>6)*384 + (kg*4+h)*8")
    n0, isb, part = vX, vX+1, vX+2
    A(f"v_bfe_u32 v{n0}, v{vLane}, 2, 1"); A(f"v_lshl_add_u32 v{n0}, v{vW}, 2, v{n0}")
    A(f"v_bfe_u32 v{isb}, v{vLane}, 3, 1")
    A(f"v_lshrrev_b32 v{part}, 4, v{vLane}"); A(f"v_lshl_add_u32 v{part}, v{part}, 2, v{vT2}")
    A(f"v_lshlrev_b32 v{part}, 3, v{part}"); A(f"v_add_u32 v{part}, {L_PAR}, v{part}")
    A(f"s_movk_i32 s{sT0}, 384")
    for i in range(8):
        for e in range(2):
            d = vPar + 2*i + e
            A(f"v_add_u32 v{vT1}, {16*i + 2*e}, v{n0}")
            tok_of(d, vT1, isb, vT3, vT4)
            A(f"v_lshrrev_b32 v{d}, 6, v{d}")
            A(f"v_mad_u32_u24 v{d}, v{d}, s{sT0}, v{part}")
    A.c("P layout: lane = t*16 + b*4 + qi ; n = 64g + 16b + 4w + 2e + (t&1)")
    A(f"v_bfe_u32 v{n0}, v{vLane}, 4, 1"); A(f"v_lshl_add_u32 v{n0}, v{vW}, 2, v{n0}")
    A(f"v_bfe_u32 v{vT1}, v{vLane}, 2, 2"); A(f"v_lshl_add_u32 v{n0}, v{vT1}, 4, v{n0}")
    A(f"v_lshrrev_b32 v{isb}, 5, v{vLane}")
    A(f"s_mov_b32 s{sT0}, {L_VSZ}")
    for g in range(2):
        for e in range(2):
            d = vPa + 2*g + e
            A(f"v_add_u32 v{vT1}, {64*g + 2*e}, v{n0}")
            tok_of(d, vT1, isb, vT3, vT4)
            A(f"v_lshl_add_u32 v{d}, v{d}, 1, s{sT0}")
    A(f"v_lshlrev_b32 v{vLogA}, 2, v{vLane}")
    A(f"v_lshl_add_u32 v{vLogA}, v{vW}, 9, v{vLogA}")
    A(f"v_add_u32 v{vLogA}, {L_PAR}, v{vLogA}")
    def ring_addr(kind):
        if kind == "K":
            A(f"v_bfe_u32 v{vT1}, v{vLane}, 2, 2")
            A(f"v_lshrrev_b32 v{vT2}, 4, v{vLane}"); A(f"v_and_b32 v{vT3}, 3, v{vLane}")
            A(f"v_lshl_add_u32 v{vT2}, v{vT2}, 2, v{vT3}")
        else:
            A(f"v_lshrrev_b32 v{vT1}, 4, v{vLane}"); A(f"v_and_b32 v{vT2}, 15, v{vLane}")
        A(f"v_lshl_add_u32 v{vT1}, v{vW}, 3, v{vT1}")
        A(f"v_mul_u32_u24 v{vT1}, 768, v{vT1}")
        A(f"v_lshl_add_u32 v{vRing}, v{vT2}, 4, v{vT1}")
    ring_addr("K")
    A(f"v_mov_b32 v{vM}, 0xff800000")
    par_dma(range(first, 4))
    vsz_dma()
    q_loads([1, 2])
    A(f"s_mov_b32 s{sRnd}, 0")
    A(f"s_mov_b32 s{sBlk}, 0"); A(f"s_mov_b32 s{sSlot}, {L_RING}"); A(f"s_movk_i32 s{sPar}, 3072")
    if stamp == 4: A("s_memrealtime s[94:95]")
    A(f"s_waitcnt vmcnt({4*(4-first) + 14})")
    if stamp == 3: A("s_memrealtime s[94:95]")
    A("s_barrier")
    if stamp and stamp not in (3, 4): A("s_memrealtime s[92:93]")

    def par_reads(i):
        out = [f"v_add_u32 v{vPad+e}, s{sPar}, v{vPar+2*i+e}" for e in range(2)]
        for e in range(2):
            for j in range(3):
                out.append(f"ds_read_b64 {vr(vRaw+e*12+j*4, 2)}, v{vPad+e} offset:{j*128}")
                out.append(f"ds_read_b64 {vr(vRaw+e*12+j*4+2, 2)}, v{vPad+e} offset:{1536 + j*128}")
        return out
    def par_unpack():
        A("s_waitcnt lgkmcnt(0)")
        for k in range(6):
            for dst, src in ((vZ+4*k, vRaw+4*k), (vS+4*k, vRaw+4*k+2)):
                for h in range(2):
                    A(f"v_lshlrev_b32 v{dst+2*h}, 16, v{src+h}")
                    A(f"v_and_b32 v{dst+2*h+1}, s{sHi}, v{src+h}")
    def fetch_unit():
        A(f"v_add_u32 v{vRd}, s{sSlot}, v{vRing}")
        A(f"s_add_u32 s{sSlot}, s{sSlot}, 24576")
        A(f"s_cmp_eq_u32 s{sSlot}, {L_RING + 73728}")
        A(f"s_cselect_b32 s{sSlot}, {L_RING}, s{sSlot}")
        A("s_barrier")
        if nocomp: return
        for k in range(6):
            A(f"ds_read_b128 {vr(vX+4*k, 4)}, v{vRd} offset:{(k//3)*3072 + (k % 3)*256}")
    def dpp_sum(e, b):
        D = vD + 4*e
        L = vLa if e == 0 else vLb
        t = vT1 + e
        return [f"v_add_f32_dpp v{t}, v{D+(b+1) % 4}, v{D+b} row_ror:12 row_mask:0xf bank_mask:0xf",
                f"v_add_f32_dpp v{t}, v{D+(b+2) % 4}, v{t} row_ror:8 row_mask:0xf bank_mask:0xf",
                f"v_add_f32_dpp v{L}, v{D+(b+3) % 4}, v{t} row_ror:4 row_mask:0xf bank_mask:{1 << b:#x}"]

    for x in par_reads(0): A(x)
    par_unpack()
    A.label("L_kblk")
    for i in range(8):
        b = i % 4
        A.c(f"K step {i}")
        if i == 4: A("s_waitcnt vmcnt(0)")
        fetch_unit()
        if nocomp: continue
        for e in range(2):
            o = e*12
            A(f"s_waitcnt lgkmcnt({3 - 3*e})")
            for k in range(12): A(f"v_cvt_f32_i32 v{vX+o+k}, v{vX+o+k}")
            if pk:
                for k in range(0, 12, 2): A(f"v_pk_add_f32 {vr(vX+o+k, 2)}, {vr(vX+o+k, 2)}, {vr(vZ+o+k, 2)} neg_lo:[0,1] neg_hi:[0,1]")
            else:
                for k in range(12): A(f"v_sub_f32 v{vX+o+k}, v{vX+o+k}, v{vZ+o+k}")
            for k in range(12): A(f"v_cvt_pk_bf16_f32 v{vX+o+k}, 0, v{vX+o+k}")
            if pk:
                for k in range(0, 12, 2): A(f"v_pk_mul_f32 {vr(vX+o+k, 2)}, {vr(vX+o+k, 2)}, {vr(vS+o+k, 2)}")
            else:
                for k in range(12): A(f"v_mul_f32 v{vX+o+k}, v{vX+o+k}, v{vS+o+k}")
            packs = [f"v_cvt_pk_bf16_f32 v{vKb+e*6+k}, v{vX+o+2*k}, v{vX+o+2*k+1}" for k in range(6)]
            if e == 1:
                d = dpp_sum(0, b)
                packs = packs[0:2] + d[0:1] + packs[2:4] + d[1:2] + packs[4:6] + d[2:3]
            for x in packs: A(x)
            D = vr(vD+4*e, 4)
            for j in range(3):
                A(f"v_mfma_f32_16x16x16_bf16 {D}, {vr(vKb+e*6+2*j, 2)}, {vr(vQ+2*j, 2)}, {'0' if j == 0 else D}")
        if i == 7: A(f"s_add_u32 s{sPar}, s{sPar}, 3072")
        pr = par_reads((i+1) % 8)
        d = dpp_sum(1, b)
        for x in pr[:9] + d[0:1] + pr[9:11] + d[1:2] + pr[11:14] + d[2:3]: A(x)
        if b == 3:
            A(f"v_cvt_pk_bf16_f32 v{vT1}, 0, v{vLa}")
            A(f"v_cvt_pk_bf16_f32 v{vT2}, 0, v{vLb}")
            A(f"v_mul_f32 v{vT1}, s{sScale}, v{vT1}")
            A(f"v_mul_f32 v{vT2}, s{sScale}, v{vT2}")
            A(f"v_cvt_pk_bf16_f32 v{vT3}, v{vT1}, v{vT2}")
            A(f"v_max3_f32 v{vM}, v{vM}, v{vT1}, v{vT2}")
            A(f"ds_write_b32 v{vLogA}, v{vT3} offset:{(i//4)*256}")
        par_unpack()
    def round_end_test(loop):
        A(f"s_add_u32 s{sBlk}, s{sBlk}, 1")
        A(f"s_cmp_eq_u32 s{sBlk}, s{sC1}")
        A(f"s_cbranch_scc1 {loop}_end")
        A(f"s_cmp_eq_u32 s{sBlk}, s{sC2}")
        A(f"s_cbranch_scc1 {loop}_end")
        A(f"s_cmp_lt_u32 s{sBlk}, 16")
        A(f"s_cbranch_scc1 {loop}")
        A.label(f"{loop}_end")
    A(f"v_add_u32 v{vLogA}, 3072, v{vLogA}")
    round_end_test("L_kblk")
    A.c("end of a K round: park the per-lane max, rotate q")
    for r in range(3):
        A(f"s_cmp_eq_u32 s{sRnd}, {r}")
        A("s_cselect_b64 vcc, -1, 0")
        A(f"v_cndmask_b32 v{vMs+r}, v{vMs+r}, v{vM}, vcc")
    A(f"s_add_u32 s{sRnd}, s{sRnd}, 1")
    for k in range(12): A(f"v_mov_b32 v{vQ+k}, v{vQ+6+k}")
    A(f"v_mov_b32 v{vM}, 0xff800000")
    A(f"s_cmp_lt_u32 s{sBlk}, 16")
    A("s_cbranch_scc1 L_kblk")

    if stamp and stamp not in (3, 4): A("s_memrealtime s[94:95]")
    def p_reads(g):
        return [f"v_add_u32 v{vSZ}, s{sPar}, v{vPa+2*g}",
                f"v_add_u32 v{vSZ+1}, s{sPar}, v{vPa+2*g+1}",
                f"ds_read_b32 v{vLg}, v{vLogA} offset:{g*256}",
                f"ds_read_u16 v{vSZ+2}, v{vSZ} offset:512",
                f"ds_read_u16 v{vSZ+3}, v{vSZ+1} offset:512",
                f"ds_read_u16 v{vSZ}, v{vSZ}",
                f"ds_read_u16 v{vSZ+1}, v{vSZ+1}"]
    def xlane(op, r, t):
        A("s_nop 1")
        A(f"{op}_dpp v{r}, v{r}, v{r} row_ror:4 row_mask:0xf bank_mask:0xf")
        A("s_nop 1")
        A(f"{op}_dpp v{r}, v{r}, v{r} row_ror:8 row_mask:0xf bank_mask:0xf")
        for sw in ("v_permlane16_swap_b32", "v_permlane32_swap_b32"):
            A(f"v_mov_b32 v{t}, v{r}")
            A("s_nop 1")
            A(f"{sw} v{r}, v{t}")
            A(f"{op} v{r}, v{r}, v{t}")
    ring_addr("V")
    A(f"v_subrev_u32 v{vLogA}, {16*3072}, v{vLogA}")
    A(f"s_mov_b32 s{sPar}, 0")
    for x in p_reads(0): A(x)
    for k in range(4): A(f"v_mov_b32 v{vP+k}, 0")
    A(f"s_mov_b32 s{sBlk}, 0")
    if stamp: A("s_waitcnt lgkmcnt(0)")

    A.label("L_vround")
    A(f"v_mov_b32 v{vM}, v{vMs}"); A(f"v_mov_b32 v{vMs}, v{vMs+1}"); A(f"v_mov_b32 v{vMs+1}, v{vMs+2}")
    for k in range(48): A(f"v_mov_b32 v{vAcc+k}, 0")
    A(f"v_mov_b32 v{vSum}, 0"); A(f"v_mov_b32 v{vCor}, 0")
    xlane("v_max_f32", vM, vT1)
    A(f"v_cvt_pk_bf16_f32 v{vM}, 0, v{vM}")
    A(f"v_mul_f32 v{vM}, s{sLog2e}, v{vM}")
    A.label("L_vblk")
    for i in range(8):
        b, g = i % 4, i//4
        A.c(f"V step {i}")
        fetch_unit()
        if nocomp: continue
        if b == 0:
            E = vE
            for x in ["s_waitcnt lgkmcnt(6)",
                      f"v_lshlrev_b32 v{E}, 16, v{vLg}",
                      f"v_and_b32 v{E+1}, s{sHi}, v{vLg}",
                      f"v_fma_f32 v{E}, v{E}, s{sLog2e}, -v{vM}",
                      f"v_fma_f32 v{E+1}, v{E+1}, s{sLog2e}, -v{vM}",
                      f"v_exp_f32 v{E}, v{E}",
                      f"v_exp_f32 v{E+1}, v{E+1}",
                      f"v_lshlrev_b32 v{E+2}, 16, v{vSZ}",
                      f"v_lshlrev_b32 v{E+3}, 16, v{vSZ+1}",
                      f"v_mul_f32 v{E+2}, v{E}, v{E+2}",
                      f"v_mul_f32 v{E+3}, v{E+1}, v{E+3}",
                      f"v_add_f32 v{vSum}, v{vSum}, v{E}",
                      f"v_cvt_pk_bf16_f32 v{E+2}, v{E+2}, v{E+3}",
                      f"v_add_f32 v{vSum}, v{vSum}, v{E+1}",
                      f"v_lshlrev_b32 v{E+4}, 16, v{vSZ+2}",
                      f"v_lshlrev_b32 v{E+5}, 16, v{vSZ+3}",
                      f"v_lshlrev_b32 v{E}, 16, v{E+2}",
                      f"v_and_b32 v{E+1}, s{sHi}, v{E+2}",
                      f"v_fmac_f32 v{vCor}, v{E}, v{E+4}",
                      f"v_fmac_f32 v{vCor}, v{E+1}, v{E+5}"]: A(x)
            for k in range(4):
                A(f"v_mov_b32_dpp v{vP+k}, v{E+2} quad_perm:[0,1,2,3] row_mask:0xf bank_mask:{1 << k:#x}")
        A("s_waitcnt lgkmcnt(3)")
        for k in range(12): A(f"v_cvt_f32_i32 v{vX+k}, v{vX+k}")
        A("s_waitcnt lgkmcnt(0)")
        for k in range(12, 24): A(f"v_cvt_f32_i32 v{vX+k}, v{vX+k}")
        for k in range(12): A(f"v_cvt_pk_bf16_f32 v{vB+k*4+b}, v{vX+k}, v{vX+12+k}")
        if b == 0:
            if g == 1:
                A(f"v_add_u32 v{vLogA}, 3072, v{vLogA}")
                A(f"s_add_u32 s{sPar}, s{sPar}, 1024")
            for x in p_reads(1-g): A(x)
        if b == 3:
            for k in range(12):
                A(f"v_mfma_f32_16x16x32_bf16 {vr(vAcc+4*k, 4)}, {vr(vP, 4)}, {vr(vB+4*k, 4)}, {vr(vAcc+4*k, 4)}")
    round_end_test("L_vblk")

    A.c("reduce over lane groups, park O and (m, l, c) in LDS")
    xlane("v_add_f32", vSum, vT1)
    xlane("v_add_f32", vCor, vT1)
    A(f"v_mov_b32 v{vX}, v{vM}"); A(f"v_mov_b32 v{vX+1}, v{vSum}"); A(f"v_mov_b32 v{vX+2}, v{vCor}"); A(f"v_mov_b32 v{vX+3}, 0")
    A(f"v_and_b32 v{vT2}, 3, v{vLane}")
    A(f"v_lshl_add_u32 v{vT2}, v{vW}, 2, v{vT2}")
    A(f"v_lshlrev_b32 v{vT2}, 4, v{vT2}")
    A(f"v_add_u32 v{vT2}, {L_STAT}, v{vT2}")
    A(f"ds_write_b128 v{vT2}, {vr(vX, 4)}")
    for k in range(12):
        a = vAcc + 4*k
        A(f"v_permlane32_swap_b32 v{a}, v{a+2}")
        A(f"v_permlane32_swap_b32 v{a+1}, v{a+3}")
    for k in range(12):
        a = vAcc + 4*k
        A(f"v_add_f32 v{a}, v{a}, v{a+2}")
        A(f"v_add_f32 v{a+1}, v{a+1}, v{a+3}")
    A("s_nop 1")
    for k in range(12):
        a = vAcc + 4*k
        A(f"v_permlane16_swap_b32 v{a}, v{a+1}")
    for k in range(12):
        a = vAcc + 4*k
        A(f"v_add_f32 v{vX+4+k}, v{a}, v{a+1}")
    A(f"v_lshrrev_b32 v{vT1}, 4, v{vLane}")
    A(f"v_mul_u32_u24 v{vT1}, 768, v{vT1}")
    A(f"v_and_b32 v{vT2}, 15, v{vLane}")
    A(f"v_lshl_add_u32 v{vT1}, v{vT2}, 4, v{vT1}")
    A(f"v_mul_u32_u24 v{vT2}, 3072, v{vW}")
    A(f"s_mov_b32 s{sT0}, {L_SLOT}")
    A(f"v_add3_u32 v{vT2}, v{vT2}, v{vT1}, s{sT0}")
    for j in range(3):
        A(f"ds_write_b128 v{vT2}, {vr(vX+4+4*j, 4)} offset:{j*256}")
    A("s_waitcnt lgkmcnt(0)")
    A(f"s_cmp_lt_u32 s{sBlk}, 16")
    A("s_cbranch_scc1 L_vround")
    A("s_barrier")
    A("s_branch L_fin")

    A.label("L_finisher")
    fOff, fLin, fTag, fM, fL, fT, fSta, fH, fHa = 8, 9, 10, 11, 12, 13, 14, 15, 7
    IMG = 4352
    fSt, fO = 16, 32
    R = [80, 100, 120]
    E = [140, 160]
    sN, sTag, sDone, sIa, sIb, sH1 = sM, sProg, sLev, sC, sSlot, sPar
    A(f"v_lshrrev_b32 v{fOff}, 4, v{vLane}")
    A(f"v_mul_u32_u24 v{fOff}, 768, v{fOff}")
    A(f"v_and_b32 v{fT}, 15, v{vLane}")
    A(f"v_lshl_add_u32 v{fOff}, v{fT}, 4, v{fOff}")
    A(f"v_lshlrev_b32 v{fLin}, 4, v{vLane}")
    A(f"v_and_b32 v{fSta}, 48, v{vLane}")
    A(f"s_memrealtime s[{sNow}:{sNow+1}]")
    A("s_waitcnt lgkmcnt(0)")
    srd(SRD_O, 18, 256*1536); srd(SRD_D, 20, 256); srd(SRD_L, 22, 600*IMG)
    def claim_tag():
        A(f"s_or_b32 s{sTag}, s{sNow}, 1")
        A(f"v_mov_b32 v{fSt}, s{sTag}"); A(f"v_mov_b32 v{fSt+1}, 0")
        A("s_mov_b64 exec, 1")
        A(f"buffer_atomic_cmpswap {vr(fSt, 2)}, v{fLin}, s[{SRD_D}:{SRD_D+3}], 0 offen sc0 sc1")
        A("s_mov_b64 exec, -1")
        A("s_waitcnt vmcnt(0)")
        A(f"v_readfirstlane_b32 s{sT0}, v{fSt}")
        A("s_nop 3")
        A(f"s_cmp_eq_u32 s{sT0}, 0")
        A(f"s_cselect_b32 s{sTag}, s{sTag}, s{sT0}")
    A("s_cmp_eq_u32 s2, 0")
    A("s_cbranch_scc0 L_fk")
    claim_tag()
    A.label("L_fk")
    uid = [0]
    def barriers(n):
        uid[0] += 1
        A(f"s_movk_i32 s{sN}, {n}")
        A.label(f"L_fb{uid[0]}")
        A("s_barrier")
        A(f"s_sub_u32 s{sN}, s{sN}, 1")
        A(f"s_cmp_lg_u32 s{sN}, 0")
        A(f"s_cbranch_scc1 L_fb{uid[0]}")
    barriers(128)
    A(f"s_load_dword s{sTag}, s[20:21], 0")
    A("s_barrier")
    A("s_waitcnt lgkmcnt(0)")
    A(f"s_cmp_eq_u32 s{sTag}, 0")
    A("s_cbranch_scc0 L_ftag")
    claim_tag()
    A.label("L_ftag")
    A(f"v_mov_b32 v{fTag}, s{sTag}")
    A.c("image numbers: region-2 head j part p -> 3j+p; region-1 head h -> 256+2h (owner), 257+2h (helper)")
    A(f"s_mul_i32 s{sIa}, s{sJ}, {3*IMG}")
    A(f"s_lshr_b32 s{sH1}, s{sP}, 1"); A(f"s_lshl_b32 s{sT0}, s{sJ}, 1"); A(f"s_add_u32 s{sH1}, s{sH1}, s{sT0}")
    A(f"s_mul_i32 s{sIb}, s{sH1}, {2*IMG}"); A(f"s_add_u32 s{sIb}, s{sIb}, {256*IMG}")
    def combine(I):
        A(f"v_add_u32 v{fT}, {L_STAT}, v{fSta}")
        A(f"v_add_u32 v{fM}, {L_SLOT}, v{fOff}")
        for w in range(4): A(f"ds_read_b128 {vr(fSt+4*w, 4)}, v{fT} offset:{w*64}")
        for w in range(4):
            for j in range(3):
                A(f"ds_read_b128 {vr(fO+12*w+4*j, 4)}, v{fM} offset:{w*3072 + j*256}")
                if w == 2 and j == 2: A("s_waitcnt lgkmcnt(9)")
        A(f"v_max_f32 v{I+16}, v{fSt}, v{fSt+4}")
        A(f"v_max3_f32 v{I+16}, v{I+16}, v{fSt+8}, v{fSt+12}")
        for w in range(4): A(f"v_sub_f32 v{fSt+4*w}, v{fSt+4*w}, v{I+16}")
        for w in range(4): A(f"v_exp_f32 v{fSt+4*w}, v{fSt+4*w}")
        for k in range(5): A(f"v_mov_b32 v{I+4*k+3}, v{fTag}")
        A(f"v_mul_f32 v{I+17}, v{fSt}, v{fSt+1}")
        A(f"v_mul_f32 v{I+18}, v{fSt}, v{fSt+2}")
        for w in range(1, 4):
            A(f"v_fmac_f32 v{I+17}, v{fSt+4*w}, v{fSt+4*w+1}")
            A(f"v_fmac_f32 v{I+18}, v{fSt+4*w}, v{fSt+4*w+2}")
        for w in range(4):
            A(f"s_waitcnt lgkmcnt({9 - 3*w})")
            for k in range(12):
                o = I + (k//3)*4 + k % 3
                if w == 0: A(f"v_fma_f32 v{o}, v{fO+k}, v{fSt}, -v{I+18}")
                else:      A(f"v_fmac_f32 v{o}, v{fO+12*w+k}, v{fSt+4*w}")
    def load(I, sb, off):
        A(f"s_add_u32 s{sT0}, s{sb}, {off}"); A(f"s_add_u32 s{sT1}, s{sb}, {off + 4096}")
        A(f"buffer_load_dwordx4 {vr(I+16, 4)}, v{fSta}, s[{SRD_L}:{SRD_L+3}], s{sT1} offen sc1")
        for k in range(nst):
            A(f"buffer_load_dwordx4 {vr(I+4*k, 4)}, v{fLin}, s[{SRD_L}:{SRD_L+3}], s{sT0} offen offset:{k*1024} sc1")
    def publish(I, sb, off):
        A(f"s_add_u32 s{sT0}, s{sb}, {off}"); A(f"s_add_u32 s{sT1}, s{sb}, {off + 4096}")
        for k in range(nst):
            A(f"buffer_store_dwordx4 {vr(I+4*k, 4)}, v{fLin}, s[{SRD_L}:{SRD_L+3}], s{sT0} offen offset:{k*1024} sc1")
        A("s_mov_b32 exec_lo, 0x00010001"); A("s_mov_b32 exec_hi, 0x00010001")
        A(f"buffer_store_dwordx4 {vr(I+16, 4)}, v{fSta}, s[{SRD_L}:{SRD_L+3}], s{sT1} offen sc1")
        A("s_mov_b64 exec, -1")
    def check(imgs):
        g = [I+4*k+3 for I in imgs for k in list(range(nst)) + [4]]
        A(f"v_xor_b32 v{fT}, v{fTag}, v{g[0]}")
        for r in g[1:]:
            A(f"v_xor_b32 v{fM}, v{fTag}, v{r}")
            A(f"v_or_b32 v{fT}, v{fT}, v{fM}")
        A(f"v_cmp_ne_u32 vcc, 0, v{fT}")
        A("s_nop 4")
        A("s_cmp_eq_u64 vcc, 0")
    def merge(imgs, shead, add):
        n = len(imgs)
        F = fSt
        if n == 3: A(f"v_max3_f32 v{fM}, v{imgs[0]+16}, v{imgs[1]+16}, v{imgs[2]+16}")
        else:      A(f"v_max_f32 v{fM}, v{imgs[0]+16}, v{imgs[-1]+16}")
        for p in range(n): A(f"v_sub_f32 v{F+p}, v{imgs[p]+16}, v{fM}")
        for p in range(n): A(f"v_exp_f32 v{F+p}, v{F+p}")
        A(f"v_lshrrev_b32 v{fT}, 1, v{fOff}")
        A(f"v_mul_f32 v{fL}, v{F}, v{imgs[0]+17}")
        for p in range(1, n): A(f"v_fmac_f32 v{fL}, v{F+p}, v{imgs[p]+17}")
        A(f"v_rcp_f32 v{fL}, v{fL}")
        A(f"s_add_u32 s{sT0}, s{shead}, {add}")
        A(f"s_mul_i32 s{sT0}, s{sT0}, 1536")
        for p in range(n): A(f"v_mul_f32 v{F+p}, v{F+p}, v{fL}")
        for k in range(12):
            o = (k//3)*4 + k % 3
            A(f"v_mul_f32 v{fO+k}, v{imgs[0]+o}, v{F}")
            for p in range(1, n): A(f"v_fmac_f32 v{fO+k}, v{imgs[p]+o}, v{F+p}")
        for k in range(6): A(f"v_cvt_pk_bf16_f32 v{fO+12+k}, v{fO+2*k}, v{fO+2*k+1}")
        for j in range(3):
            A(f"buffer_store_dwordx2 {vr(fO+12+2*j, 2)}, v{fT}, s[{SRD_O}:{SRD_O+3}], s{sT0} offen offset:{j*128}")
    A("s_cmp_eq_u32 s2, 255")
    A("s_cbranch_scc1 L_fsolo")
    A(f"s_cmp_eq_u32 s{sP}, 1")
    A("s_cbranch_scc1 L_fmid")

    A.c("outer workgroup: owns a region-1 head, helps with the region-2 head")
    barriers(89)
    combine(E[0])
    barriers(39)
    if spec: load(E[1], sIb, IMG)
    A("s_barrier")
    A(f"s_cmp_eq_u32 s{sP}, 2")
    A("s_cbranch_scc1 L_fo2")
    for p in (0, 2):
        if p == 2: A.label("L_fo2")
        combine(R[p])
        if nofin: A("s_branch L_fin")
        publish(R[p], sIa, p*IMG)
        A(f"s_mov_b32 s{sDone}, 0")
        if spec:
            A(f"s_waitcnt vmcnt({nst+1})")
            check([E[1]])
            A(f"s_cbranch_scc0 L_fo3{p}")
            merge(E, sH1, 0)
            A(f"s_mov_b32 s{sDone}, 1")
            A("s_waitcnt vmcnt(0)")
            A(f"s_branch L_fo4{p}")
            A.label(f"L_fo3{p}")
        A("s_waitcnt vmcnt(0)")
        load(E[1], sIb, IMG)
        A.label(f"L_fo4{p}")
        load(R[2-p], sIa, (2-p)*IMG)
        if p == 0: A("s_branch L_fo5")
    A.label("L_fo5")
    load(R[1], sIa, IMG)
    A("s_waitcnt vmcnt(0)")
    check(R)
    A("s_cbranch_scc0 L_fo6")
    merge(R, sJ, 171)
    A.label("L_fo6")
    A(f"s_cmp_eq_u32 s{sDone}, 1")
    A("s_cbranch_scc1 L_fin")
    check([E[1]])
    A("s_cbranch_scc1 L_fo7")
    publish(E[0], sIb, 0)
    A("s_waitcnt vmcnt(0)")
    load(E[1], sIb, IMG)
    A("s_waitcnt vmcnt(0)")
    check([E[1]])
    A("s_cbranch_scc0 L_fin")
    A.label("L_fo7")
    merge(E, sH1, 0)
    A("s_branch L_fin")

    A.label("L_fmid")
    A.c("middle workgroup: helps with two region-1 heads, has the largest part of the region-2 head")
    A(f"v_and_b32 v{fHa}, 1, v{vLane}")
    A(f"v_mul_u32_u24 v{fHa}, {2*IMG}, v{fHa}")
    A(f"v_add_u32 v{fHa}, {4096 + 12}, v{fHa}")
    barriers(41)
    combine(E[0])
    barriers(40)
    combine(E[1])
    barriers(47 - early)
    if not nofin:
        publish(E[0], sIb, IMG)
        publish(E[1], sIb, 3*IMG)
    for k in range(early): A("s_barrier")
    if not nofin:
        load(R[0], sIa, 0); load(R[2], sIa, 2*IMG)
    A("s_barrier")
    combine(R[1])
    if nofin: A("s_branch L_fin")
    A("s_waitcnt vmcnt(0)")
    A(f"buffer_load_dword v{fH}, v{fHa}, s[{SRD_L}:{SRD_L+3}], s{sIb} offen sc1")
    check([R[0], R[2]])
    A("s_cbranch_scc1 L_fm1")
    publish(R[1], sIa, IMG)
    A("s_waitcnt vmcnt(0)")
    load(R[0], sIa, 0); load(R[2], sIa, 2*IMG)
    A("s_waitcnt vmcnt(0)")
    check([R[0], R[2]])
    A("s_cbranch_scc0 L_fm2")
    A.label("L_fm1")
    merge(R, sJ, 171)
    A("s_waitcnt vmcnt(3)")
    A.label("L_fm2")
    A.c("an owner that missed its helper image has published its own: finish that head here")
    A(f"v_cmp_eq_u32 vcc, v{fH}, v{fTag}")
    A("s_nop 4")
    A(f"s_and_b32 s{sDone}, vcc_lo, 3")
    A("s_cbranch_scc0 L_fin")
    for h in range(2):
        A(f"s_bitcmp1_b32 s{sDone}, {h}")
        A(f"s_cbranch_scc0 L_fm3{h}")
        A("s_waitcnt vmcnt(0)")
        load(R[0], sIb, 2*h*IMG)
        A("s_waitcnt vmcnt(0)")
        check([R[0]])
        A(f"s_cbranch_scc0 L_fm3{h}")
        merge([R[0], E[h]], sH1, h)
        A.label(f"L_fm3{h}")
    A("s_branch L_fin")

    A.label("L_fsolo")
    barriers(129)
    combine(R[0])
    merge([R[0]], sH1, 0)
    A.label("L_fin")
    if stamp: stamp_out(None)
    A.label("L_end")
    A("s_endpgm")

    kn = name + "_kernel"
    hdr = open(f"/code/{NAME}.s.ref").read().split("; Override launch")[0]
    nv = (NV + 7)//8*8
    s = hdr + f"""; @launch grid=(256,1,1) block=(448,1,1) lds={LDS}
.amdgcn_target "amdgcn-amd-amdhsa--gfx950"
.text
.globl {kn}
.p2align 8
.type {kn},@function
{kn}:
{A.text()}
.section .rodata,"a"
.p2align 6
.amdhsa_kernel {kn}
  .amdhsa_next_free_vgpr {nv}
  .amdhsa_next_free_sgpr 102
  .amdhsa_accum_offset {nv}
  .amdhsa_group_segment_fixed_size 0
  .amdhsa_kernarg_size 80
  .amdhsa_user_sgpr_count 2
  .amdhsa_user_sgpr_kernarg_segment_ptr 1
  .amdhsa_system_sgpr_workgroup_id_x 1
  .amdhsa_float_denorm_mode_32 3
.end_amdhsa_kernel
"""
    return s, kn, f"{kn}:256:448:{LDS}"

if __name__ == "__main__":
    kw = {}
    out = f"/code/{NAME}.s"
    for a in sys.argv[1:]:
        k, v = a.split("=")
        if k == "out": out = v
        else: kw[k] = eval(v)
    s, kn, spec = gen(**kw)
    open(out, "w").write(s)
    print(out, spec)
```

```python
import sys
from gen_kernel import Asm, VAlloc, vr, NAME, LOG2E, SCALE

def gen(thr0=18.4, lo=16, gain=5, per=4, late=200, lead=0, lead0=48, boost=0, boost0=63, gain2=24,  skip=4, gcap=12, clk=0, tl=None, of='', retry=2, rspec=True, sep=False, hi=25, top=20, hstep=2, align=0, ff=1.0, g2at=29/32, pk=False,
        stamp=False, nocomp=False, prio=3, early=1, first=1, spec=True, nofin=False, nst=4, qf='nt', slow=None,
        warm=8, name=NAME):
    KV_BYTES = 256*4096*768
    L_RING, L_PAR = 0, 73728
    L_VSZ = L_PAR + 17*3072
    L_STAT = L_VSZ + 16384
    L_SLOT = L_STAT + 256
    L_THR = L_SLOT + 4*3072
    L_TAG, L_MAX = L_THR + 4, L_THR + 64
    LDS = L_MAX + 192
    RIMG, WS_E = 3328, 1 << 20
    WS_STAMP, WS_FB = 8 << 20, 16 << 20
    RSTR = 4096*17 if sep else 4
    FB_END = WS_FB + 8*RSTR + (256//per + 1)*256
    TAGW = 5000
    A = Asm()
    va = VAlloc(1)
    vLane = va(); vW = va(); vT1 = va(); vT2 = va(); vT3 = va(); vT4 = va()
    vPa = va(4); vLogA = va(); vRing = va(); vRd = va()
    vM = va(); vLa = va(); vLb = va()
    vPar = va(16); vPad = va(2)
    vX = va(24, 4)
    vZ = va(24, 4); vS = va(24, 4)
    vB = vZ
    vRaw = va(24, 4)
    vKb = va(12, 4); vD = va(8, 4); vGb = va(); vMaxA = va(); vSlotA = va(); vStatA = va(); vMx = va(4, 4)
    vAcc = va(48, 4)
    vQ = vAcc
    vP = vAcc + 24
    vSum = va(); vCor = va(); vLg = va(); vSZ = va(4); vE = va(6)
    NV = va.n
    assert NV <= 256, NV
    sW, sBase, sT0, sT1, sT2, sBlk, sSlot, sPar = 56, 57, 58, 59, 60, 61, 62, 63
    sLog2e, sScale, sHi, s768 = 64, 65, 66, 67
    sC, sM, sLev, sProg, sRot, sHead, sInt, sLevSum = 68, 69, 70, 71, 72, 73, 74, 75
    sNow, sFbP, sRef = 96, 98, 84
    sC1, sC2, sLead, sJ, sP, sRnd = 3, 73, 72, 100, 101, 74
    WS_PART = 0
    SRD_L, SRD_KS, SRD_KZ, SRD_VS, SRD_VZ, SRD_Q, SRD_O, SRD_D = 24, 28, 32, 36, 40, 44, 48, 52
    def srd(d, p, nbytes):
        A(f"s_mov_b32 s{d}, s{p}"); A(f"s_and_b32 s{d+1}, s{p+1}, 0xffff")
        A(f"s_mov_b32 s{d+2}, {nbytes}"); A(f"s_mov_b32 s{d+3}, 0x20000")
    def tok_of(dst, n, isb, t, u):
        A(f"v_cmp_le_u32 vcc, 43, v{n}")
        A(f"v_add_u32 v{t}, 43, v{n}")
        A(f"v_mov_b32 v{u}, 42")
        A(f"v_cndmask_b32 v{dst}, v{n}, v{t}, vcc")
        A(f"v_cmp_le_u32 vcc, 86, v{n}")
        A(f"v_add_u32 v{t}, 43, v{dst}")
        A("s_nop 0")
        A(f"v_cndmask_b32 v{dst}, v{dst}, v{t}, vcc")
        A(f"v_cndmask_b32 v{u}, 43, v{u}, vcc")
        A(f"v_mad_u32_u24 v{dst}, v{u}, v{isb}, v{dst}")
    def stamp_out(idx_expr):
        A("s_waitcnt vmcnt(0)")
        A("s_memrealtime s[82:83]")
        A.label("L_fin2")
        A("s_getreg_b32 s84, hwreg(HW_REG_XCC_ID)")
        A("s_getreg_b32 s85, hwreg(HW_REG_HW_ID)")
        A("s_and_b32 s85, s85, 0xffff")
        A(f"s_or_b32 s85, s85, s{sLevSum}")
        A("s_waitcnt lgkmcnt(0)")
        srd(76, 22, WS_STAMP + 1792*32)
        for k, sr in enumerate((80, 81, 82, 83, 84, 85, 92, 94)): A(f"v_mov_b32 v{vX+k}, s{sr}")
        A("s_mul_i32 s85, s2, 7"); A(f"s_add_u32 s85, s85, s{sW}"); A("s_lshl_b32 s85, s85, 5")
        A(f"s_add_u32 s85, s85, {WS_STAMP}")
        A(f"v_mov_b32 v{vT3}, 0")
        A("s_mov_b64 exec, 1")
        A(f"buffer_store_dwordx4 {vr(vX, 4)}, v{vT3}, s[76:79], s85 offen")
        A(f"buffer_store_dwordx4 {vr(vX+4, 4)}, v{vT3}, s[76:79], s85 offen offset:16")

    A("s_cmp_ge_u32 s2, 256")
    A("s_cbranch_scc1 L_end")
    A("s_load_dwordx16 s[4:19], s[0:1], 0")
    A("s_load_dwordx4 s[20:23], s[0:1], 64")
    if stamp:
        A("s_memrealtime s[80:81]")
        A(f"s_mov_b32 s{sLevSum}, 0"); A("s_mov_b32 s92, 0"); A("s_mov_b32 s94, 0")
    if slow:
        A(f"s_mul_i32 s{sT0}, s2, {slow[0]}"); A(f"s_bfe_u32 s{sT0}, s{sT0}, {4 | (2 << 16)}")
        A(f"s_mul_i32 s{sT0}, s{sT0}, {slow[1]}")
        A.label("L_slow")
        A("s_sleep 32")
        A(f"s_sub_i32 s{sT0}, s{sT0}, 1")
        A(f"s_cmp_gt_i32 s{sT0}, 0")
        A("s_cbranch_scc1 L_slow")
    A(f"v_lshrrev_b32 v{vW}, 6, v0")
    A(f"v_and_b32 v{vLane}, 63, v0")
    A(f"v_readfirstlane_b32 s{sW}, v{vW}")
    A(f"s_mov_b32 s{s768}, 768")
    A.c("lane k < 16: vGb = global 256-token block visited at sequence position k")
    A(f"s_mul_i32 s{sJ}, s2, 43691"); A(f"s_lshr_b32 s{sJ}, s{sJ}, 17")
    A(f"s_mul_i32 s{sP}, s{sJ}, 3"); A(f"s_sub_u32 s{sP}, s2, s{sP}")
    A(f"s_cmp_eq_u32 s2, 255"); A(f"s_cselect_b32 s{sC2}, 16, 11")
    A(f"s_cmp_eq_u32 s{sP}, 1"); A(f"s_cselect_b32 s{sC1}, 5, s{sC2}"); A(f"s_cselect_b32 s{sC2}, 10, s{sC2}")
    if lead: A(f"s_cselect_b32 s{sLead}, {-2*lead}, {lead}")
    A(f"s_mul_i32 s{sT0}, s{sP}, 21"); A(f"s_add_u32 s{sT0}, s{sT0}, 1"); A(f"s_lshr_b32 s{sT0}, s{sT0}, 1")
    A(f"s_lshl_b32 s{sT1}, s{sJ}, 5"); A(f"s_add_u32 s{sBase}, s{sT0}, s{sT1}")
    A(f"s_mul_i32 s{sT0}, s{sP}, 11"); A(f"s_lshr_b32 s{sT0}, s{sT0}, 1")
    A(f"s_lshl_b32 s{sT1}, s{sJ}, 4"); A(f"s_add_u32 s{sT0}, s{sT0}, s{sT1}")
    A(f"s_add_u32 s{sT0}, s{sT0}, {171*16}"); A(f"s_sub_u32 s{sT0}, s{sT0}, s{sC2}")
    A(f"v_cmp_le_u32 vcc, s{sC2}, v{vLane}")
    A(f"v_add_u32 v{vT1}, s{sBase}, v{vLane}")
    A(f"v_add_u32 v{vT2}, s{sT0}, v{vLane}")
    A(f"v_cndmask_b32 v{vGb}, v{vT1}, v{vT2}, vcc")
    A(f"s_cmp_eq_u32 s{sW}, 4")
    A("s_cbranch_scc0 L_roles")

    sOff, sAcc, sThr, s1024, sAl, sBe, sJmp = sBase, sInt, sLev, sProg, sM, sSlot, sPar
    his = [(a, min(a+hstep-1, hi)) for a in range(top+1, hi+1, hstep)]
    lBase, lOdd, lIsB, lAddr, lThr, lThrA, lTa = 8, 11, 14, 17, 20, 21, 22
    if prio: A(f"s_setprio {prio}")
    A.c("a chain is rows A, A+1, B, B+1 (3 KiB) laid end to end; instruction k moves bytes [1024k, 1024k+1024)")
    for k in range(3):
        A(f"v_add_u32 v{lAddr+k}, {64*k}, v{vLane}")
        A(f"v_mul_u32_u24 v{lTa}, 1366, v{lAddr+k}")
        A(f"v_bfe_u32 v{lOdd+k}, v{lTa}, 16, 1"); A(f"v_lshrrev_b32 v{lIsB+k}, 17, v{lTa}")
        A(f"v_mul_u32_u24 v{lTa}, {41*768}, v{lIsB+k}")
        A(f"v_lshl_add_u32 v{lAddr+k}, v{lAddr+k}, 4, v{lTa}")
        A(f"v_mov_b32 v{lBase+k}, v{lAddr+k}")
    A(f"s_mov_b32 s{sC}, 0"); A(f"s_mov_b32 m0, {L_RING}"); A(f"s_movk_i32 s{s1024}, 1024")
    A(f"s_mul_i32 s{sOff}, s{sBase}, {256*768}")
    sMsk, s1536 = 84, 86
    A(f"s_mov_b32 s{sMsk}, {1 << 22:#x}"); A(f"s_mov_b32 s{sMsk+1}, {1 << (43-32):#x}"); A(f"s_movk_i32 s{s1536}, 1536")
    A(f"s_mov_b32 s{sThr}, {int(thr0)}"); A(f"s_mov_b32 s{sAcc}, 0")
    A(f"v_mov_b32 v{lThr}, {int(thr0*256)}"); A(f"v_mov_b32 v{lThrA}, {L_THR}")
    A(f"ds_write_b32 v{lThrA}, v{lThr}")
    A("s_waitcnt lgkmcnt(0)")
    if stamp: A("s_memrealtime s[92:93]")
    srd(SRD_L, 6, KV_BYTES)
    A.c("one chain per pass; the entry point sets the window; the next chain's lane offsets are formed between the loads")
    def chain_loop(a, b, tag):
        for n in range(a, b+1):
            A.label(f"L_lw{n}")
            A(f"s_waitcnt vmcnt({n})")
        def nxt(k):
            A(f"v_mad_i32_i24 v{lTa}, v{lIsB+k}, s{sAl}, v{lBase+k}")
            A(f"v_mad_u32_u24 v{lAddr+k}, v{lOdd+k}, s{sBe}, v{lTa}")
        A(f"buffer_load_dwordx4 v{lAddr}, s[{SRD_L}:{SRD_L+3}], s{sOff} offen nt lds")
        A(f"s_add_u32 m0, m0, s{s1024}")
        A(f"s_add_u32 s{sC}, s{sC}, 1")
        A(f"s_and_b32 s{sT0}, s{sC}, 63")
        A(f"s_cmp_ge_u32 s{sT0}, 43")
        A(f"s_cselect_b32 s{sAl}, -768, 0")
        A(f"buffer_load_dwordx4 v{lAddr+1}, s[{SRD_L}:{SRD_L+3}], s{sOff} offen nt lds")
        A(f"s_add_u32 m0, m0, s{s1024}")
        A(f"s_cmp_eq_u32 s{sT0}, 21")
        A(f"s_cselect_b32 s{sBe}, {43*768}, 0")
        A(f"v_mad_u32_u24 v{lAddr}, v{lOdd}, s{sBe}, v{lBase}")
        A(f"s_bitcmp1_b64 s[{sMsk}:{sMsk+1}], s{sT0}")
        A(f"s_cselect_b32 s{sJmp}, {45*768}, s{s1536}")
        A(f"buffer_load_dwordx4 v{lAddr+2}, s[{SRD_L}:{SRD_L+3}], s{sOff} offen nt lds")
        A(f"s_add_u32 m0, m0, s{s1024}")
        A(f"s_add_u32 s{sOff}, s{sOff}, s{sJmp}")
        nxt(1); nxt(2)
        A(f"s_and_b32 s{sT1}, s{sC}, 7")
        A("s_cbranch_scc0 L_lunit")
        A.label(f"L_lad{tag}")
        for n in range(b, a, -1):
            A(f"s_cmp_eq_u32 s{sThr}, {n}")
            A(f"s_cbranch_scc1 L_lw{n}")
        A(f"s_branch L_lw{a}")
    chain_loop(lo, top, "")
    A.label("L_lunit")
    A.c("unit boundary: release the previous unit, pick up the window size")
    if hi > 21: A("s_waitcnt vmcnt(24)")
    A(f"s_cmp_le_u32 s{sC}, 16")
    A("s_cbranch_scc1 L_lfirst")
    A.label("L_lbar")
    A("s_barrier")
    A.label("L_lnobar")
    A("s_waitcnt lgkmcnt(0)")
    A(f"v_readfirstlane_b32 s{sT1}, v{lThr}")
    A(f"ds_read_b32 v{lThr}, v{lThrA}")
    A(f"s_cmp_eq_u32 m0, {L_RING + 73728}")
    A(f"s_cselect_b32 m0, {L_RING}, m0")
    A(f"s_and_b32 s{sAcc}, s{sAcc}, 255")
    A(f"s_add_u32 s{sAcc}, s{sAcc}, s{sT1}")
    A(f"s_lshr_b32 s{sThr}, s{sAcc}, 8")
    A(f"s_cmp_eq_u32 s{sT0}, 0")
    if not his:
        A("s_cbranch_scc0 L_lad")
    else:
        A("s_cbranch_scc1 L_lblock")
        A.label("L_lsel")
        A(f"s_cmp_le_u32 s{sThr}, {top}")
        A("s_cbranch_scc1 L_lad")
        for a, b in his[:-1]:
            A(f"s_cmp_le_u32 s{sThr}, {b}")
            A(f"s_cbranch_scc1 L_lad{a}")
        A(f"s_branch L_lad{his[-1][0]}")
    back = "L_lsel" if his else "L_lad"
    A.label("L_lblock")
    A(f"s_bfe_u32 s{sT0}, s{sC}, {6 | (4 << 16)}")
    A(f"v_readlane_b32 s{sOff}, v{vGb}, s{sT0}")
    A("s_nop 3")
    A(f"s_mul_i32 s{sOff}, s{sOff}, {256*768}")
    A(f"s_cmp_eq_u32 s{sT0}, 0")
    A(f"s_cbranch_scc0 {back}")
    A(f"s_cmp_eq_u32 s{sC}, 2048")
    A("s_cbranch_scc1 L_ldone")
    A(f"s_mov_b32 s{SRD_L}, s8"); A(f"s_and_b32 s{SRD_L+1}, s9, 0xffff")
    A(f"s_branch {back}")
    A.label("L_lfirst")
    A(f"s_cmp_eq_u32 s{sC}, 8")
    A("s_cbranch_scc1 L_lnobar")
    A("s_barrier")
    A("s_branch L_lbar")
    A.label("L_ldone")
    A("s_waitcnt vmcnt(0)")
    A("s_barrier")
    if stamp:
        A("s_memrealtime s[82:83]"); A("s_barrier"); A("s_branch L_fin2")
    else: A("s_endpgm")
    for a, b in his: chain_loop(a, b, str(a))

    A.label("L_roles")
    A(f"s_cmp_lt_u32 s{sW}, 4")
    A("s_cbranch_scc1 L_consumer")
    A(f"s_cmp_eq_u32 s{sW}, 5")
    A("s_cbranch_scc1 L_finisher")

    pRep, pVal, pThrA, pLog = 8, 9, 10, 20
    if warm:
        A.c("a few workgroups pull the code into their L2 ahead of its first use")
        A(f"s_sub_u32 s{sT0}, s2, 16")
        A(f"s_cmp_lt_u32 s{sT0}, {warm}")
        A("s_cbranch_scc0 L_pw")
        A(f"s_getpc_b64 s[{SRD_Q}:{SRD_Q+1}]")
        A.label("L_pc")
        A(f"s_and_b32 s{SRD_Q+1}, s{SRD_Q+1}, 0xffff")
        A(f"s_mov_b32 s{SRD_Q+2}, L_end - L_pc"); A(f"s_mov_b32 s{SRD_Q+3}, 0x20000")
        A(f"v_lshlrev_b32 v{pVal}, 7, v{vLane}")
        for k in range(4):
            A(f"s_movk_i32 s{sT0}, {k*8192}")
            A(f"buffer_load_dword v{12+k}, v{pVal}, s[{SRD_Q}:{SRD_Q+3}], s{sT0} offen")
        A.label("L_pw")
    A("s_waitcnt lgkmcnt(0)")
    srd(SRD_D, 22, FB_END)
    A(f"s_mov_b32 s{sProg}, 0")
    A(f"s_add_u32 s{sFbP}, s22, {WS_FB}"); A(f"s_addc_u32 s{sFbP+1}, s23, 0")
    sRepo, sD, sSl, sFf = sBlk, sBase, 92 if not stamp else 76, 94 if not stamp else 78
    A.c("reporters: workgroups 0, 9, 2, 3, 12, 5, 6, 15")
    A(f"s_min_u32 s{sT0}, s2, 16"); A(f"s_lshr_b32 s{sRepo}, {sum(1 << w for w in (0, 9, 2, 3, 12, 5, 6, 15)):#x}, s{sT0}")
    A(f"s_and_b32 s{sRepo}, s{sRepo}, 1")
    A(f"s_and_b32 s{sT1}, s2, 7"); A(f"s_mul_i32 s{sT1}, s{sT1}, {RSTR}"); A(f"s_add_u32 s{sT1}, s{sT1}, {WS_FB}")
    if align:
        A.c("schedule offsets that make all workgroups leave region 1 together")
        tau = 652*per//8
        sl = [[round(-align*tau/33), round(align*tau/15)], [round(align*tau/15), round(-align*tau/9)]]
        fw = [[round(align*ff*256*20.5*x) for x in (1/32, -1/16)], [round(align*ff*256*20.5*x) for x in (-1/16, 1/8)]]
        for k in range(2):
            for dst, tab in ((sSl, sl), (sFf, fw)):
                A(f"s_mov_b32 s{dst+k}, {tab[0][k]}")
                A(f"s_cmp_eq_u32 s{sP}, 1"); A(f"s_cselect_b32 s{dst+k}, {tab[1][k]}, s{dst+k}")
                A(f"s_cmp_eq_u32 s2, 255"); A(f"s_cselect_b32 s{dst+k}, 0, s{dst+k}")
        A(f"s_mov_b32 s{sD}, 0")
    A(f"v_mov_b32 v{pRep}, s{sT1}"); A(f"v_mov_b32 v{pThrA}, {L_THR}")
    A(f"s_mov_b32 s{sNow}, 0")
    A("s_mov_b64 exec, 1")
    A("s_barrier")
    if clk:
        A("s_memtime s[76:77]"); A("s_memrealtime s[78:79]"); A("s_waitcnt lgkmcnt(0)")
        A("s_mov_b32 s92, 0"); A(f"s_mov_b32 s{sLev}, {int(thr0*256)}")
    sPrev, sOn = sSlot, sPar
    A(f"s_mov_b32 s{sOn}, 0")
    A.label("L_pace")
    for u in range(per):
        A("s_barrier")
        if u == 0:
            A(f"s_mov_b32 s{sPrev}, s{sNow}")
            A(f"s_memrealtime s[{sNow}:{sNow+1}]")
            A("s_waitcnt lgkmcnt(0)")
            if stamp == 5:
                A(f"s_lshr_b32 m0, s{sProg}, {8 + (8//per).bit_length() - 1}")
                A(f"s_sub_u32 s{sT0}, s{sNow}, s80")
                A(f"v_writelane_b32 v{pLog}, s{sT0}, m0")
                A("s_add_u32 m0, m0, 32"); A("s_nop 0")
                A(f"v_writelane_b32 v{pLog}, s{sLev}, m0")
            if lead:
                A(f"s_lshr_b32 s{sT0}, s{sProg}, 8")
                A(f"s_sub_i32 s{sT0}, s{sT0}, {lead0}")
                A(f"s_max_i32 s{sT0}, s{sT0}, 0")
                A(f"s_mul_i32 s{sT0}, s{sT0}, s{sLead}")
                A(f"s_add_u32 s{sNow}, s{sNow}, s{sT0}")
            if align:
                A(f"s_sub_u32 s{sNow}, s{sNow}, s{sD}")
                A(f"s_bfe_u32 s{sT0}, s{sProg}, {(8 + (8//per).bit_length() - 1) | (4 << 16)}")
                A(f"s_cmp_lt_u32 s{sT0}, s{sC2}")
                A(f"s_cselect_b32 s{sT0}, s{sSl}, s{sSl+1}")
                A(f"s_add_i32 s{sD}, s{sD}, s{sT0}")
            A.c("window from the lead over the reporters in the previous period")
            A(f"s_cmp_eq_u32 s{sOn}, 0")
            A("s_cbranch_scc1 L_pnext")
            A(f"s_mov_b32 s{sT0}, 0")
            for k in range(8):
                A(f"s_sub_i32 s{sT1}, s{sRef+k}, s{sPrev}")
                A(f"s_add_i32 s{sT2}, s{sT1}, {TAGW}")
                A(f"s_cmp_lt_u32 s{sT2}, {2*TAGW}")
                A(f"s_cselect_b32 s{sT1}, s{sT1}, {late}")
                A(f"s_add_i32 s{sT0}, s{sT0}, s{sT1}")
            if gcap:
                A(f"s_min_u32 s{sT1}, s{sOn}, {gcap}")
                A(f"s_cmp_gt_i32 s{sT0}, 0")
                A(f"s_cselect_b32 s{sOn}, s{sT1}, s{sOn}")
            A(f"s_mul_i32 s{sT0}, s{sT0}, s{sOn}")
            A(f"s_ashr_i32 s{sT0}, s{sT0}, 5")
            A(f"s_sub_i32 s{sT0}, {int(thr0*256)}, s{sT0}")
            if align:
                A(f"s_add_u32 s{sT1}, s{sProg}, 256")
                A(f"s_min_u32 s{sT1}, s{sT1}, {(256//per - 1)*256}")
                A(f"s_bfe_u32 s{sT1}, s{sT1}, {(8 + (8//per).bit_length() - 1) | (4 << 16)}")
                A(f"s_cmp_lt_u32 s{sT1}, s{sC2}")
                A(f"s_cselect_b32 s{sT1}, s{sFf}, s{sFf+1}")
                A(f"s_add_i32 s{sT0}, s{sT0}, s{sT1}")
            if boost:
                A(f"s_cmp_ge_u32 s{sProg}, {boost0*256}")
                A(f"s_cselect_b32 s{sT1}, {int(boost*256)}, 0")
                A(f"s_add_i32 s{sT0}, s{sT0}, s{sT1}")
            A(f"s_max_i32 s{sT0}, s{sT0}, {lo*256}")
            A(f"s_min_i32 s{sLev}, s{sT0}, {hi*256}")
            A(f"v_mov_b32 v{pVal}, s{sLev}")
            A(f"ds_write_b32 v{pThrA}, v{pVal}")
            A.label("L_pnext")
            A.c("gain of this period (0: period not used)")
            A(f"s_and_b32 s{sT0}, s{sProg}, {(skip-1)*256}")
            A(f"s_cselect_b32 s{sOn}, 0, {gain}")
            if gain2:
                A(f"s_cmp_ge_u32 s{sProg}, {int(g2at*256/per)*256}")
                A(f"s_cselect_b32 s{sOn}, {gain2}, s{sOn}")
            A(f"s_mul_i32 s{sT0}, s{sOn}, s{sRepo}")
            A(f"s_cmp_eq_u32 s{sT0}, 0")
            A("s_cbranch_scc1 L_pnorep")
            A(f"v_mov_b32 v{pVal+2}, s{sNow}")
            A(f"buffer_store_dword v{pVal+2}, v{pRep}, s[{SRD_D}:{SRD_D+3}], s{sProg} offen sc1")
            A.label("L_pnorep")
        if u == per - 1:
            A(f"s_cmp_eq_u32 s{sOn}, 0")
            A("s_cbranch_scc1 L_pnold")
            if sep:
                for k in range(8):
                    A(f"s_add_u32 s{sT0}, s{sProg}, {k*RSTR}")
                    A(f"s_load_dword s{sRef+k}, s[{sFbP}:{sFbP+1}], s{sT0}")
            else:
                A(f"s_load_dwordx8 s[{sRef}:{sRef+7}], s[{sFbP}:{sFbP+1}], s{sProg}")
            A.label("L_pnold")
    if clk == 2:
        A(f"s_cmp_lt_u32 s{sProg}, {56*256}"); A(f"s_cselect_b32 s93, s{sLev}, 0"); A("s_max_u32 s92, s92, s93")
    A(f"s_add_u32 s{sProg}, s{sProg}, 256")
    A(f"s_cmp_lt_u32 s{sProg}, {256//per*256}")
    A("s_cbranch_scc1 L_pace")
    A("s_waitcnt lgkmcnt(0)")
    if clk:
        A("s_memtime s[80:81]"); A("s_memrealtime s[82:83]"); A("s_waitcnt lgkmcnt(0)")
        A("s_barrier")
        A("s_sub_u32 s80, s80, s76"); A("s_sub_u32 s81, s82, s78")
        A(f"s_mul_i32 s81, s81, {15 if clk > 0 else 25}")
        A("s_sub_i32 s80, s80, s81" if clk > 0 else "s_sub_i32 s80, s81, s80")
        A("s_ashr_i32 s80, s80, 3"); A("s_add_i32 s80, s80, 30000"); A("s_min_u32 s80, s80, 100000")
        if clk == 2:
            A(f"s_sub_u32 s92, s92, {int(thr0*256)}"); A("s_lshr_b32 s92, s92, 6"); A("s_mul_i32 s92, s92, 5000")
            A("s_sub_u32 s80, s82, s78"); A("s_add_u32 s80, s80, s92"); A("s_add_u32 s80, s80, 10000"); A("s_min_u32 s80, s80, 200000")
        A.label("L_hold")
        A("s_sleep 4")
        A("s_memrealtime s[82:83]"); A("s_waitcnt lgkmcnt(0)")
        A("s_sub_u32 s81, s82, s78")
        A("s_cmp_lt_u32 s81, s80")
        A("s_cbranch_scc1 L_hold")
    A("s_mov_b64 exec, -1")
    if stamp and not clk: A("s_barrier")
    if stamp == 5:
        srd(76, 22, (9 << 20) + 65536)
        A(f"v_lshlrev_b32 v21, 2, v{vLane}")
        A(f"s_lshl_b32 s{sT0}, s2, 8"); A(f"s_add_u32 s{sT0}, s{sT0}, {9 << 20}")
        A(f"buffer_store_dword v{pLog}, v21, s[76:79], s{sT0} offen")
    if stamp: A("s_branch L_fin")
    else: A("s_endpgm")

    A.label("L_consumer")
    A.c("q fragments: lane = kg*16 + h'*4 + qi")
    A(f"v_lshrrev_b32 v{vT1}, 2, v{vLane}")
    A(f"v_lshlrev_b32 v{vT1}, 3, v{vT1}")
    A(f"v_and_b32 v{vT2}, 3, v{vLane}")
    A(f"v_mul_u32_u24 v{vT3}, 384, v{vT2}")
    A(f"v_add_u32 v{vLa}, v{vT1}, v{vT3}")
    A(f"v_lshlrev_b32 v{vRd}, 4, v{vLane}")
    A(f"s_mul_i32 s{sPar}, s{sW}, 3072")
    A(f"s_add_u32 s{sPar}, s{sPar}, {L_PAR + 3072}")
    for k in range(4):
        A(f"s_add_u32 s{sT0}, s{sW}, {4*k}")
        A(f"v_readlane_b32 s{sRef+k}, v{vGb}, s{sT0}")
    A(f"v_readlane_b32 s{sRef+4}, v{vGb}, 0")
    A(f"s_min_u32 s{sT0}, s{sC1}, 15")
    A(f"v_readlane_b32 s{sRef+5}, v{vGb}, s{sT0}")
    A(f"v_readlane_b32 s{sRef+6}, v{vGb}, 15")
    A("s_waitcnt lgkmcnt(0)")
    srd(SRD_KZ, 12, 256*24576); srd(SRD_KS, 10, 256*24576)
    if stamp == 3: A("s_memrealtime s[92:93]")
    def par_dma(ks):
        A("s_mov_b32 exec_hi, 0xffff")
        for k in ks:
            A(f"s_add_u32 m0, s{sPar}, {k*4*3072}")
            A(f"s_mul_i32 s{sT0}, s{sRef+k}, 1536")
            for a, sr in enumerate((SRD_KZ, SRD_KS)):
                A(f"buffer_load_dwordx4 v{vRd}, s[{sr}:{sr+3}], s{sT0} offen nt lds")
                A(f"buffer_load_dwordx4 v{vRd}, s[{sr}:{sr+3}], s{sT0} offen offset:768 nt lds")
                if a == 0:
                    A("s_add_u32 m0, m0, 1536"); A("s_nop 0")
        A("s_mov_b32 exec_hi, -1")
    def vsz_dma():
        srd(SRD_VS, 14, 256*8192); srd(SRD_VZ, 16, 256*8192)
        A("s_mov_b32 exec_hi, 0")
        A(f"s_lshl_b32 s{sT2}, s{sW}, 10")
        for k in range(4):
            A(f"s_add_u32 m0, s{sT2}, {L_VSZ + k*4096}")
            A(f"s_lshl_b32 s{sT0}, s{sRef+k}, 9")
            A(f"buffer_load_dwordx4 v{vRd}, s[{SRD_VS}:{SRD_VS+3}], s{sT0} offen nt lds")
            A("s_add_u32 m0, m0, 512"); A("s_nop 0")
            A(f"buffer_load_dwordx4 v{vRd}, s[{SRD_VZ}:{SRD_VZ+3}], s{sT0} offen nt lds")
        A("s_mov_b32 exec_hi, -1")
    def q_loads(rs_):
        for r in rs_:
            A(f"s_lshr_b32 s{sT0}, s{sRef+4+r}, 4")
            A(f"s_mul_i32 s{sT0}, s{sT0}, 1536")
            for j in range(3):
                A(f"buffer_load_dwordx2 {vr(vQ + r*6 + j*2, 2)}, v{vLa}, s[{SRD_Q}:{SRD_Q+3}], s{sT0} offen offset:{j*128} {qf}")
    par_dma(range(first))
    srd(SRD_Q, 4, 256*1536)
    q_loads([0])
    if stamp == 4: A("s_memrealtime s[92:93]")
    A(f"s_mov_b32 s{sLog2e}, {LOG2E:#x}"); A(f"s_mov_b32 s{sScale}, {SCALE:#x}")
    A(f"s_mov_b32 s{sHi}, 0xffff0000")
    A.c("K param LDS addresses: (tok>>6)*384 + (kg*4+h)*8")
    n0, isb, part = vX, vX+1, vX+2
    A(f"v_bfe_u32 v{n0}, v{vLane}, 2, 1"); A(f"v_lshl_add_u32 v{n0}, v{vW}, 2, v{n0}")
    A(f"v_bfe_u32 v{isb}, v{vLane}, 3, 1")
    A(f"v_lshrrev_b32 v{part}, 4, v{vLane}"); A(f"v_lshl_add_u32 v{part}, v{part}, 2, v{vT2}")
    A(f"v_lshlrev_b32 v{part}, 3, v{part}"); A(f"v_add_u32 v{part}, {L_PAR}, v{part}")
    A(f"s_movk_i32 s{sT0}, 384")
    for i in range(8):
        for e in range(2):
            d = vPar + 2*i + e
            A(f"v_add_u32 v{vT1}, {16*i + 2*e}, v{n0}")
            tok_of(d, vT1, isb, vT3, vT4)
            A(f"v_lshrrev_b32 v{d}, 6, v{d}")
            A(f"v_mad_u32_u24 v{d}, v{d}, s{sT0}, v{part}")
    A.c("P layout: lane = t*16 + b*4 + qi ; n = 64g + 16b + 4w + 2e + (t&1)")
    A(f"v_bfe_u32 v{n0}, v{vLane}, 4, 1"); A(f"v_lshl_add_u32 v{n0}, v{vW}, 2, v{n0}")
    A(f"v_bfe_u32 v{vT1}, v{vLane}, 2, 2"); A(f"v_lshl_add_u32 v{n0}, v{vT1}, 4, v{n0}")
    A(f"v_lshrrev_b32 v{isb}, 5, v{vLane}")
    A(f"s_mov_b32 s{sT0}, {L_VSZ}")
    for g in range(2):
        for e in range(2):
            d = vPa + 2*g + e
            A(f"v_add_u32 v{vT1}, {64*g + 2*e}, v{n0}")
            tok_of(d, vT1, isb, vT3, vT4)
            A(f"v_lshl_add_u32 v{d}, v{d}, 1, s{sT0}")
    A(f"v_lshlrev_b32 v{vLogA}, 2, v{vLane}")
    A(f"v_lshl_add_u32 v{vLogA}, v{vW}, 9, v{vLogA}")
    A(f"v_add_u32 v{vLogA}, {L_PAR}, v{vLogA}")
    def ring_addr(kind):
        if kind == "K":
            A(f"v_bfe_u32 v{vT1}, v{vLane}, 2, 2")
            A(f"v_lshrrev_b32 v{vT2}, 4, v{vLane}"); A(f"v_and_b32 v{vT3}, 3, v{vLane}")
            A(f"v_lshl_add_u32 v{vT2}, v{vT2}, 2, v{vT3}")
        else:
            A(f"v_lshrrev_b32 v{vT1}, 4, v{vLane}"); A(f"v_and_b32 v{vT2}, 15, v{vLane}")
        A(f"v_lshl_add_u32 v{vT1}, v{vW}, 3, v{vT1}")
        A(f"v_mul_u32_u24 v{vT1}, 768, v{vT1}")
        A(f"v_lshl_add_u32 v{vRing}, v{vT2}, 4, v{vT1}")
    ring_addr("K")
    A(f"v_and_b32 v{vT1}, 3, v{vLane}")
    A(f"v_lshl_add_u32 v{vMaxA}, v{vT1}, 2, v{vW}")
    A(f"v_lshlrev_b32 v{vMaxA}, 2, v{vMaxA}"); A(f"v_add_u32 v{vMaxA}, {L_MAX}, v{vMaxA}")
    A(f"v_mov_b32 v{vM}, 0xff800000")
    par_dma(range(first, 4))
    vsz_dma()
    q_loads([1, 2])
    A(f"s_mov_b32 s{sBlk}, 0"); A(f"s_mov_b32 s{sSlot}, {L_RING}"); A(f"s_movk_i32 s{sPar}, 3072")
    if stamp == 4: A("s_memrealtime s[94:95]")
    A(f"s_waitcnt vmcnt({4*(4-first) + 14})")
    if stamp == 3: A("s_memrealtime s[94:95]")
    A("s_barrier")
    if stamp and stamp not in (3, 4): A("s_memrealtime s[92:93]")

    def par_reads(i):
        out = [f"v_add_u32 v{vPad+e}, s{sPar}, v{vPar+2*i+e}" for e in range(2)]
        for e in range(2):
            for j in range(3):
                out.append(f"ds_read_b64 {vr(vRaw+e*12+j*4, 2)}, v{vPad+e} offset:{j*128}")
                out.append(f"ds_read_b64 {vr(vRaw+e*12+j*4+2, 2)}, v{vPad+e} offset:{1536 + j*128}")
        return out
    def par_unpack():
        A("s_waitcnt lgkmcnt(0)")
        for k in range(6):
            for dst, src in ((vZ+4*k, vRaw+4*k), (vS+4*k, vRaw+4*k+2)):
                for h in range(2):
                    A(f"v_lshlrev_b32 v{dst+2*h}, 16, v{src+h}")
                    A(f"v_and_b32 v{dst+2*h+1}, s{sHi}, v{src+h}")
    def fetch_unit(order=range(6), pre=()):
        A(f"v_add_u32 v{vRd}, s{sSlot}, v{vRing}")
        A(f"s_add_u32 s{sSlot}, s{sSlot}, 24576")
        A(f"s_cmp_eq_u32 s{sSlot}, {L_RING + 73728}")
        A(f"s_cselect_b32 s{sSlot}, {L_RING}, s{sSlot}")
        A("s_barrier")
        if nocomp: return
        for x in pre: A(x)
        for k in order:
            A(f"ds_read_b128 {vr(vX+4*k, 4)}, v{vRd} offset:{(k//3)*3072 + (k % 3)*256}")
    def dpp_sum(e, b):
        D = vD + 4*e
        L = vLa if e == 0 else vLb
        t = vT1 + e
        return [f"v_add_f32_dpp v{t}, v{D+(b+1) % 4}, v{D+b} row_ror:12 row_mask:0xf bank_mask:0xf",
                f"v_add_f32_dpp v{t}, v{D+(b+2) % 4}, v{t} row_ror:8 row_mask:0xf bank_mask:0xf",
                f"v_add_f32_dpp v{L}, v{D+(b+3) % 4}, v{t} row_ror:4 row_mask:0xf bank_mask:{1 << b:#x}"]

    def xlane(op, r, t):
        A("s_nop 1")
        A(f"{op}_dpp v{r}, v{r}, v{r} row_ror:4 row_mask:0xf bank_mask:0xf")
        A("s_nop 1")
        A(f"{op}_dpp v{r}, v{r}, v{r} row_ror:8 row_mask:0xf bank_mask:0xf")
        for sw in ("v_permlane16_swap_b32", "v_permlane32_swap_b32"):
            A(f"v_mov_b32 v{t}, v{r}")
            A("s_nop 1")
            A(f"{sw} v{r}, v{t}")
            A(f"{op} v{r}, v{r}, v{t}")
    for x in par_reads(0): A(x)
    par_unpack()
    A.label("L_kblk")
    for i in range(8):
        b = i % 4
        A.c(f"K step {i}")
        if i == 4: A("s_waitcnt vmcnt(0)")
        fetch_unit()
        if nocomp: continue
        for e in range(2):
            o = e*12
            A(f"s_waitcnt lgkmcnt({3 - 3*e})")
            for k in range(12): A(f"v_cvt_f32_i32 v{vX+o+k}, v{vX+o+k}")
            if pk:
                for k in range(0, 12, 2): A(f"v_pk_add_f32 {vr(vX+o+k, 2)}, {vr(vX+o+k, 2)}, {vr(vZ+o+k, 2)} neg_lo:[0,1] neg_hi:[0,1]")
            else:
                for k in range(12): A(f"v_sub_f32 v{vX+o+k}, v{vX+o+k}, v{vZ+o+k}")
            for k in range(12): A(f"v_cvt_pk_bf16_f32 v{vX+o+k}, 0, v{vX+o+k}")
            if pk:
                for k in range(0, 12, 2): A(f"v_pk_mul_f32 {vr(vX+o+k, 2)}, {vr(vX+o+k, 2)}, {vr(vS+o+k, 2)}")
            else:
                for k in range(12): A(f"v_mul_f32 v{vX+o+k}, v{vX+o+k}, v{vS+o+k}")
            packs = [f"v_cvt_pk_bf16_f32 v{vKb+e*6+k}, v{vX+o+2*k}, v{vX+o+2*k+1}" for k in range(6)]
            if e == 1:
                d = dpp_sum(0, b)
                packs = packs[0:2] + d[0:1] + packs[2:4] + d[1:2] + packs[4:6] + d[2:3]
            for x in packs: A(x)
            D = vr(vD+4*e, 4)
            for j in range(3):
                A(f"v_mfma_f32_16x16x16_bf16 {D}, {vr(vKb+e*6+2*j, 2)}, {vr(vQ+2*j, 2)}, {'0' if j == 0 else D}")
        if i == 7: A(f"s_add_u32 s{sPar}, s{sPar}, 3072")
        pr = par_reads((i+1) % 8)
        d = dpp_sum(1, b)
        for x in pr[:9] + d[0:1] + pr[9:11] + d[1:2] + pr[11:14] + d[2:3]: A(x)
        if b == 3:
            A(f"v_cvt_pk_bf16_f32 v{vT1}, 0, v{vLa}")
            A(f"v_cvt_pk_bf16_f32 v{vT2}, 0, v{vLb}")
            A(f"v_mul_f32 v{vT1}, s{sScale}, v{vT1}")
            A(f"v_mul_f32 v{vT2}, s{sScale}, v{vT2}")
            A(f"v_cvt_pk_bf16_f32 v{vT3}, v{vT1}, v{vT2}")
            A(f"v_max3_f32 v{vM}, v{vM}, v{vT1}, v{vT2}")
            A(f"ds_write_b32 v{vLogA}, v{vT3} offset:{(i//4)*256}")
        par_unpack()
    def round_end_test(loop):
        A(f"s_add_u32 s{sBlk}, s{sBlk}, 1")
        A(f"s_cmp_eq_u32 s{sBlk}, s{sC1}")
        A(f"s_cbranch_scc1 {loop}_end")
        A(f"s_cmp_eq_u32 s{sBlk}, s{sC2}")
        A(f"s_cbranch_scc1 {loop}_end")
        A(f"s_cmp_lt_u32 s{sBlk}, 16")
        A(f"s_cbranch_scc1 {loop}")
        A.label(f"{loop}_end")
    A(f"v_add_u32 v{vLogA}, 3072, v{vLogA}")
    round_end_test("L_kblk")
    A.c("end of a K round: publish the wave's max, rotate q")
    xlane("v_max_f32", vM, vT1)
    A(f"v_cvt_pk_bf16_f32 v{vM}, 0, v{vM}")
    A(f"v_mul_f32 v{vM}, s{sLog2e}, v{vM}")
    A(f"ds_write_b32 v{vMaxA}, v{vM}")
    A(f"v_add_u32 v{vMaxA}, 64, v{vMaxA}")
    for k in range(12): A(f"v_mov_b32 v{vQ+k}, v{vQ+6+k}")
    A(f"v_mov_b32 v{vM}, 0xff800000")
    A("s_waitcnt lgkmcnt(0)")
    A(f"s_cmp_lt_u32 s{sBlk}, 16")
    A("s_cbranch_scc1 L_kblk")

    if stamp and stamp not in (3, 4): A("s_memrealtime s[94:95]")
    def p_reads(g):
        return [f"v_add_u32 v{vSZ}, s{sPar}, v{vPa+2*g}",
                f"v_add_u32 v{vSZ+1}, s{sPar}, v{vPa+2*g+1}",
                f"ds_read_b32 v{vLg}, v{vLogA} offset:{g*256}",
                f"ds_read_u16 v{vSZ+2}, v{vSZ} offset:512",
                f"ds_read_u16 v{vSZ+3}, v{vSZ+1} offset:512",
                f"ds_read_u16 v{vSZ}, v{vSZ}",
                f"ds_read_u16 v{vSZ+1}, v{vSZ+1}"]
    ring_addr("V")
    A(f"v_subrev_u32 v{vLogA}, {16*3072}, v{vLogA}")
    A(f"s_mov_b32 s{sPar}, 0")
    for x in p_reads(0): A(x)
    for k in range(16): A(f"v_mov_b32 v{vP+k}, 0")
    A(f"s_mov_b32 s{sBlk}, 0")
    A.c("addresses for the end of a round and for the last hand-off (lane = ch*4 + qi, wave = third)")
    rRd, rSt, rLin, rSta, rOut, rTag = range(vPar, vPar+6)
    sLast, sImg, sOwn, sOut, sSel = sRnd, sC, sProg, sBase, 84
    A(f"v_and_b32 v{vT1}, 3, v{vLane}")
    A(f"v_lshlrev_b32 v{rSta}, 4, v{vT1}")
    A(f"v_add_u32 v{vMaxA}, {L_MAX}, v{rSta}")
    A(f"v_add_u32 v{rSt}, {L_STAT}, v{rSta}")
    A(f"v_lshl_add_u32 v{vStatA}, v{vW}, 6, v{rSt}")
    A(f"v_lshl_add_u32 v{rSta}, v{vW}, 6, v{rSta}"); A(f"v_add_u32 v{rSta}, 3072, v{rSta}")
    A(f"v_mul_u32_u24 v{vSlotA}, 3072, v{vW}"); A(f"v_lshl_add_u32 v{vSlotA}, v{vLane}, 4, v{vSlotA}")
    A(f"v_add_u32 v{vSlotA}, {L_SLOT}, v{vSlotA}")
    A(f"v_lshlrev_b32 v{vT2}, 10, v{vW}")
    A(f"v_lshl_add_u32 v{rLin}, v{vLane}, 4, v{vT2}")
    A(f"v_lshl_add_u32 v{rRd}, v{vLane}, 2, v{vT2}"); A(f"v_add_u32 v{rRd}, {L_SLOT}, v{rRd}")
    A(f"v_mul_u32_u24 v{rOut}, 384, v{vT1}"); A(f"v_lshrrev_b32 v{vT2}, 2, v{vLane}")
    A(f"v_lshl_add_u32 v{rOut}, v{vT2}, 3, v{rOut}"); A(f"v_lshl_add_u32 v{rOut}, v{vW}, 7, v{rOut}")
    srd(SRD_O, 18, 256*1536); srd(SRD_L, 22, 255*RIMG)
    A(f"s_mul_i32 s{sImg}, s{sJ}, {3*RIMG}"); A(f"s_mul_i32 s{sOwn}, s2, {RIMG}")
    A(f"s_add_u32 s{sImg+1}, s{sImg}, {RIMG}"); A(f"s_add_u32 s{sImg+2}, s{sImg}, {2*RIMG}")
    A(f"s_add_u32 s{sOut}, s{sJ}, 171"); A("s_cmp_eq_u32 s2, 255"); A(f"s_cselect_b32 s{sOut}, 170, s{sOut}")
    A(f"s_mul_i32 s{sOut}, s{sOut}, 1536")
    for c in range(4): A(f"s_mov_b32 s{sSel+c}, {0x07060500 | c:#x}")
    A(f"s_mov_b32 s{sSel+4}, 0x0c0c0400"); A(f"s_mov_b32 s{sSel+5}, 0x04000c0c"); A(f"s_mov_b32 s{sSel+6}, 0xffffff00")
    if stamp: A("s_waitcnt lgkmcnt(0)")

    A.label("L_vround")
    for k in range(12): A(f"v_mov_b32 v{vAcc+k}, 0")
    A(f"v_mov_b32 v{vSum}, 0"); A(f"v_mov_b32 v{vCor}, 0")
    A.label("L_vblk")
    A(f"s_add_u32 s{sBlk}, s{sBlk}, 1")
    A(f"s_cmp_eq_u32 s{sBlk}, s{sC1}"); A(f"s_cselect_b32 s{sLast}, 1, 0")
    A(f"s_cmp_eq_u32 s{sBlk}, s{sC2}"); A(f"s_cselect_b32 s{sLast}, 1, s{sLast}")
    A(f"s_cmp_eq_u32 s{sBlk}, 16"); A(f"s_cselect_b32 s{sLast}, 1, s{sLast}")
    for i in range(8):
        b, g = i % 4, i//4
        A.c(f"V step {i}")
        fetch_unit((0, 3, 1, 4, 2, 5), [f"ds_read_b128 {vr(vMx, 4)}, v{vMaxA}"] if i == 0 else ())
        if nocomp: continue
        if i == 0:
            A("s_waitcnt lgkmcnt(6)")
            A(f"v_max_f32 v{vM}, v{vMx}, v{vMx+1}")
            A(f"v_max3_f32 v{vM}, v{vM}, v{vMx+2}, v{vMx+3}")
        if b == 0:
            E = vE
            for x in ["s_waitcnt lgkmcnt(6)",
                      f"v_lshlrev_b32 v{E}, 16, v{vLg}",
                      f"v_and_b32 v{E+1}, s{sHi}, v{vLg}",
                      f"v_fma_f32 v{E}, v{E}, s{sLog2e}, -v{vM}",
                      f"v_fma_f32 v{E+1}, v{E+1}, s{sLog2e}, -v{vM}",
                      f"v_exp_f32 v{E}, v{E}",
                      f"v_exp_f32 v{E+1}, v{E+1}",
                      f"v_lshlrev_b32 v{E+2}, 16, v{vSZ}",
                      f"v_lshlrev_b32 v{E+3}, 16, v{vSZ+1}",
                      f"v_mul_f32 v{E+2}, v{E}, v{E+2}",
                      f"v_mul_f32 v{E+3}, v{E+1}, v{E+3}",
                      f"v_add_f32 v{vSum}, v{vSum}, v{E}",
                      f"v_cvt_pk_bf16_f32 v{E+2}, v{E+2}, v{E+3}",
                      f"v_add_f32 v{vSum}, v{vSum}, v{E+1}",
                      f"v_lshlrev_b32 v{E+4}, 16, v{vSZ+2}",
                      f"v_lshlrev_b32 v{E+5}, 16, v{vSZ+3}",
                      f"v_lshlrev_b32 v{E}, 16, v{E+2}",
                      f"v_and_b32 v{E+1}, s{sHi}, v{E+2}",
                      f"v_fmac_f32 v{vCor}, v{E}, v{E+4}",
                      f"v_fmac_f32 v{vCor}, v{E+1}, v{E+5}"]: A(x)
            for c in range(4):
                for k in range(4):
                    ctl = "quad_perm:[0,1,2,3]" if k == c else f"row_ror:{4*((c - k) % 4)}"
                    A(f"v_mov_b32_dpp v{vP+4*c+k}, v{E+2} {ctl} row_mask:0xf bank_mask:{1 << c:#x}")
        mf = lambda k: f"v_mfma_f32_16x16x32_bf16 {vr(vAcc+4*(k//4), 4)}, {vr(vP+4*(k % 4), 4)}, {vr(vB+4*k, 4)}, {vr(vAcc+4*(k//4), 4)}"
        for j in range(3):
            A(f"s_waitcnt lgkmcnt({4 - 2*j})")
            va_ = [f"v_cvt_f32_i32 v{vX+o+4*j+c}, v{vX+o+4*j+c}" for o in (0, 12) for c in range(4)]
            va_ += [f"v_cvt_pk_bf16_f32 v{vB+(4*j+c)*4+b}, v{vX+4*j+c}, v{vX+12+4*j+c}" for c in range(4)]
            for n, x in enumerate(va_):
                A(x)
                if b == 3 and j and n % 3 == 2: A(mf(4*(j-1) + n//3))
        if b == 3:
            for k in range(8, 12): A(mf(k))
        if b == 0:
            if g == 1:
                A(f"v_add_u32 v{vLogA}, 3072, v{vLogA}")
                A(f"s_add_u32 s{sPar}, s{sPar}, 1024")
            for x in p_reads(1-g): A(x)
        if i == 5:
            A.c("last block of a round: its (m, l, c) are final, park them in LDS")
            A(f"s_cmp_eq_u32 s{sLast}, 0")
            A("s_cbranch_scc1 L_vnostat")
            A(f"v_mov_b32 v{rTag}, {L_TAG}")
            A(f"ds_read_b32 v{rTag}, v{rTag}")
            xlane("v_add_f32", vSum, vT1)
            xlane("v_add_f32", vCor, vT1)
            A(f"v_mov_b32 v{vMx}, v{vM}"); A(f"v_mov_b32 v{vMx+1}, v{vSum}"); A(f"v_mov_b32 v{vMx+2}, v{vCor}")
            A(f"ds_write_b128 v{vStatA}, {vr(vMx, 4)}")
            A(f"v_add_u32 v{vMaxA}, 64, v{vMaxA}")
            A.label("L_vnostat")
    A(f"s_cmp_eq_u32 s{sLast}, 0")
    A("s_cbranch_scc1 L_vblk")

    A.c("end of a V round: lane c*16+ch holds O[query][64*third + 4*ch + c]; park it in LDS")
    A(f"ds_write_b128 v{vSlotA}, {vr(vAcc, 4)}")
    A("s_nop 0")
    A(f"ds_write_b128 v{vSlotA}, {vr(vAcc+4, 4)} offset:1024")
    A(f"s_cmp_lt_u32 s{sBlk}, 16")
    A("s_nop 1")
    A(f"ds_write_b128 v{vSlotA}, {vr(vAcc+8, 4)} offset:2048")
    A("s_waitcnt lgkmcnt(0)")
    A("s_cbranch_scc1 L_vround")
    A("s_barrier")
    if tl and 0 in tl: A("s_memrealtime s[92:93]"); A("s_waitcnt lgkmcnt(0)")

    A(f"s_cmp_eq_u32 s{sW}, 3")
    A("s_cbranch_scc1 L_fin")
    St, O, I = vX, vZ, [vAcc, vAcc+8, vAcc+16]
    rn = [0]
    def by_part(body):
        rn[0] += 1
        for p in range(3):
            if p < 2:
                A(f"s_cmp_eq_u32 s{sP}, {p}")
                A(f"s_cbranch_scc0 L_rp{rn[0]}{p}")
            body(p)
            if p < 2:
                A(f"s_branch L_rp{rn[0]}2")
                A.label(f"L_rp{rn[0]}{p}")
        A.label(f"L_rp{rn[0]}2")
    def r_loads(own):
        ps = [x for x in range(3) if x != own]
        for p in ps:
            A(f"buffer_load_dwordx4 {vr(I[p]+4, 4)}, v{rSta}, s[{SRD_L}:{SRD_L+3}], s{sImg+p} offen sc1")
        for p in ps:
            A(f"buffer_load_dwordx4 {vr(I[p], 4)}, v{rLin}, s[{SRD_L}:{SRD_L+3}], s{sImg+p} offen sc1")
    for w in range(4): A(f"ds_read_b128 {vr(St+4*w, 4)}, v{rSt} offset:{w*64}")
    for w in range(4):
        for h in range(2):
            A(f"ds_read2st64_b32 {vr(O+4*w+2*h, 2)}, v{rRd} offset0:{12*w+2*h} offset1:{12*w+2*h+1}")
    if rspec: by_part(r_loads)
    A("s_waitcnt lgkmcnt(8)")
    for k in (1, 2):
        A(f"v_add_f32 v{St+k}, v{St+k}, v{St+4+k}"); A(f"v_add_f32 v{St+8+k}, v{St+8+k}, v{St+12+k}")
    for k in (1, 2): A(f"v_add_f32 v{St+k}, v{St+k}, v{St+8+k}")
    A(f"v_mov_b32 v{St+3}, v{rTag}")
    A("s_waitcnt lgkmcnt(4)")
    for c in range(4): A(f"v_add_f32 v{O+c}, v{O+c}, v{O+4+c}")
    A("s_waitcnt lgkmcnt(0)")
    for c in range(4): A(f"v_add_f32 v{O+8+c}, v{O+8+c}, v{O+12+c}")
    for c in range(4): A(f"v_add_f32 v{O+c}, v{O+c}, v{O+8+c}")
    for c in range(4): A(f"v_sub_f32 v{O+c}, v{O+c}, v{St+2}")
    A("s_cmp_eq_u32 s2, 255")
    A("s_cbranch_scc1 L_rsolo")
    for c in range(4): A(f"v_perm_b32 v{O+c}, v{O+c}, v{rTag}, s{sSel+c}")
    if nofin: A("s_branch L_fin")
    if tl and 1 in tl: A("s_memrealtime s[94:95]")
    A(f"buffer_store_dwordx4 {vr(O, 4)}, v{rLin}, s[{SRD_L}:{SRD_L+3}], s{sOwn} offen sc1")
    A("s_mov_b64 exec, 15")
    A(f"buffer_store_dwordx4 {vr(St, 4)}, v{rSta}, s[{SRD_L}:{SRD_L+3}], s{sOwn} offen sc1")
    A("s_mov_b64 exec, -1")
    def own_image(p):
        for c in range(4):
            A(f"v_mov_b32 v{I[p]+c}, v{O+c}"); A(f"v_mov_b32 v{I[p]+4+c}, v{St+c}")
        if not rspec:
            A("s_waitcnt vmcnt(0)")
            if tl and 2 in tl: A("s_memrealtime s[92:93]")
            r_loads(p)
    by_part(own_image)
    def r_check(wa, wb):
        A(f"s_waitcnt vmcnt({wa})")
        for p in range(3): A(f"v_xor_b32 v{St+4+p}, v{I[p]+7}, v{rTag}")
        A(f"v_or3_b32 v{vT2}, v{St+4}, v{St+5}, v{St+6}")
        A(f"s_waitcnt vmcnt({wb})")
        for p in range(3):
            A(f"v_perm_b32 v{vT3}, v{I[p]+1}, v{I[p]}, s{sSel+4}")
            A(f"v_perm_b32 v{vT4}, v{I[p]+3}, v{I[p]+2}, s{sSel+5}")
            A(f"v_bitop3_b32 v{vT3}, v{vT3}, v{vT4}, v{rTag} bitop3:0x56")
            A(f"v_or_b32 v{vT2}, v{vT2}, v{vT3}")
        A(f"v_cmp_eq_u32 vcc, 0, v{vT2}")
    if rspec:
        r_check(4, 2)
        A("s_nop 4")
        A("s_cmp_eq_u64 vcc, -1")
        A("s_cbranch_scc1 L_rmerge")
        A("s_waitcnt vmcnt(0)")
        by_part(r_loads)
    r_check(2, 0)
    A.label("L_rmerge")
    if tl and 3 in tl: A("s_memrealtime s[94:95]")
    A.c("a lane that sees all three parts complete stores its four outputs")
    A(f"v_max3_f32 v{vT1}, v{I[0]+4}, v{I[1]+4}, v{I[2]+4}")
    for p in range(3): A(f"v_sub_f32 v{I[p]+4}, v{I[p]+4}, v{vT1}")
    for p in range(3): A(f"v_exp_f32 v{I[p]+4}, v{I[p]+4}")
    A("s_and_b64 exec, exec, vcc")
    A("s_cbranch_execz L_fin")
    for p in range(3):
        for c in range(4): A(f"v_and_b32 v{I[p]+c}, s{sSel+6}, v{I[p]+c}")
    A(f"v_mul_f32 v{St+1}, v{I[0]+4}, v{I[0]+5}")
    for p in (1, 2): A(f"v_fmac_f32 v{St+1}, v{I[p]+4}, v{I[p]+5}")
    for c in range(4):
        A(f"v_mul_f32 v{O+c}, v{I[0]+c}, v{I[0]+4}")
        for p in (1, 2): A(f"v_fmac_f32 v{O+c}, v{I[p]+c}, v{I[p]+4}")
    A.label("L_rsolo")
    A(f"v_rcp_f32 v{St+1}, v{St+1}")
    A("s_nop 0")
    for c in range(4): A(f"v_mul_f32 v{O+c}, v{O+c}, v{St+1}")
    for k in range(2): A(f"v_cvt_pk_bf16_f32 v{O+4+k}, v{O+2*k}, v{O+2*k+1}")
    A(f"buffer_store_dwordx2 {vr(O+4, 2)}, v{rOut}, s[{SRD_O}:{SRD_O+3}], s{sOut} offen {of}")
    A("s_branch L_fin")

    A.label("L_finisher")
    fOff, fLin, fTag, fM, fL, fT, fSta, fH, fHa = 8, 9, 10, 11, 12, 13, 14, 15, 7
    IMG = 4352
    fSt, fO = 16, 32
    E = [80, 100, 120]
    sN, sTag, sDone, sIb, sH1 = sM, sProg, sLev, sSlot, sPar
    A(f"v_and_b32 v{fSta}, 3, v{vLane}")
    A(f"v_mul_u32_u24 v{fOff}, 384, v{fSta}")
    A(f"v_lshrrev_b32 v{fT}, 2, v{vLane}")
    A(f"v_lshl_add_u32 v{fOff}, v{fT}, 3, v{fOff}")
    A(f"v_lshlrev_b32 v{fLin}, 4, v{vLane}")
    A(f"v_lshlrev_b32 v{fSta}, 4, v{fSta}")
    A(f"s_memrealtime s[{sNow}:{sNow+1}]")
    A("s_waitcnt lgkmcnt(0)")
    srd(SRD_O, 18, 256*1536); srd(SRD_D, 20, 256); srd(SRD_L, 22, WS_E + 340*IMG)
    def claim_tag():
        A(f"s_or_b32 s{sTag}, s{sNow}, 1")
        A(f"v_mov_b32 v{fSt}, s{sTag}"); A(f"v_mov_b32 v{fSt+1}, 0")
        A("s_mov_b64 exec, 1")
        A(f"buffer_atomic_cmpswap {vr(fSt, 2)}, v{fLin}, s[{SRD_D}:{SRD_D+3}], 0 offen sc0 sc1")
        A("s_mov_b64 exec, -1")
        A("s_waitcnt vmcnt(0)")
        A(f"v_readfirstlane_b32 s{sT0}, v{fSt}")
        A("s_nop 3")
        A(f"s_cmp_eq_u32 s{sT0}, 0")
        A(f"s_cselect_b32 s{sTag}, s{sTag}, s{sT0}")
    A("s_cmp_eq_u32 s2, 0")
    A("s_cbranch_scc0 L_fk")
    claim_tag()
    A.label("L_fk")
    uid = [0]
    def barriers(n):
        uid[0] += 1
        A(f"s_movk_i32 s{sN}, {n}")
        A.label(f"L_fb{uid[0]}")
        A("s_barrier")
        A(f"s_sub_u32 s{sN}, s{sN}, 1")
        A(f"s_cmp_lg_u32 s{sN}, 0")
        A(f"s_cbranch_scc1 L_fb{uid[0]}")
    barriers(128)
    A(f"s_load_dword s{sTag}, s[20:21], 0")
    A("s_barrier")
    A("s_waitcnt lgkmcnt(0)")
    A(f"s_cmp_eq_u32 s{sTag}, 0")
    A("s_cbranch_scc0 L_ftag")
    claim_tag()
    A.label("L_ftag")
    A(f"v_mov_b32 v{fTag}, s{sTag}")
    A(f"v_mov_b32 v{fT}, {L_TAG}")
    A(f"ds_write_b32 v{fT}, v{fTag}")
    A.c("image numbers of region-1 head h: 2h (owner), 2h+1 (helper)")
    A(f"s_lshr_b32 s{sH1}, s{sP}, 1"); A(f"s_lshl_b32 s{sT0}, s{sJ}, 1"); A(f"s_add_u32 s{sH1}, s{sH1}, s{sT0}")
    A(f"s_mul_i32 s{sIb}, s{sH1}, {2*IMG}"); A(f"s_add_u32 s{sIb}, s{sIb}, {WS_E}")
    A("s_waitcnt lgkmcnt(0)")
    def combine(I):
        A(f"v_add_u32 v{fT}, {L_STAT}, v{fSta}")
        A(f"v_lshlrev_b32 v{fM}, 2, v{vLane}"); A(f"v_add_u32 v{fM}, {L_SLOT}, v{fM}")
        for w in range(4): A(f"ds_read_b128 {vr(fSt+4*w, 4)}, v{fT} offset:{w*64}")
        for k in range(24):
            if k in (8, 16): A("s_waitcnt lgkmcnt(4)")
            A(f"ds_read2st64_b32 {vr(fO+2*k, 2)}, v{fM} offset0:{2*k} offset1:{2*k+1}")
        for k in range(5): A(f"v_mov_b32 v{I+4*k+3}, v{fTag}")
        A(f"v_mov_b32 v{I+16}, v{fSt}")
        for k in (1, 2):
            A(f"v_add_f32 v{fSt+k}, v{fSt+k}, v{fSt+4+k}"); A(f"v_add_f32 v{fSt+8+k}, v{fSt+8+k}, v{fSt+12+k}")
            A(f"v_add_f32 v{I+16+k}, v{fSt+k}, v{fSt+8+k}")
        A("s_waitcnt lgkmcnt(0)")
        for k in range(12):
            A(f"v_add_f32 v{fO+k}, v{fO+k}, v{fO+12+k}"); A(f"v_add_f32 v{fO+24+k}, v{fO+24+k}, v{fO+36+k}")
            A(f"v_add_f32 v{fO+k}, v{fO+k}, v{fO+24+k}")
            A(f"v_sub_f32 v{I + (k//3)*4 + k % 3}, v{fO+k}, v{I+18}")
    def load(I, sb, off):
        A(f"s_add_u32 s{sT0}, s{sb}, {off}"); A(f"s_add_u32 s{sT1}, s{sb}, {off + 4096}")
        A(f"buffer_load_dwordx4 {vr(I+16, 4)}, v{fSta}, s[{SRD_L}:{SRD_L+3}], s{sT1} offen sc1")
        for k in range(nst):
            A(f"buffer_load_dwordx4 {vr(I+4*k, 4)}, v{fLin}, s[{SRD_L}:{SRD_L+3}], s{sT0} offen offset:{k*1024} sc1")
    def publish(I, sb, off):
        A(f"s_add_u32 s{sT0}, s{sb}, {off}"); A(f"s_add_u32 s{sT1}, s{sb}, {off + 4096}")
        for k in range(nst):
            A(f"buffer_store_dwordx4 {vr(I+4*k, 4)}, v{fLin}, s[{SRD_L}:{SRD_L+3}], s{sT0} offen offset:{k*1024} sc1")
        A("s_mov_b64 exec, 15")
        A(f"buffer_store_dwordx4 {vr(I+16, 4)}, v{fSta}, s[{SRD_L}:{SRD_L+3}], s{sT1} offen sc1")
        A("s_mov_b64 exec, -1")
    def check(imgs):
        g = [I+4*k+3 for I in imgs for k in list(range(nst)) + [4]]
        A(f"v_xor_b32 v{fT}, v{fTag}, v{g[0]}")
        for r in g[1:]:
            A(f"v_xor_b32 v{fM}, v{fTag}, v{r}")
            A(f"v_or_b32 v{fT}, v{fT}, v{fM}")
        A(f"v_cmp_ne_u32 vcc, 0, v{fT}")
        A("s_nop 4")
        A("s_cmp_eq_u64 vcc, 0")
    def merge(imgs, shead, add):
        n = len(imgs)
        F = fSt
        if n == 3: A(f"v_max3_f32 v{fM}, v{imgs[0]+16}, v{imgs[1]+16}, v{imgs[2]+16}")
        else:      A(f"v_max_f32 v{fM}, v{imgs[0]+16}, v{imgs[-1]+16}")
        for p in range(n): A(f"v_sub_f32 v{F+p}, v{imgs[p]+16}, v{fM}")
        for p in range(n): A(f"v_exp_f32 v{F+p}, v{F+p}")
        A("s_nop 0")
        A(f"v_mul_f32 v{fL}, v{F}, v{imgs[0]+17}")
        for p in range(1, n): A(f"v_fmac_f32 v{fL}, v{F+p}, v{imgs[p]+17}")
        A(f"v_rcp_f32 v{fL}, v{fL}")
        A(f"s_add_u32 s{sT0}, s{shead}, {add}")
        A(f"s_mul_i32 s{sT0}, s{sT0}, 1536")
        for p in range(n): A(f"v_mul_f32 v{F+p}, v{F+p}, v{fL}")
        for k in range(12):
            o = (k//3)*4 + k % 3
            A(f"v_mul_f32 v{fO+k}, v{imgs[0]+o}, v{F}")
            for p in range(1, n): A(f"v_fmac_f32 v{fO+k}, v{imgs[p]+o}, v{F+p}")
        for k in range(6): A(f"v_cvt_pk_bf16_f32 v{fO+12+k}, v{fO+2*k}, v{fO+2*k+1}")
        for j in range(3):
            A(f"buffer_store_dwordx2 {vr(fO+12+2*j, 2)}, v{fOff}, s[{SRD_O}:{SRD_O+3}], s{sT0} offen offset:{j*128} {of}")
    A("s_cmp_eq_u32 s2, 255")
    A("s_cbranch_scc1 L_fin")
    A(f"s_cmp_eq_u32 s{sP}, 1")
    A("s_cbranch_scc1 L_fmid")

    A.c("outer workgroup: owns a region-1 head")
    barriers(89)
    combine(E[0])
    barriers(39)
    if nofin: A("s_branch L_fin")
    if not retry:
        load(E[1], sIb, IMG)
        A("s_barrier")
        A("s_waitcnt vmcnt(0)")
        check([E[1]])
        A("s_cbranch_scc1 L_fo7")
    else:
        A("s_barrier")
        A(f"s_mov_b32 s{sN}, {retry}")
        A.label("L_fo5")
        load(E[1], sIb, IMG)
        A("s_waitcnt vmcnt(0)")
        check([E[1]])
        A("s_cbranch_scc1 L_fo7")
        A(f"s_sub_u32 s{sN}, s{sN}, 1")
        A(f"s_cmp_lg_u32 s{sN}, 0")
        A("s_cbranch_scc1 L_fo5")
    publish(E[0], sIb, 0)
    A("s_waitcnt vmcnt(0)")
    load(E[1], sIb, IMG)
    A("s_waitcnt vmcnt(0)")
    check([E[1]])
    A("s_cbranch_scc0 L_fin")
    A.label("L_fo7")
    merge(E[:2], sH1, 0)
    A("s_branch L_fin")

    A.label("L_fmid")
    A.c("middle workgroup: helps with two region-1 heads")
    A(f"v_and_b32 v{fHa}, 1, v{vLane}")
    A(f"v_mul_u32_u24 v{fHa}, {2*IMG}, v{fHa}")
    A(f"v_add_u32 v{fHa}, {4096 + 12}, v{fHa}")
    barriers(41)
    combine(E[0])
    barriers(40)
    combine(E[1])
    barriers(47 - early)
    if nofin: A("s_branch L_fin")
    publish(E[0], sIb, IMG)
    publish(E[1], sIb, 3*IMG)
    for k in range(early + 1): A("s_barrier")
    A("s_waitcnt vmcnt(0)")
    A(f"buffer_load_dword v{fH}, v{fHa}, s[{SRD_L}:{SRD_L+3}], s{sIb} offen sc1")
    A("s_waitcnt vmcnt(0)")
    A.c("an owner that missed its helper image has published its own: finish that head here")
    A(f"v_cmp_eq_u32 vcc, v{fH}, v{fTag}")
    A("s_nop 4")
    A(f"s_and_b32 s{sDone}, vcc_lo, 3")
    A("s_cbranch_scc0 L_fin")
    for h in range(2):
        A(f"s_bitcmp1_b32 s{sDone}, {h}")
        A(f"s_cbranch_scc0 L_fm3{h}")
        A("s_waitcnt vmcnt(0)")
        load(E[2], sIb, 2*h*IMG)
        A("s_waitcnt vmcnt(0)")
        check([E[2]])
        A(f"s_cbranch_scc0 L_fm3{h}")
        merge([E[2], E[h]], sH1, h)
        A.label(f"L_fm3{h}")
    A.label("L_fin")
    if stamp:
        A("s_mov_b64 exec, -1")
        stamp_out(None)
    A.label("L_end")
    A("s_endpgm")

    kn = name + "_kernel"
    hdr = open(f"/code/{NAME}.s.ref").read().split("; Override launch")[0]
    nv = (NV + 7)//8*8
    s = hdr + f"""; @launch grid=(256,1,1) block=(448,1,1) lds={LDS}
.amdgcn_target "amdgcn-amd-amdhsa--gfx950"
.text
.globl {kn}
.p2align 8
.type {kn},@function
{kn}:
{A.text()}
.section .rodata,"a"
.p2align 6
.amdhsa_kernel {kn}
  .amdhsa_next_free_vgpr {nv}
  .amdhsa_next_free_sgpr 102
  .amdhsa_accum_offset {nv}
  .amdhsa_group_segment_fixed_size 0
  .amdhsa_kernarg_size 80
  .amdhsa_user_sgpr_count 2
  .amdhsa_user_sgpr_kernarg_segment_ptr 1
  .amdhsa_system_sgpr_workgroup_id_x 1
  .amdhsa_float_denorm_mode_32 3
.end_amdhsa_kernel
"""
    return s, kn, f"{kn}:256:448:{LDS}"

if __name__ == "__main__":
    kw = {}
    out = f"/code/{NAME}.s"
    for a in sys.argv[1:]:
        k, v = a.split("=")
        if k == "out": out = v
        else: kw[k] = eval(v)
    s, kn, spec = gen(**kw)
    open(out, "w").write(s)
    print(out, spec)
```

```python
import sys
from asmutil import build, wrap

HEAD = 4096*768

def gen(name, nwaves=16, split=1, mode="vgpr", flags="", tile=12, depth=2, pattern="lin", vg=None, order="kv",
        stamp=False, wavecontig=False, inter=False):
    grid = int(256*split)
    part_bytes = 256*HEAD//grid
    ntiles = part_bytes//(tile*1024)
    assert ntiles % nwaves == 0
    niter = ntiles//nwaves
    L = []
    A = L.append
    A(f"s_cmp_ge_u32 s2, {grid}")
    A("s_cbranch_scc1 L_end")
    A("s_load_dwordx4 s[4:7], s[0:1], 8")
    if stamp:
        A("s_load_dwordx2 s[30:31], s[0:1], 72")
        A("s_memrealtime s[32:33]")
    A("v_lshrrev_b32 v1, 6, v0")
    A("v_and_b32 v0, 63, v0")
    A("v_readfirstlane_b32 s20, v1")
    if inter:
        wgb = nwaves*tile*1024
        nrec = 256*HEAD
    else:
        wgb = part_bytes
        nrec = part_bytes
    A(f"s_mul_i32 s21, s2, {wgb}")
    A(f"s_mul_hi_u32 s22, s2, {wgb}")
    A("s_waitcnt lgkmcnt(0)")
    if inter:
        A("s_mov_b32 s8, s4"); A("s_and_b32 s9, s5, 0xffff")
        A("s_mov_b32 s12, s6"); A("s_and_b32 s13, s7, 0xffff")
    else:
        A("s_add_u32 s8, s4, s21"); A("s_addc_u32 s9, s5, s22"); A("s_and_b32 s9, s9, 0xffff")
        A("s_add_u32 s12, s6, s21"); A("s_addc_u32 s13, s7, s22"); A("s_and_b32 s13, s13, 0xffff")
    A(f"s_mov_b32 s10, {nrec}"); A("s_mov_b32 s11, 0x20000")
    A(f"s_mov_b32 s14, {nrec}"); A("s_mov_b32 s15, 0x20000")
    rows = tile*1024//768
    if pattern == "lin":
        A("v_lshlrev_b32 v2, 4, v0")
        offs = [j*1024 for j in range(tile)]
    elif pattern == "r16":
        assert tile == 12
        A("v_and_b32 v2, 15, v0"); A("v_mul_u32_u24 v2, 768, v2")
        A("v_lshrrev_b32 v3, 4, v0"); A("v_lshlrev_b32 v3, 4, v3"); A("v_add_u32 v2, v2, v3")
        offs = [j*64 for j in range(12)]
    elif pattern == "r4":
        A("v_and_b32 v2, 15, v0"); A("v_lshlrev_b32 v2, 4, v2")
        A("v_lshrrev_b32 v3, 4, v0"); A("v_mul_u32_u24 v3, 768, v3"); A("v_add_u32 v2, v2, v3")
        offs = [(j//3)*3072 + (j % 3)*256 for j in range(tile)]
    elif pattern == "h4":
        A("v_and_b32 v2, 3, v0"); A("v_lshlrev_b32 v2, 4, v2")
        A("v_lshrrev_b32 v3, 4, v0"); A("v_lshlrev_b32 v3, 6, v3"); A("v_add_u32 v2, v2, v3")
        A("v_bfe_u32 v3, v0, 2, 2"); A("v_mul_u32_u24 v3, 768, v3"); A("v_add_u32 v2, v2, v3")
        offs = [(j//3)*3072 + (j % 3)*256 for j in range(tile)]
    elif pattern == "q4":
        A("v_and_b32 v2, 3, v0"); A("v_mul_u32_u24 v2, 768, v2")
        A("v_lshrrev_b32 v3, 2, v0"); A("v_lshlrev_b32 v3, 4, v3"); A("v_add_u32 v2, v2, v3")
        offs = [(j//3)*3072 + (j % 3)*256 for j in range(tile)]
    elif pattern == "r8":
        assert tile == 12
        A("v_and_b32 v2, 7, v0"); A("v_lshlrev_b32 v2, 4, v2")
        A("v_lshrrev_b32 v3, 3, v0"); A("v_mul_u32_u24 v3, 768, v3"); A("v_add_u32 v2, v2, v3")
        offs = [(j//6)*6144 + (j % 6)*128 for j in range(12)]
    if wavecontig:
        A(f"s_mul_i32 s23, s20, {niter*tile*1024}")
        step = tile*1024
    else:
        A(f"s_mul_i32 s23, s20, {tile*1024}")
        step = nwaves*tile*1024
    if inter:
        A("s_add_u32 s23, s23, s21")
        step = grid*nwaves*tile*1024
    A("s_mov_b32 s27, s23")
    def tile_loads(srd, slot):
        out = []
        for j, o in enumerate(offs):
            base, imm = (o//4096)*4096, o % 4096
            if mode == "lds":
                out.append(f"s_add_u32 m0, s24, {slot*tile*1024 + j*1024 - imm + 4096}")
                if base:
                    out.append(f"s_add_u32 s25, s23, {base}")
                    so = "s25"
                else:
                    out.append("s_nop 0")
                    so = "s23"
                out.append(f"buffer_load_dwordx4 v2, s[{srd}:{srd+3}], {so} offen offset:{imm} {flags} lds")
            else:
                r = 8 + (slot*tile + j)*4
                if base:
                    out.append(f"s_add_u32 s25, s23, {base}")
                    so = "s25"
                else:
                    so = "s23"
                out.append(f"buffer_load_dwordx4 v[{r}:{r+3}], v2, s[{srd}:{srd+3}], {so} offen offset:{imm} {flags}")
        return out
    nslots = depth
    if mode == "lds":
        A(f"s_mul_i32 s24, s20, {nslots*tile*1024}")
        lds = nwaves*nslots*tile*1024 + 4096
        vgprs = vg or 16
    else:
        lds = 0
        vgprs = vg or (8 + nslots*tile*4)
        assert vgprs >= 8 + nslots*tile*4
    wait = min(63, (nslots-1)*tile)
    if order == "kv":
        assert (2*niter) % nslots == 0 and nslots % 2 == 0
        A(f"s_mov_b32 s26, {2*niter//nslots}")
        A("L_loop:")
        for s in range(nslots):
            srd = 8 if s % 2 == 0 else 12
            A(f"s_waitcnt vmcnt({wait})")
            L.extend(tile_loads(srd, s))
            if s % 2 == 1:
                A(f"s_add_u32 s23, s23, {step}")
        A("s_sub_u32 s26, s26, 1")
        A("s_cmp_lg_u32 s26, 0")
        A("s_cbranch_scc1 L_loop")
    else:
        assert niter % nslots == 0
        for ph, srd in enumerate((8, 12)):
            A("s_mov_b32 s23, s27")
            A(f"s_mov_b32 s26, {niter//nslots}")
            A(f"L_loop{ph}:")
            for s in range(nslots):
                A(f"s_waitcnt vmcnt({wait})")
                L.extend(tile_loads(srd, s))
                A(f"s_add_u32 s23, s23, {step}")
            A("s_sub_u32 s26, s26, 1")
            A("s_cmp_lg_u32 s26, 0")
            A(f"s_cbranch_scc1 L_loop{ph}")
    A("s_waitcnt vmcnt(0)")
    if stamp:
        A("s_memrealtime s[34:35]")
        A("s_getreg_b32 s36, hwreg(HW_REG_XCC_ID)")
        A("s_getreg_b32 s37, hwreg(HW_REG_HW_ID)")
        A("s_waitcnt lgkmcnt(0)")
        A("s_mov_b32 s40, s30"); A("s_and_b32 s41, s31, 0xffff"); A(f"s_mov_b32 s42, {grid*nwaves*32}"); A("s_mov_b32 s43, 0x20000")
        A(f"s_mul_i32 s38, s2, {nwaves}"); A("s_add_u32 s38, s38, s20"); A("s_lshl_b32 s38, s38, 5")
        A("v_mov_b32 v4, s32"); A("v_mov_b32 v5, s33"); A("v_mov_b32 v6, s34"); A("v_mov_b32 v7, s35")
        A("v_mov_b32 v8, s36"); A("v_mov_b32 v9, s37"); A("v_mov_b32 v10, 0"); A("v_mov_b32 v11, 0")
        A("v_mov_b32 v3, 0")
        A("s_mov_b64 exec, 1")
        A("buffer_store_dwordx4 v[4:7], v3, s[40:43], s38 offen")
        A("buffer_store_dwordx4 v[8:11], v3, s[40:43], s38 offen offset:16")
        A("s_waitcnt vmcnt(0)")
    A("L_end:")
    body = "\n".join("    "+x for x in L)
    kn = name + "_kernel"
    asm = wrap(kn, body, grid, nwaves*64, lds, vgprs)
    build(asm, name + ".co", kn)
    return f"{name}.co:{kn}:{grid}:{nwaves*64}:{lds}"

def finish(specs):
    open("specs.txt", "w").write(" ".join(specs))
    import json
    print(json.dumps(["cdna_kernels/bench/bench", "cdna_kernels/bench/specs.txt"] + ["cdna_kernels/bench/"+s.split(":")[0] for s in specs]))

if __name__ == "__main__":
    specs = []
    specs.append(gen("b0", 16, 1, "vgpr", "nt", 12, 2, vg=128, stamp=True))
    specs.append(gen("b1", 4, 4, "vgpr", "nt", 12, 2, vg=128, stamp=True))
    specs.append(gen("b2_h4", 4, 4, "vgpr", "nt", 12, 2, "h4", vg=128))
    specs.append(gen("b3_q4", 4, 4, "vgpr", "nt", 12, 2, "q4", vg=128))
    specs.append(gen("b4_r4", 4, 4, "vgpr", "nt", 12, 2, "r4", vg=128))
    specs.append(gen("b5_sc1nt", 4, 4, "vgpr", "sc1 nt", 12, 2, vg=128))
    specs.append(gen("b6_sc0sc1nt", 4, 4, "vgpr", "sc0 sc1 nt", 12, 2, vg=128))
    specs.append(gen("b7_sc0nt", 4, 4, "vgpr", "sc0 nt", 12, 2, vg=128))
    specs.append(gen("b8_seq", 16, 1, "vgpr", "nt", 12, 2, vg=128, order="seq"))
    specs.append(gen("b9_seq_wc", 16, 1, "vgpr", "nt", 12, 2, vg=128, order="seq", wavecontig=True))
    specs.append(gen("b10_inter", 16, 1, "vgpr", "nt", 12, 2, vg=128, inter=True))
    specs.append(gen("b11_inter_s4", 4, 4, "vgpr", "nt", 12, 2, vg=128, inter=True))
    specs.append(gen("b12_s64", 4, 64, "vgpr", "nt", 12, 2, vg=128))
    specs.append(gen("b13_w1s64", 1, 64, "vgpr", "nt", 12, 2, vg=128))
    specs.append(gen("b14_s16_occ8", 4, 16, "vgpr", "nt", 4, 2, vg=64))
    specs.append(gen("b15_s16_occ2", 4, 16, "vgpr", "nt", 12, 4, vg=256))
    finish(specs)
```

```python
import sys, json
sys.path.insert(0, "gen")
import importlib
from asmutil import build
from gen_bw import finish
specs = []
for a in sys.argv[1:]:
    if a.startswith("@"):
        mod = importlib.import_module(a[1:].split(".")[0])
        specs.append(eval("mod." + a[1:].split(".", 1)[1]))
        continue
    name, kws = a.split(":")
    genmod = "gen_kernel"
    kw = {"stamp": True}
    for kv in kws.split(";"):
        if kv:
            k, v = kv.split("=")
            if k == "gen": genmod = v
            else: kw[k] = eval(v)
    s, kn, spec = importlib.import_module(genmod).gen(**kw)
    build(s, name + ".co", kn)
    specs.append(f"{name}.co:{spec}")
finish(specs)
```

```python
import sys
from gen_kernel import Asm, VAlloc, vr, NAME, LOG2E, SCALE

def gen(thr0=18.4, lo=16, gain=5, per=4, late=200, lead=0, lead0=48, boost=0, boost0=63, gain2=24,  skip=4, gcap=12, clk=0, tl=None, of='', diag=False, seg=None, kap=0.3, f0=23.3, retry=2, rspec=True, sep=False, hi=25, top=20, hstep=1, align=0, ff=1.0, g2at=29/32, pk=False,
        stamp=False, nocomp=False, prio=3, early=1, first=1, spec=True, nofin=False, nst=4, qf='nt', slow=None,
        warm=8, name=NAME):
    KV_BYTES = 256*4096*768
    L_RING, L_PAR = 0, 73728
    L_VSZ = L_PAR + 17*3072
    L_STAT = L_VSZ + 16384
    L_SLOT = L_STAT + 256
    L_THR = L_SLOT + 4*3072
    L_TAG, L_MAX = L_THR + 4, L_THR + 64
    LDS = L_MAX + 192
    RIMG, WS_E = 3328, 1 << 20
    WS_STAMP, WS_FB = 8 << 20, 16 << 20
    RSTR = 4096*17 if sep else 4
    FB_END = WS_FB + 8*RSTR + (256//per + 1)*256
    TAGW = 5000
    A = Asm()
    va = VAlloc(1)
    vLane = va(); vW = va(); vT1 = va(); vT2 = va(); vT3 = va(); vT4 = va()
    vPa = va(4); vLogA = va(); vRing = va(); vRd = va()
    vM = va(); vLa = va(); vLb = va()
    vPar = va(16); vPad = va(2)
    vX = va(24, 4)
    vZ = va(24, 4); vS = va(24, 4)
    vB = vZ
    vRaw = va(24, 4)
    vKb = va(12, 4); vD = va(8, 4); vGb = va(); vMaxA = va(); vSlotA = va(); vStatA = va(); vMx = va(4, 4)
    vAcc = va(48, 4)
    vQ = vAcc
    vP = vAcc + 24
    vSum = va(); vCor = va(); vLg = va(); vSZ = va(4); vE = va(6)
    NV = va.n
    assert NV <= 256, NV
    sW, sBase, sT0, sT1, sT2, sBlk, sSlot, sPar = 56, 57, 58, 59, 60, 61, 62, 63
    sLog2e, sScale, sHi, s768 = 64, 65, 66, 67
    sC, sM, sLev, sProg, sRot, sHead, sInt, sLevSum = 68, 69, 70, 71, 72, 73, 74, 75
    sNow, sFbP, sRef = 96, 98, 84
    sC1, sC2, sLead, sJ, sP, sRnd = 3, 73, 72, 100, 101, 74
    WS_PART = 0
    SRD_L, SRD_KS, SRD_KZ, SRD_VS, SRD_VZ, SRD_Q, SRD_O, SRD_D = 24, 28, 32, 36, 40, 44, 48, 52
    def srd(d, p, nbytes):
        A(f"s_mov_b32 s{d}, s{p}"); A(f"s_and_b32 s{d+1}, s{p+1}, 0xffff")
        A(f"s_mov_b32 s{d+2}, {nbytes}"); A(f"s_mov_b32 s{d+3}, 0x20000")
    def tok_of(dst, n, isb, t, u):
        A(f"v_cmp_le_u32 vcc, 43, v{n}")
        A(f"v_add_u32 v{t}, 43, v{n}")
        A(f"v_mov_b32 v{u}, 42")
        A(f"v_cndmask_b32 v{dst}, v{n}, v{t}, vcc")
        A(f"v_cmp_le_u32 vcc, 86, v{n}")
        A(f"v_add_u32 v{t}, 43, v{dst}")
        A("s_nop 0")
        A(f"v_cndmask_b32 v{dst}, v{dst}, v{t}, vcc")
        A(f"v_cndmask_b32 v{u}, 43, v{u}, vcc")
        A(f"v_mad_u32_u24 v{dst}, v{u}, v{isb}, v{dst}")
    def stamp_out(idx_expr):
        A("s_waitcnt vmcnt(0)")
        A("s_memrealtime s[82:83]")
        A.label("L_fin2")
        A("s_getreg_b32 s84, hwreg(HW_REG_XCC_ID)")
        A("s_getreg_b32 s85, hwreg(HW_REG_HW_ID)")
        A("s_and_b32 s85, s85, 0xffff")
        A(f"s_or_b32 s85, s85, s{sLevSum}")
        A("s_waitcnt lgkmcnt(0)")
        srd(76, 22, WS_STAMP + 1792*32)
        for k, sr in enumerate((80, 81, 82, 83, 84, 85, 92, 94)): A(f"v_mov_b32 v{vX+k}, s{sr}")
        A("s_mul_i32 s85, s2, 7"); A(f"s_add_u32 s85, s85, s{sW}"); A("s_lshl_b32 s85, s85, 5")
        A(f"s_add_u32 s85, s85, {WS_STAMP}")
        A(f"v_mov_b32 v{vT3}, 0")
        A("s_mov_b64 exec, 1")
        A(f"buffer_store_dwordx4 {vr(vX, 4)}, v{vT3}, s[76:79], s85 offen")
        A(f"buffer_store_dwordx4 {vr(vX+4, 4)}, v{vT3}, s[76:79], s85 offen offset:16")

    A("s_cmp_ge_u32 s2, 256")
    A("s_cbranch_scc1 L_end")
    A("s_load_dwordx16 s[4:19], s[0:1], 0")
    A("s_load_dwordx4 s[20:23], s[0:1], 64")
    if stamp:
        A("s_memrealtime s[80:81]")
        A(f"s_mov_b32 s{sLevSum}, 0"); A("s_mov_b32 s92, 0"); A("s_mov_b32 s94, 0")
    if slow:
        A(f"s_mul_i32 s{sT0}, s2, {slow[0]}"); A(f"s_bfe_u32 s{sT0}, s{sT0}, {4 | (2 << 16)}")
        A(f"s_mul_i32 s{sT0}, s{sT0}, {slow[1]}")
        A.label("L_slow")
        A("s_sleep 32")
        A(f"s_sub_i32 s{sT0}, s{sT0}, 1")
        A(f"s_cmp_gt_i32 s{sT0}, 0")
        A("s_cbranch_scc1 L_slow")
    A(f"v_lshrrev_b32 v{vW}, 6, v0")
    A(f"v_and_b32 v{vLane}, 63, v0")
    A(f"v_readfirstlane_b32 s{sW}, v{vW}")
    A(f"s_mov_b32 s{s768}, 768")
    A.c("lane k < 16: vGb = global 256-token block visited at sequence position k")
    A(f"s_mul_i32 s{sJ}, s2, 43691"); A(f"s_lshr_b32 s{sJ}, s{sJ}, 17")
    A(f"s_mul_i32 s{sP}, s{sJ}, 3"); A(f"s_sub_u32 s{sP}, s2, s{sP}")
    A(f"s_cmp_eq_u32 s2, 255"); A(f"s_cselect_b32 s{sC2}, 16, 11")
    A(f"s_cmp_eq_u32 s{sP}, 1"); A(f"s_cselect_b32 s{sC1}, 5, s{sC2}"); A(f"s_cselect_b32 s{sC2}, 10, s{sC2}")
    if lead: A(f"s_cselect_b32 s{sLead}, {-2*lead}, {lead}")
    A(f"s_mul_i32 s{sT0}, s{sP}, 21"); A(f"s_add_u32 s{sT0}, s{sT0}, 1"); A(f"s_lshr_b32 s{sT0}, s{sT0}, 1")
    A(f"s_lshl_b32 s{sT1}, s{sJ}, 5"); A(f"s_add_u32 s{sBase}, s{sT0}, s{sT1}")
    A(f"s_mul_i32 s{sT0}, s{sP}, 11"); A(f"s_lshr_b32 s{sT0}, s{sT0}, 1")
    A(f"s_lshl_b32 s{sT1}, s{sJ}, 4"); A(f"s_add_u32 s{sT0}, s{sT0}, s{sT1}")
    A(f"s_add_u32 s{sT0}, s{sT0}, {171*16}"); A(f"s_sub_u32 s{sT0}, s{sT0}, s{sC2}")
    A(f"v_cmp_le_u32 vcc, s{sC2}, v{vLane}")
    A(f"v_add_u32 v{vT1}, s{sBase}, v{vLane}")
    A(f"v_add_u32 v{vT2}, s{sT0}, v{vLane}")
    A(f"v_cndmask_b32 v{vGb}, v{vT1}, v{vT2}, vcc")
    A(f"s_cmp_eq_u32 s{sW}, 4")
    A("s_cbranch_scc0 L_roles")

    sOff, sAcc, sThr, s1024, sAl, sBe, sJmp = sBase, sInt, sLev, sProg, sM, sSlot, sPar
    his = [(a, min(a+hstep-1, hi)) for a in range(top+1, hi+1, hstep)]
    lBase, lOdd, lIsB, lAddr, lThr, lThrA, lTa = 8, 11, 14, 17, 20, 21, 22
    if prio: A(f"s_setprio {prio}")
    A.c("a chain is rows A, A+1, B, B+1 (3 KiB) laid end to end; instruction k moves bytes [1024k, 1024k+1024)")
    for k in range(3):
        A(f"v_add_u32 v{lAddr+k}, {64*k}, v{vLane}")
        A(f"v_mul_u32_u24 v{lTa}, 1366, v{lAddr+k}")
        A(f"v_bfe_u32 v{lOdd+k}, v{lTa}, 16, 1"); A(f"v_lshrrev_b32 v{lIsB+k}, 17, v{lTa}")
        A(f"v_mul_u32_u24 v{lTa}, {41*768}, v{lIsB+k}")
        A(f"v_lshl_add_u32 v{lAddr+k}, v{lAddr+k}, 4, v{lTa}")
        A(f"v_mov_b32 v{lBase+k}, v{lAddr+k}")
    A(f"s_mov_b32 s{sC}, 0"); A(f"s_mov_b32 m0, {L_RING}"); A(f"s_movk_i32 s{s1024}, 1024")
    A(f"s_mul_i32 s{sOff}, s{sBase}, {256*768}")
    sMsk, s1536 = 84, 86
    A(f"s_mov_b32 s{sMsk}, {1 << 22:#x}"); A(f"s_mov_b32 s{sMsk+1}, {1 << (43-32):#x}"); A(f"s_movk_i32 s{s1536}, 1536")
    A(f"s_mov_b32 s{sThr}, {int(thr0)}"); A(f"s_mov_b32 s{sAcc}, 0")
    A(f"v_mov_b32 v{lThr}, {int(thr0*256)}"); A(f"v_mov_b32 v{lThrA}, {L_THR}")
    A(f"ds_write_b32 v{lThrA}, v{lThr}")
    A("s_waitcnt lgkmcnt(0)")
    if stamp: A("s_memrealtime s[92:93]")
    srd(SRD_L, 6, KV_BYTES)
    A.c("one chain per pass; the entry point sets the window; the next chain's lane offsets are formed between the loads")
    def chain_loop(a, b, tag):
        for n in range(a, b+1):
            A.label(f"L_lw{n}")
            A(f"s_waitcnt vmcnt({n})")
        def nxt(k):
            A(f"v_mad_i32_i24 v{lTa}, v{lIsB+k}, s{sAl}, v{lBase+k}")
            A(f"v_mad_u32_u24 v{lAddr+k}, v{lOdd+k}, s{sBe}, v{lTa}")
        A(f"buffer_load_dwordx4 v{lAddr}, s[{SRD_L}:{SRD_L+3}], s{sOff} offen nt lds")
        A(f"s_add_u32 m0, m0, s{s1024}")
        A(f"s_add_u32 s{sC}, s{sC}, 1")
        A(f"s_and_b32 s{sT0}, s{sC}, 63")
        A(f"s_cmp_ge_u32 s{sT0}, 43")
        A(f"s_cselect_b32 s{sAl}, -768, 0")
        A(f"buffer_load_dwordx4 v{lAddr+1}, s[{SRD_L}:{SRD_L+3}], s{sOff} offen nt lds")
        A(f"s_add_u32 m0, m0, s{s1024}")
        A(f"s_cmp_eq_u32 s{sT0}, 21")
        A(f"s_cselect_b32 s{sBe}, {43*768}, 0")
        A(f"v_mad_u32_u24 v{lAddr}, v{lOdd}, s{sBe}, v{lBase}")
        A(f"s_bitcmp1_b64 s[{sMsk}:{sMsk+1}], s{sT0}")
        A(f"s_cselect_b32 s{sJmp}, {45*768}, s{s1536}")
        A(f"buffer_load_dwordx4 v{lAddr+2}, s[{SRD_L}:{SRD_L+3}], s{sOff} offen nt lds")
        A(f"s_add_u32 m0, m0, s{s1024}")
        A(f"s_add_u32 s{sOff}, s{sOff}, s{sJmp}")
        nxt(1); nxt(2)
        A(f"s_and_b32 s{sT1}, s{sC}, 7")
        if a == b:
            A(f"s_cbranch_scc1 L_lw{a}")
            A("s_branch L_lunit")
            return
        A("s_cbranch_scc0 L_lunit")
        A.label(f"L_lad{tag}")
        for n in range(b, a, -1):
            A(f"s_cmp_eq_u32 s{sThr}, {n}")
            A(f"s_cbranch_scc1 L_lw{n}")
        A(f"s_branch L_lw{a}")
    chain_loop(lo, top, "")
    A.label("L_lunit")
    A.c("unit boundary: release the previous unit, pick up the window size")
    if hi > 21: A("s_waitcnt vmcnt(24)")
    A(f"s_cmp_le_u32 s{sC}, 16")
    A("s_cbranch_scc1 L_lfirst")
    A.label("L_lbar")
    A("s_barrier")
    A.label("L_lnobar")
    A("s_waitcnt lgkmcnt(0)")
    A(f"v_readfirstlane_b32 s{sT1}, v{lThr}")
    A(f"ds_read_b32 v{lThr}, v{lThrA}")
    A(f"s_cmp_eq_u32 m0, {L_RING + 73728}")
    A(f"s_cselect_b32 m0, {L_RING}, m0")
    A(f"s_and_b32 s{sAcc}, s{sAcc}, 255")
    A(f"s_add_u32 s{sAcc}, s{sAcc}, s{sT1}")
    A(f"s_lshr_b32 s{sThr}, s{sAcc}, 8")
    A(f"s_cmp_eq_u32 s{sT0}, 0")
    if not his:
        A("s_cbranch_scc0 L_lad")
    else:
        A("s_cbranch_scc1 L_lblock")
        A.label("L_lsel")
        A(f"s_cmp_le_u32 s{sThr}, {top}")
        A("s_cbranch_scc1 L_lad")
        for a, b in his[:-1]:
            A(f"s_cmp_le_u32 s{sThr}, {b}")
            A(f"s_cbranch_scc1 L_l{'w' if a == b else 'ad'}{a}")
        A(f"s_branch L_l{'w' if his[-1][0] == his[-1][1] else 'ad'}{his[-1][0]}")
    back = "L_lsel" if his else "L_lad"
    A.label("L_lblock")
    A(f"s_bfe_u32 s{sT0}, s{sC}, {6 | (4 << 16)}")
    A(f"v_readlane_b32 s{sOff}, v{vGb}, s{sT0}")
    A("s_nop 3")
    A(f"s_mul_i32 s{sOff}, s{sOff}, {256*768}")
    A(f"s_cmp_eq_u32 s{sT0}, 0")
    A(f"s_cbranch_scc0 {back}")
    A(f"s_cmp_eq_u32 s{sC}, 2048")
    A("s_cbranch_scc1 L_ldone")
    A(f"s_mov_b32 s{SRD_L}, s8"); A(f"s_and_b32 s{SRD_L+1}, s9, 0xffff")
    A(f"s_branch {back}")
    A.label("L_lfirst")
    A(f"s_cmp_eq_u32 s{sC}, 8")
    A("s_cbranch_scc1 L_lnobar")
    A("s_barrier")
    A("s_branch L_lbar")
    A.label("L_ldone")
    A("s_waitcnt vmcnt(0)")
    A("s_barrier")
    if stamp:
        A("s_memrealtime s[82:83]"); A("s_barrier"); A("s_branch L_fin2")
    else: A("s_endpgm")
    for a, b in his: chain_loop(a, b, str(a))

    A.label("L_roles")
    A(f"s_cmp_lt_u32 s{sW}, 4")
    A("s_cbranch_scc1 L_consumer")
    A(f"s_cmp_eq_u32 s{sW}, 5")
    A("s_cbranch_scc1 L_finisher")

    pRep, pVal, pThrA, pLog = 8, 9, 10, 20
    if seg: A("s_memrealtime s[78:79]")
    if warm:
        A.c("a few workgroups pull the code into their L2 ahead of its first use")
        A(f"s_sub_u32 s{sT0}, s2, 16")
        A(f"s_cmp_lt_u32 s{sT0}, {warm}")
        A("s_cbranch_scc0 L_pw")
        A(f"s_getpc_b64 s[{SRD_Q}:{SRD_Q+1}]")
        A.label("L_pc")
        A(f"s_and_b32 s{SRD_Q+1}, s{SRD_Q+1}, 0xffff")
        A(f"s_mov_b32 s{SRD_Q+2}, L_end - L_pc"); A(f"s_mov_b32 s{SRD_Q+3}, 0x20000")
        A(f"v_lshlrev_b32 v{pVal}, 7, v{vLane}")
        for k in range(4):
            A(f"s_movk_i32 s{sT0}, {k*8192}")
            A(f"buffer_load_dword v{12+k}, v{pVal}, s[{SRD_Q}:{SRD_Q+3}], s{sT0} offen")
        A.label("L_pw")
    A("s_waitcnt lgkmcnt(0)")
    srd(SRD_D, 22, FB_END)
    A(f"s_mov_b32 s{sProg}, 0")
    A(f"s_add_u32 s{sFbP}, s22, {WS_FB}"); A(f"s_addc_u32 s{sFbP+1}, s23, 0")
    sRepo, sD, sSl, sFf = sBlk, sBase, 92 if not stamp else 76, 94 if not stamp else 78
    A.c("reporters: workgroups 0, 9, 2, 3, 12, 5, 6, 15")
    A(f"s_min_u32 s{sT0}, s2, 16"); A(f"s_lshr_b32 s{sRepo}, {sum(1 << w for w in (0, 9, 2, 3, 12, 5, 6, 15)):#x}, s{sT0}")
    A(f"s_and_b32 s{sRepo}, s{sRepo}, 1")
    A(f"s_and_b32 s{sT1}, s2, 7"); A(f"s_mul_i32 s{sT1}, s{sT1}, {RSTR}"); A(f"s_add_u32 s{sT1}, s{sT1}, {WS_FB}")
    if align:
        A.c("schedule offsets that make all workgroups leave region 1 together")
        tau = 652*per//8
        sl = [[round(-align*tau/33), round(align*tau/15)], [round(align*tau/15), round(-align*tau/9)]]
        fw = [[round(align*ff*256*20.5*x) for x in (1/32, -1/16)], [round(align*ff*256*20.5*x) for x in (-1/16, 1/8)]]
        for k in range(2):
            for dst, tab in ((sSl, sl), (sFf, fw)):
                A(f"s_mov_b32 s{dst+k}, {tab[0][k]}")
                A(f"s_cmp_eq_u32 s{sP}, 1"); A(f"s_cselect_b32 s{dst+k}, {tab[1][k]}, s{dst+k}")
                A(f"s_cmp_eq_u32 s2, 255"); A(f"s_cselect_b32 s{dst+k}, 0, s{dst+k}")
        A(f"s_mov_b32 s{sD}, 0")
    A(f"v_mov_b32 v{pRep}, s{sT1}"); A(f"v_mov_b32 v{pThrA}, {L_THR}")
    sCy, sCp, sFw, sCorr = 28, 30, 31, 32
    A(f"s_memtime s[{sCy}:{sCy+1}]"); A(f"s_memrealtime s[{sNow}:{sNow+1}]")
    A(f"s_mov_b32 s{sCorr}, 0")
    A("s_mov_b64 exec, 1")
    A("s_waitcnt lgkmcnt(0)")
    A("s_barrier")
    if clk:
        A("s_memtime s[76:77]"); A("s_memrealtime s[78:79]"); A("s_waitcnt lgkmcnt(0)")
        A("s_mov_b32 s92, 0"); A(f"s_mov_b32 s{sLev}, {int(thr0*256)}")
    if diag:
        A("s_memtime s[76:77]"); A("s_memrealtime s[78:79]"); A("s_waitcnt lgkmcnt(0)")
        A("s_mov_b32 s92, 0"); A(f"s_mov_b32 s{sLev}, {int(thr0*256)}")
    if stamp:
        A("s_memtime s[92:93]"); A("s_memrealtime s[94:95]"); A("s_waitcnt lgkmcnt(0)")
    sPrev, sOn = sSlot, sPar
    A(f"s_mov_b32 s{sOn}, 0")
    A.label("L_pace")
    for u in range(per):
        A("s_barrier")
        if u == 0:
            A(f"s_mov_b32 s{sPrev}, s{sNow}")
            if kap:
                A(f"s_mov_b32 s{sCp}, s{sCy}")
                A(f"s_memtime s[{sCy}:{sCy+1}]")
            A(f"s_memrealtime s[{sNow}:{sNow+1}]")
            A("s_waitcnt lgkmcnt(0)")
            if kap:
                A.c("a slower shader clock stretches every round trip: widen the window with the shortfall")
                A(f"s_sub_u32 s{sT0}, s{sNow}, s{sPrev}"); A(f"s_mul_i32 s{sT0}, s{sT0}, {round(f0*16)}")
                A(f"s_sub_u32 s{sT1}, s{sCy}, s{sCp}"); A(f"s_lshl_b32 s{sT1}, s{sT1}, 4")
                A(f"s_sub_i32 s{sT0}, s{sT0}, s{sT1}")
                A(f"s_mul_i32 s{sT0}, s{sT0}, {round(kap*256*4096/(16*81.5*per))}")
                A(f"s_ashr_i32 s{sFw}, s{sT0}, 12")
            if seg:
                A(f"s_lshr_b32 m0, s{sProg}, 8")
                A(f"s_sub_u32 s{sT0}, s{sNow}, s78")
                A(f"v_writelane_b32 v{pLog}, s{sT0}, m0")
            if diag:
                A(f"s_lshr_b32 m0, s{sProg}, 8")
                A(f"s_sub_u32 s{sT0}, s{sNow}, s78")
                A(f"v_writelane_b32 v{pLog}, s{sT0}, m0")
                A(f"s_cmp_lt_u32 s{sProg}, {56*256}"); A(f"s_cselect_b32 s93, s{sLev}, 0"); A("s_max_u32 s92, s92, s93")
            if stamp == 5:
                A(f"s_lshr_b32 m0, s{sProg}, {8 + (8//per).bit_length() - 1}")
                A(f"s_sub_u32 s{sT0}, s{sNow}, s80")
                A(f"v_writelane_b32 v{pLog}, s{sT0}, m0")
                A("s_add_u32 m0, m0, 32"); A("s_nop 0")
                A(f"v_writelane_b32 v{pLog}, s{sLev}, m0")
            if lead:
                A(f"s_lshr_b32 s{sT0}, s{sProg}, 8")
                A(f"s_sub_i32 s{sT0}, s{sT0}, {lead0}")
                A(f"s_max_i32 s{sT0}, s{sT0}, 0")
                A(f"s_mul_i32 s{sT0}, s{sT0}, s{sLead}")
                A(f"s_add_u32 s{sNow}, s{sNow}, s{sT0}")
            if align:
                A(f"s_sub_u32 s{sNow}, s{sNow}, s{sD}")
                A(f"s_bfe_u32 s{sT0}, s{sProg}, {(8 + (8//per).bit_length() - 1) | (4 << 16)}")
                A(f"s_cmp_lt_u32 s{sT0}, s{sC2}")
                A(f"s_cselect_b32 s{sT0}, s{sSl}, s{sSl+1}")
                A(f"s_add_i32 s{sD}, s{sD}, s{sT0}")
            A.c("window from the lead over the reporters in the previous period")
            A(f"s_cmp_eq_u32 s{sOn}, 0")
            A("s_cbranch_scc1 L_pnext")
            A(f"s_mov_b32 s{sT0}, 0")
            for k in range(8):
                A(f"s_sub_i32 s{sT1}, s{sRef+k}, s{sPrev}")
                A(f"s_add_i32 s{sT2}, s{sT1}, {TAGW}")
                A(f"s_cmp_lt_u32 s{sT2}, {2*TAGW}")
                A(f"s_cselect_b32 s{sT1}, s{sT1}, {late}")
                A(f"s_add_i32 s{sT0}, s{sT0}, s{sT1}")
            if gcap:
                A(f"s_min_u32 s{sT1}, s{sOn}, {gcap}")
                A(f"s_cmp_gt_i32 s{sT0}, 0")
                A(f"s_cselect_b32 s{sOn}, s{sT1}, s{sOn}")
            A(f"s_mul_i32 s{sT0}, s{sT0}, s{sOn}")
            A(f"s_ashr_i32 s{sT0}, s{sT0}, 5")
            if kap:
                A(f"s_mov_b32 s{sCorr}, s{sT0}")
                A.label("L_pnext")
                A(f"s_sub_i32 s{sT0}, s{sFw}, s{sCorr}")
                A(f"s_add_i32 s{sT0}, s{sT0}, {int(thr0*256)}")
            else:
                A(f"s_sub_i32 s{sT0}, {int(thr0*256)}, s{sT0}")
            if align:
                A(f"s_add_u32 s{sT1}, s{sProg}, 256")
                A(f"s_min_u32 s{sT1}, s{sT1}, {(256//per - 1)*256}")
                A(f"s_bfe_u32 s{sT1}, s{sT1}, {(8 + (8//per).bit_length() - 1) | (4 << 16)}")
                A(f"s_cmp_lt_u32 s{sT1}, s{sC2}")
                A(f"s_cselect_b32 s{sT1}, s{sFf}, s{sFf+1}")
                A(f"s_add_i32 s{sT0}, s{sT0}, s{sT1}")
            if boost:
                A(f"s_cmp_ge_u32 s{sProg}, {boost0*256}")
                A(f"s_cselect_b32 s{sT1}, {int(boost*256)}, 0")
                A(f"s_add_i32 s{sT0}, s{sT0}, s{sT1}")
            A(f"s_max_i32 s{sT0}, s{sT0}, {lo*256}")
            A(f"s_min_i32 s{sLev}, s{sT0}, {hi*256}")
            A(f"v_mov_b32 v{pVal}, s{sLev}")
            A(f"ds_write_b32 v{pThrA}, v{pVal}")
            if not kap: A.label("L_pnext")
            A.c("gain of this period (0: period not used)")
            A(f"s_and_b32 s{sT0}, s{sProg}, {(skip-1)*256}")
            A(f"s_cselect_b32 s{sOn}, 0, {gain}")
            if gain2:
                A(f"s_cmp_ge_u32 s{sProg}, {int(g2at*256/per)*256}")
                A(f"s_cselect_b32 s{sOn}, {gain2}, s{sOn}")
            A(f"s_mul_i32 s{sT0}, s{sOn}, s{sRepo}")
            A(f"s_cmp_eq_u32 s{sT0}, 0")
            A("s_cbranch_scc1 L_pnorep")
            A(f"v_mov_b32 v{pVal+2}, s{sNow}")
            A(f"buffer_store_dword v{pVal+2}, v{pRep}, s[{SRD_D}:{SRD_D+3}], s{sProg} offen sc1")
            A.label("L_pnorep")
        if u == per - 1:
            A(f"s_cmp_eq_u32 s{sOn}, 0")
            A("s_cbranch_scc1 L_pnold")
            if sep:
                for k in range(8):
                    A(f"s_add_u32 s{sT0}, s{sProg}, {k*RSTR}")
                    A(f"s_load_dword s{sRef+k}, s[{sFbP}:{sFbP+1}], s{sT0}")
            else:
                A(f"s_load_dwordx8 s[{sRef}:{sRef+7}], s[{sFbP}:{sFbP+1}], s{sProg}")
            A.label("L_pnold")
    if clk == 2:
        A(f"s_cmp_lt_u32 s{sProg}, {56*256}"); A(f"s_cselect_b32 s93, s{sLev}, 0"); A("s_max_u32 s92, s92, s93")
    A(f"s_add_u32 s{sProg}, s{sProg}, 256")
    A(f"s_cmp_lt_u32 s{sProg}, {256//per*256}")
    A("s_cbranch_scc1 L_pace")
    A("s_waitcnt lgkmcnt(0)")
    if clk:
        A("s_memtime s[80:81]"); A("s_memrealtime s[82:83]"); A("s_waitcnt lgkmcnt(0)")
        A("s_barrier")
        A("s_sub_u32 s80, s80, s76"); A("s_sub_u32 s81, s82, s78")
        A(f"s_mul_i32 s81, s81, {15 if clk > 0 else 25}")
        A("s_sub_i32 s80, s80, s81" if clk > 0 else "s_sub_i32 s80, s81, s80")
        A("s_ashr_i32 s80, s80, 3"); A("s_add_i32 s80, s80, 30000"); A("s_min_u32 s80, s80, 100000")
        if clk == 2:
            A(f"s_sub_u32 s92, s92, {int(thr0*256)}"); A("s_lshr_b32 s92, s92, 6"); A("s_mul_i32 s92, s92, 5000")
            A("s_sub_u32 s80, s82, s78"); A("s_add_u32 s80, s80, s92"); A("s_add_u32 s80, s80, 10000"); A("s_min_u32 s80, s80, 200000")
        A.label("L_hold")
        A("s_sleep 4")
        A("s_memrealtime s[82:83]"); A("s_waitcnt lgkmcnt(0)")
        A("s_sub_u32 s81, s82, s78")
        A("s_cmp_lt_u32 s81, s80")
        A("s_cbranch_scc1 L_hold")
    A("s_mov_b64 exec, -1")
    if seg:
        a_, b_, mult, wsel = seg
        A("s_memrealtime s[82:83]"); A("s_waitcnt lgkmcnt(0)")
        A("s_barrier")
        if wsel is not None:
            A(f"s_cmp_eq_u32 s2, {wsel}"); A("s_cbranch_scc0 L_end")
        if b_ < 64: A(f"v_readlane_b32 s80, v{pLog}, {b_}")
        else: A("s_sub_u32 s80, s82, s78")
        if a_ >= 0: A(f"v_readlane_b32 s81, v{pLog}, {a_}")
        else: A("s_mov_b32 s81, 0")
        A("s_nop 3")
        A("s_sub_u32 s80, s80, s81"); A(f"s_mul_i32 s80, s80, {mult}"); A("s_add_u32 s80, s80, 30000"); A("s_min_u32 s80, s80, 200000")
        A.label("L_hold2")
        A("s_sleep 4")
        A("s_memrealtime s[82:83]"); A("s_waitcnt lgkmcnt(0)")
        A("s_sub_u32 s81, s82, s78")
        A("s_cmp_lt_u32 s81, s80")
        A("s_cbranch_scc1 L_hold2")
    if diag:
        A("s_memtime s[80:81]"); A("s_memrealtime s[82:83]"); A("s_waitcnt lgkmcnt(0)")
        A("s_barrier")
        srd(SRD_D, 20, 256)
        A("s_mov_b64 exec, 1")
        A(f"s_cmp_lt_u32 s92, {int((thr0+1.25)*256)}")
        A("s_cbranch_scc1 L_dg1")
        A("s_lshr_b32 s93, s2, 1"); A("s_lshl_b32 s94, 1, s93"); A("s_lshr_b32 s93, s93, 5"); A("s_lshl_b32 s93, s93, 2")
        A("v_mov_b32 v12, s94"); A("v_mov_b32 v13, s93")
        A(f"buffer_atomic_or v12, v13, s[{SRD_D}:{SRD_D+3}], 0 offen offset:48")
        A.label("L_dg1")
        A("s_cmp_eq_u32 s2, 99")
        A("s_cbranch_scc0 L_dg2")
        A("v_mov_b32 v13, 0")
        for k, ln in enumerate((2, 18, 24, 30, 34, 50, 56, 62)):
            A(f"v_readlane_b32 s93, v{pLog}, {ln}"); A("s_nop 3"); A("v_mov_b32 v12, s93")
            A(f"buffer_store_dword v12, v13, s[{SRD_D}:{SRD_D+3}], 0 offen offset:{4+4*k}")
        A("s_sub_u32 s80, s80, s76"); A("s_sub_u32 s82, s82, s78")
        A("v_mov_b32 v14, s82"); A("v_mov_b32 v15, s80")
        A(f"buffer_store_dwordx2 v[14:15], v13, s[{SRD_D}:{SRD_D+3}], 0 offen offset:36")
        A.label("L_dg2")
    if stamp:
        A("s_memtime s[76:77]"); A("s_memrealtime s[78:79]"); A("s_waitcnt lgkmcnt(0)")
        A("s_sub_u32 s92, s76, s92"); A("s_sub_u32 s94, s78, s94")
    if stamp and not clk: A("s_barrier")
    if stamp == 5:
        srd(76, 22, (9 << 20) + 65536)
        A(f"v_lshlrev_b32 v21, 2, v{vLane}")
        A(f"s_lshl_b32 s{sT0}, s2, 8"); A(f"s_add_u32 s{sT0}, s{sT0}, {9 << 20}")
        A(f"buffer_store_dword v{pLog}, v21, s[76:79], s{sT0} offen")
    if stamp: A("s_branch L_fin")
    else: A("s_endpgm")

    A.label("L_consumer")
    A.c("q fragments: lane = kg*16 + h'*4 + qi")
    A(f"v_lshrrev_b32 v{vT1}, 2, v{vLane}")
    A(f"v_lshlrev_b32 v{vT1}, 3, v{vT1}")
    A(f"v_and_b32 v{vT2}, 3, v{vLane}")
    A(f"v_mul_u32_u24 v{vT3}, 384, v{vT2}")
    A(f"v_add_u32 v{vLa}, v{vT1}, v{vT3}")
    A(f"v_lshlrev_b32 v{vRd}, 4, v{vLane}")
    A(f"s_mul_i32 s{sPar}, s{sW}, 3072")
    A(f"s_add_u32 s{sPar}, s{sPar}, {L_PAR + 3072}")
    for k in range(4):
        A(f"s_add_u32 s{sT0}, s{sW}, {4*k}")
        A(f"v_readlane_b32 s{sRef+k}, v{vGb}, s{sT0}")
    A(f"v_readlane_b32 s{sRef+4}, v{vGb}, 0")
    A(f"s_min_u32 s{sT0}, s{sC1}, 15")
    A(f"v_readlane_b32 s{sRef+5}, v{vGb}, s{sT0}")
    A(f"v_readlane_b32 s{sRef+6}, v{vGb}, 15")
    A("s_waitcnt lgkmcnt(0)")
    srd(SRD_KZ, 12, 256*24576); srd(SRD_KS, 10, 256*24576)
    if stamp == 3: A("s_memrealtime s[92:93]")
    def par_dma(ks):
        A("s_mov_b32 exec_hi, 0xffff")
        for k in ks:
            A(f"s_add_u32 m0, s{sPar}, {k*4*3072}")
            A(f"s_mul_i32 s{sT0}, s{sRef+k}, 1536")
            for a, sr in enumerate((SRD_KZ, SRD_KS)):
                A(f"buffer_load_dwordx4 v{vRd}, s[{sr}:{sr+3}], s{sT0} offen nt lds")
                A(f"buffer_load_dwordx4 v{vRd}, s[{sr}:{sr+3}], s{sT0} offen offset:768 nt lds")
                if a == 0:
                    A("s_add_u32 m0, m0, 1536"); A("s_nop 0")
        A("s_mov_b32 exec_hi, -1")
    def vsz_dma():
        srd(SRD_VS, 14, 256*8192); srd(SRD_VZ, 16, 256*8192)
        A("s_mov_b32 exec_hi, 0")
        A(f"s_lshl_b32 s{sT2}, s{sW}, 10")
        for k in range(4):
            A(f"s_add_u32 m0, s{sT2}, {L_VSZ + k*4096}")
            A(f"s_lshl_b32 s{sT0}, s{sRef+k}, 9")
            A(f"buffer_load_dwordx4 v{vRd}, s[{SRD_VS}:{SRD_VS+3}], s{sT0} offen nt lds")
            A("s_add_u32 m0, m0, 512"); A("s_nop 0")
            A(f"buffer_load_dwordx4 v{vRd}, s[{SRD_VZ}:{SRD_VZ+3}], s{sT0} offen nt lds")
        A("s_mov_b32 exec_hi, -1")
    def q_loads(rs_):
        for r in rs_:
            A(f"s_lshr_b32 s{sT0}, s{sRef+4+r}, 4")
            A(f"s_mul_i32 s{sT0}, s{sT0}, 1536")
            for j in range(3):
                A(f"buffer_load_dwordx2 {vr(vQ + r*6 + j*2, 2)}, v{vLa}, s[{SRD_Q}:{SRD_Q+3}], s{sT0} offen offset:{j*128} {qf}")
    par_dma(range(first))
    srd(SRD_Q, 4, 256*1536)
    q_loads([0])
    if stamp == 4: A("s_memrealtime s[92:93]")
    A(f"s_mov_b32 s{sLog2e}, {LOG2E:#x}"); A(f"s_mov_b32 s{sScale}, {SCALE:#x}")
    A(f"s_mov_b32 s{sHi}, 0xffff0000")
    A.c("K param LDS addresses: (tok>>6)*384 + (kg*4+h)*8")
    n0, isb, part = vX, vX+1, vX+2
    A(f"v_bfe_u32 v{n0}, v{vLane}, 2, 1"); A(f"v_lshl_add_u32 v{n0}, v{vW}, 2, v{n0}")
    A(f"v_bfe_u32 v{isb}, v{vLane}, 3, 1")
    A(f"v_lshrrev_b32 v{part}, 4, v{vLane}"); A(f"v_lshl_add_u32 v{part}, v{part}, 2, v{vT2}")
    A(f"v_lshlrev_b32 v{part}, 3, v{part}"); A(f"v_add_u32 v{part}, {L_PAR}, v{part}")
    A(f"s_movk_i32 s{sT0}, 384")
    for i in range(8):
        for e in range(2):
            d = vPar + 2*i + e
            A(f"v_add_u32 v{vT1}, {16*i + 2*e}, v{n0}")
            tok_of(d, vT1, isb, vT3, vT4)
            A(f"v_lshrrev_b32 v{d}, 6, v{d}")
            A(f"v_mad_u32_u24 v{d}, v{d}, s{sT0}, v{part}")
    A.c("P layout: lane = t*16 + b*4 + qi ; n = 64g + 16b + 4w + 2e + (t&1)")
    A(f"v_bfe_u32 v{n0}, v{vLane}, 4, 1"); A(f"v_lshl_add_u32 v{n0}, v{vW}, 2, v{n0}")
    A(f"v_bfe_u32 v{vT1}, v{vLane}, 2, 2"); A(f"v_lshl_add_u32 v{n0}, v{vT1}, 4, v{n0}")
    A(f"v_lshrrev_b32 v{isb}, 5, v{vLane}")
    A(f"s_mov_b32 s{sT0}, {L_VSZ}")
    for g in range(2):
        for e in range(2):
            d = vPa + 2*g + e
            A(f"v_add_u32 v{vT1}, {64*g + 2*e}, v{n0}")
            tok_of(d, vT1, isb, vT3, vT4)
            A(f"v_lshl_add_u32 v{d}, v{d}, 1, s{sT0}")
    A(f"v_lshlrev_b32 v{vLogA}, 2, v{vLane}")
    A(f"v_lshl_add_u32 v{vLogA}, v{vW}, 9, v{vLogA}")
    A(f"v_add_u32 v{vLogA}, {L_PAR}, v{vLogA}")
    def ring_addr(kind):
        if kind == "K":
            A(f"v_bfe_u32 v{vT1}, v{vLane}, 2, 2")
            A(f"v_lshrrev_b32 v{vT2}, 4, v{vLane}"); A(f"v_and_b32 v{vT3}, 3, v{vLane}")
            A(f"v_lshl_add_u32 v{vT2}, v{vT2}, 2, v{vT3}")
        else:
            A(f"v_lshrrev_b32 v{vT1}, 4, v{vLane}"); A(f"v_and_b32 v{vT2}, 15, v{vLane}")
        A(f"v_lshl_add_u32 v{vT1}, v{vW}, 3, v{vT1}")
        A(f"v_mul_u32_u24 v{vT1}, 768, v{vT1}")
        A(f"v_lshl_add_u32 v{vRing}, v{vT2}, 4, v{vT1}")
    ring_addr("K")
    A(f"v_and_b32 v{vT1}, 3, v{vLane}")
    A(f"v_lshl_add_u32 v{vMaxA}, v{vT1}, 2, v{vW}")
    A(f"v_lshlrev_b32 v{vMaxA}, 2, v{vMaxA}"); A(f"v_add_u32 v{vMaxA}, {L_MAX}, v{vMaxA}")
    A(f"v_mov_b32 v{vM}, 0xff800000")
    par_dma(range(first, 4))
    vsz_dma()
    q_loads([1, 2])
    A(f"s_mov_b32 s{sBlk}, 0"); A(f"s_mov_b32 s{sSlot}, {L_RING}"); A(f"s_movk_i32 s{sPar}, 3072")
    if stamp == 4: A("s_memrealtime s[94:95]")
    A(f"s_waitcnt vmcnt({4*(4-first) + 14})")
    if stamp == 3: A("s_memrealtime s[94:95]")
    A("s_barrier")
    if stamp and stamp not in (3, 4): A("s_memrealtime s[92:93]")

    def par_reads(i):
        out = [f"v_add_u32 v{vPad+e}, s{sPar}, v{vPar+2*i+e}" for e in range(2)]
        for e in range(2):
            for j in range(3):
                out.append(f"ds_read_b64 {vr(vRaw+e*12+j*4, 2)}, v{vPad+e} offset:{j*128}")
                out.append(f"ds_read_b64 {vr(vRaw+e*12+j*4+2, 2)}, v{vPad+e} offset:{1536 + j*128}")
        return out
    def par_unpack():
        A("s_waitcnt lgkmcnt(0)")
        for k in range(6):
            for dst, src in ((vZ+4*k, vRaw+4*k), (vS+4*k, vRaw+4*k+2)):
                for h in range(2):
                    A(f"v_lshlrev_b32 v{dst+2*h}, 16, v{src+h}")
                    A(f"v_and_b32 v{dst+2*h+1}, s{sHi}, v{src+h}")
    def fetch_unit(order=range(6), pre=()):
        A(f"v_add_u32 v{vRd}, s{sSlot}, v{vRing}")
        A(f"s_add_u32 s{sSlot}, s{sSlot}, 24576")
        A(f"s_cmp_eq_u32 s{sSlot}, {L_RING + 73728}")
        A(f"s_cselect_b32 s{sSlot}, {L_RING}, s{sSlot}")
        A("s_barrier")
        if nocomp: return
        for x in pre: A(x)
        for k in order:
            A(f"ds_read_b128 {vr(vX+4*k, 4)}, v{vRd} offset:{(k//3)*3072 + (k % 3)*256}")
    def dpp_sum(e, b):
        D = vD + 4*e
        L = vLa if e == 0 else vLb
        t = vT1 + e
        return [f"v_add_f32_dpp v{t}, v{D+(b+1) % 4}, v{D+b} row_ror:12 row_mask:0xf bank_mask:0xf",
                f"v_add_f32_dpp v{t}, v{D+(b+2) % 4}, v{t} row_ror:8 row_mask:0xf bank_mask:0xf",
                f"v_add_f32_dpp v{L}, v{D+(b+3) % 4}, v{t} row_ror:4 row_mask:0xf bank_mask:{1 << b:#x}"]

    def xlane(op, r, t):
        A("s_nop 1")
        A(f"{op}_dpp v{r}, v{r}, v{r} row_ror:4 row_mask:0xf bank_mask:0xf")
        A("s_nop 1")
        A(f"{op}_dpp v{r}, v{r}, v{r} row_ror:8 row_mask:0xf bank_mask:0xf")
        for sw in ("v_permlane16_swap_b32", "v_permlane32_swap_b32"):
            A(f"v_mov_b32 v{t}, v{r}")
            A("s_nop 1")
            A(f"{sw} v{r}, v{t}")
            A(f"{op} v{r}, v{r}, v{t}")
    for x in par_reads(0): A(x)
    par_unpack()
    A.label("L_kblk")
    for i in range(8):
        b = i % 4
        A.c(f"K step {i}")
        if i == 4: A("s_waitcnt vmcnt(0)")
        fetch_unit()
        if nocomp: continue
        for e in range(2):
            o = e*12
            A(f"s_waitcnt lgkmcnt({3 - 3*e})")
            for k in range(12): A(f"v_cvt_f32_i32 v{vX+o+k}, v{vX+o+k}")
            if pk:
                for k in range(0, 12, 2): A(f"v_pk_add_f32 {vr(vX+o+k, 2)}, {vr(vX+o+k, 2)}, {vr(vZ+o+k, 2)} neg_lo:[0,1] neg_hi:[0,1]")
            else:
                for k in range(12): A(f"v_sub_f32 v{vX+o+k}, v{vX+o+k}, v{vZ+o+k}")
            for k in range(12): A(f"v_cvt_pk_bf16_f32 v{vX+o+k}, 0, v{vX+o+k}")
            if pk:
                for k in range(0, 12, 2): A(f"v_pk_mul_f32 {vr(vX+o+k, 2)}, {vr(vX+o+k, 2)}, {vr(vS+o+k, 2)}")
            else:
                for k in range(12): A(f"v_mul_f32 v{vX+o+k}, v{vX+o+k}, v{vS+o+k}")
            packs = [f"v_cvt_pk_bf16_f32 v{vKb+e*6+k}, v{vX+o+2*k}, v{vX+o+2*k+1}" for k in range(6)]
            if e == 1:
                d = dpp_sum(0, b)
                packs = packs[0:2] + d[0:1] + packs[2:4] + d[1:2] + packs[4:6] + d[2:3]
            for x in packs: A(x)
            D = vr(vD+4*e, 4)
            for j in range(3):
                A(f"v_mfma_f32_16x16x16_bf16 {D}, {vr(vKb+e*6+2*j, 2)}, {vr(vQ+2*j, 2)}, {'0' if j == 0 else D}")
        if i == 7: A(f"s_add_u32 s{sPar}, s{sPar}, 3072")
        pr = par_reads((i+1) % 8)
        d = dpp_sum(1, b)
        for x in pr[:9] + d[0:1] + pr[9:11] + d[1:2] + pr[11:14] + d[2:3]: A(x)
        if b == 3:
            A(f"v_cvt_pk_bf16_f32 v{vT1}, 0, v{vLa}")
            A(f"v_cvt_pk_bf16_f32 v{vT2}, 0, v{vLb}")
            A(f"v_mul_f32 v{vT1}, s{sScale}, v{vT1}")
            A(f"v_mul_f32 v{vT2}, s{sScale}, v{vT2}")
            A(f"v_cvt_pk_bf16_f32 v{vT3}, v{vT1}, v{vT2}")
            A(f"v_max3_f32 v{vM}, v{vM}, v{vT1}, v{vT2}")
            A(f"ds_write_b32 v{vLogA}, v{vT3} offset:{(i//4)*256}")
        par_unpack()
    def round_end_test(loop):
        A(f"s_add_u32 s{sBlk}, s{sBlk}, 1")
        A(f"s_cmp_eq_u32 s{sBlk}, s{sC1}")
        A(f"s_cbranch_scc1 {loop}_end")
        A(f"s_cmp_eq_u32 s{sBlk}, s{sC2}")
        A(f"s_cbranch_scc1 {loop}_end")
        A(f"s_cmp_lt_u32 s{sBlk}, 16")
        A(f"s_cbranch_scc1 {loop}")
        A.label(f"{loop}_end")
    A(f"v_add_u32 v{vLogA}, 3072, v{vLogA}")
    round_end_test("L_kblk")
    A.c("end of a K round: publish the wave's max, rotate q")
    xlane("v_max_f32", vM, vT1)
    A(f"v_cvt_pk_bf16_f32 v{vM}, 0, v{vM}")
    A(f"v_mul_f32 v{vM}, s{sLog2e}, v{vM}")
    A(f"ds_write_b32 v{vMaxA}, v{vM}")
    A(f"v_add_u32 v{vMaxA}, 64, v{vMaxA}")
    for k in range(12): A(f"v_mov_b32 v{vQ+k}, v{vQ+6+k}")
    A(f"v_mov_b32 v{vM}, 0xff800000")
    A("s_waitcnt lgkmcnt(0)")
    A(f"s_cmp_lt_u32 s{sBlk}, 16")
    A("s_cbranch_scc1 L_kblk")

    if stamp and stamp not in (3, 4): A("s_memrealtime s[94:95]")
    def p_reads(g):
        return [f"v_add_u32 v{vSZ}, s{sPar}, v{vPa+2*g}",
                f"v_add_u32 v{vSZ+1}, s{sPar}, v{vPa+2*g+1}",
                f"ds_read_b32 v{vLg}, v{vLogA} offset:{g*256}",
                f"ds_read_u16 v{vSZ+2}, v{vSZ} offset:512",
                f"ds_read_u16 v{vSZ+3}, v{vSZ+1} offset:512",
                f"ds_read_u16 v{vSZ}, v{vSZ}",
                f"ds_read_u16 v{vSZ+1}, v{vSZ+1}"]
    ring_addr("V")
    A(f"v_subrev_u32 v{vLogA}, {16*3072}, v{vLogA}")
    A(f"s_mov_b32 s{sPar}, 0")
    for x in p_reads(0): A(x)
    for k in range(16): A(f"v_mov_b32 v{vP+k}, 0")
    A(f"s_mov_b32 s{sBlk}, 0")
    A.c("addresses for the end of a round and for the last hand-off (lane = ch*4 + qi, wave = third)")
    rRd, rSt, rLin, rSta, rOut, rTag = range(vPar, vPar+6)
    sLast, sImg, sOwn, sOut, sSel = sRnd, sC, sProg, sBase, 84
    A(f"v_and_b32 v{vT1}, 3, v{vLane}")
    A(f"v_lshlrev_b32 v{rSta}, 4, v{vT1}")
    A(f"v_add_u32 v{vMaxA}, {L_MAX}, v{rSta}")
    A(f"v_add_u32 v{rSt}, {L_STAT}, v{rSta}")
    A(f"v_lshl_add_u32 v{vStatA}, v{vW}, 6, v{rSt}")
    A(f"v_lshl_add_u32 v{rSta}, v{vW}, 6, v{rSta}"); A(f"v_add_u32 v{rSta}, 3072, v{rSta}")
    A(f"v_mul_u32_u24 v{vSlotA}, 3072, v{vW}"); A(f"v_lshl_add_u32 v{vSlotA}, v{vLane}, 4, v{vSlotA}")
    A(f"v_add_u32 v{vSlotA}, {L_SLOT}, v{vSlotA}")
    A(f"v_lshlrev_b32 v{vT2}, 10, v{vW}")
    A(f"v_lshl_add_u32 v{rLin}, v{vLane}, 4, v{vT2}")
    A(f"v_lshl_add_u32 v{rRd}, v{vLane}, 2, v{vT2}"); A(f"v_add_u32 v{rRd}, {L_SLOT}, v{rRd}")
    A(f"v_mul_u32_u24 v{rOut}, 384, v{vT1}"); A(f"v_lshrrev_b32 v{vT2}, 2, v{vLane}")
    A(f"v_lshl_add_u32 v{rOut}, v{vT2}, 3, v{rOut}"); A(f"v_lshl_add_u32 v{rOut}, v{vW}, 7, v{rOut}")
    srd(SRD_O, 18, 256*1536); srd(SRD_L, 22, 255*RIMG)
    A(f"s_mul_i32 s{sImg}, s{sJ}, {3*RIMG}"); A(f"s_mul_i32 s{sOwn}, s2, {RIMG}")
    A(f"s_add_u32 s{sImg+1}, s{sImg}, {RIMG}"); A(f"s_add_u32 s{sImg+2}, s{sImg}, {2*RIMG}")
    A(f"s_add_u32 s{sOut}, s{sJ}, 171"); A("s_cmp_eq_u32 s2, 255"); A(f"s_cselect_b32 s{sOut}, 170, s{sOut}")
    A(f"s_mul_i32 s{sOut}, s{sOut}, 1536")
    for c in range(4): A(f"s_mov_b32 s{sSel+c}, {0x07060500 | c:#x}")
    A(f"s_mov_b32 s{sSel+4}, 0x0c0c0400"); A(f"s_mov_b32 s{sSel+5}, 0x04000c0c"); A(f"s_mov_b32 s{sSel+6}, 0xffffff00")
    if stamp: A("s_waitcnt lgkmcnt(0)")

    A.label("L_vround")
    for k in range(12): A(f"v_mov_b32 v{vAcc+k}, 0")
    A(f"v_mov_b32 v{vSum}, 0"); A(f"v_mov_b32 v{vCor}, 0")
    A.label("L_vblk")
    A(f"s_add_u32 s{sBlk}, s{sBlk}, 1")
    A(f"s_cmp_eq_u32 s{sBlk}, s{sC1}"); A(f"s_cselect_b32 s{sLast}, 1, 0")
    A(f"s_cmp_eq_u32 s{sBlk}, s{sC2}"); A(f"s_cselect_b32 s{sLast}, 1, s{sLast}")
    A(f"s_cmp_eq_u32 s{sBlk}, 16"); A(f"s_cselect_b32 s{sLast}, 1, s{sLast}")
    for i in range(8):
        b, g = i % 4, i//4
        A.c(f"V step {i}")
        fetch_unit((0, 3, 1, 4, 2, 5), [f"ds_read_b128 {vr(vMx, 4)}, v{vMaxA}"] if i == 0 else ())
        if nocomp: continue
        if i == 0:
            A("s_waitcnt lgkmcnt(6)")
            A(f"v_max_f32 v{vM}, v{vMx}, v{vMx+1}")
            A(f"v_max3_f32 v{vM}, v{vM}, v{vMx+2}, v{vMx+3}")
        if b == 0:
            E = vE
            for x in ["s_waitcnt lgkmcnt(6)",
                      f"v_lshlrev_b32 v{E}, 16, v{vLg}",
                      f"v_and_b32 v{E+1}, s{sHi}, v{vLg}",
                      f"v_fma_f32 v{E}, v{E}, s{sLog2e}, -v{vM}",
                      f"v_fma_f32 v{E+1}, v{E+1}, s{sLog2e}, -v{vM}",
                      f"v_exp_f32 v{E}, v{E}",
                      f"v_exp_f32 v{E+1}, v{E+1}",
                      f"v_lshlrev_b32 v{E+2}, 16, v{vSZ}",
                      f"v_lshlrev_b32 v{E+3}, 16, v{vSZ+1}",
                      f"v_mul_f32 v{E+2}, v{E}, v{E+2}",
                      f"v_mul_f32 v{E+3}, v{E+1}, v{E+3}",
                      f"v_add_f32 v{vSum}, v{vSum}, v{E}",
                      f"v_cvt_pk_bf16_f32 v{E+2}, v{E+2}, v{E+3}",
                      f"v_add_f32 v{vSum}, v{vSum}, v{E+1}",
                      f"v_lshlrev_b32 v{E+4}, 16, v{vSZ+2}",
                      f"v_lshlrev_b32 v{E+5}, 16, v{vSZ+3}",
                      f"v_lshlrev_b32 v{E}, 16, v{E+2}",
                      f"v_and_b32 v{E+1}, s{sHi}, v{E+2}",
                      f"v_fmac_f32 v{vCor}, v{E}, v{E+4}",
                      f"v_fmac_f32 v{vCor}, v{E+1}, v{E+5}"]: A(x)
            for c in range(4):
                for k in range(4):
                    ctl = "quad_perm:[0,1,2,3]" if k == c else f"row_ror:{4*((c - k) % 4)}"
                    A(f"v_mov_b32_dpp v{vP+4*c+k}, v{E+2} {ctl} row_mask:0xf bank_mask:{1 << c:#x}")
        mf = lambda k: f"v_mfma_f32_16x16x32_bf16 {vr(vAcc+4*(k//4), 4)}, {vr(vP+4*(k % 4), 4)}, {vr(vB+4*k, 4)}, {vr(vAcc+4*(k//4), 4)}"
        for j in range(3):
            A(f"s_waitcnt lgkmcnt({4 - 2*j})")
            va_ = [f"v_cvt_f32_i32 v{vX+o+4*j+c}, v{vX+o+4*j+c}" for o in (0, 12) for c in range(4)]
            va_ += [f"v_cvt_pk_bf16_f32 v{vB+(4*j+c)*4+b}, v{vX+4*j+c}, v{vX+12+4*j+c}" for c in range(4)]
            for n, x in enumerate(va_):
                A(x)
                if b == 3 and j and n % 3 == 2: A(mf(4*(j-1) + n//3))
        if b == 3:
            for k in range(8, 12): A(mf(k))
        if b == 0:
            if g == 1:
                A(f"v_add_u32 v{vLogA}, 3072, v{vLogA}")
                A(f"s_add_u32 s{sPar}, s{sPar}, 1024")
            for x in p_reads(1-g): A(x)
        if i == 5:
            A.c("last block of a round: its (m, l, c) are final, park them in LDS")
            A(f"s_cmp_eq_u32 s{sLast}, 0")
            A("s_cbranch_scc1 L_vnostat")
            A(f"v_mov_b32 v{rTag}, {L_TAG}")
            A(f"ds_read_b32 v{rTag}, v{rTag}")
            xlane("v_add_f32", vSum, vT1)
            xlane("v_add_f32", vCor, vT1)
            A(f"v_mov_b32 v{vMx}, v{vM}"); A(f"v_mov_b32 v{vMx+1}, v{vSum}"); A(f"v_mov_b32 v{vMx+2}, v{vCor}")
            A(f"ds_write_b128 v{vStatA}, {vr(vMx, 4)}")
            A(f"v_add_u32 v{vMaxA}, 64, v{vMaxA}")
            A.label("L_vnostat")
    A(f"s_cmp_eq_u32 s{sLast}, 0")
    A("s_cbranch_scc1 L_vblk")

    A.c("end of a V round: lane c*16+ch holds O[query][64*third + 4*ch + c]; park it in LDS")
    A(f"ds_write_b128 v{vSlotA}, {vr(vAcc, 4)}")
    A("s_nop 0")
    A(f"ds_write_b128 v{vSlotA}, {vr(vAcc+4, 4)} offset:1024")
    A(f"s_cmp_lt_u32 s{sBlk}, 16")
    A("s_nop 1")
    A(f"ds_write_b128 v{vSlotA}, {vr(vAcc+8, 4)} offset:2048")
    A("s_waitcnt lgkmcnt(0)")
    A("s_cbranch_scc1 L_vround")
    A("s_barrier")
    if tl and 0 in tl: A("s_memrealtime s[92:93]"); A("s_waitcnt lgkmcnt(0)")

    A(f"s_cmp_eq_u32 s{sW}, 3")
    A("s_cbranch_scc1 L_fin")
    St, O, I = vX, vZ, [vAcc, vAcc+8, vAcc+16]
    rn = [0]
    def by_part(body):
        rn[0] += 1
        for p in range(3):
            if p < 2:
                A(f"s_cmp_eq_u32 s{sP}, {p}")
                A(f"s_cbranch_scc0 L_rp{rn[0]}{p}")
            body(p)
            if p < 2:
                A(f"s_branch L_rp{rn[0]}2")
                A.label(f"L_rp{rn[0]}{p}")
        A.label(f"L_rp{rn[0]}2")
    def r_loads(own):
        ps = [x for x in range(3) if x != own]
        for p in ps:
            A(f"buffer_load_dwordx4 {vr(I[p]+4, 4)}, v{rSta}, s[{SRD_L}:{SRD_L+3}], s{sImg+p} offen sc1")
        for p in ps:
            A(f"buffer_load_dwordx4 {vr(I[p], 4)}, v{rLin}, s[{SRD_L}:{SRD_L+3}], s{sImg+p} offen sc1")
    for w in range(4): A(f"ds_read_b128 {vr(St+4*w, 4)}, v{rSt} offset:{w*64}")
    for w in range(4):
        for h in range(2):
            A(f"ds_read2st64_b32 {vr(O+4*w+2*h, 2)}, v{rRd} offset0:{12*w+2*h} offset1:{12*w+2*h+1}")
    if rspec: by_part(r_loads)
    A("s_waitcnt lgkmcnt(8)")
    for k in (1, 2):
        A(f"v_add_f32 v{St+k}, v{St+k}, v{St+4+k}"); A(f"v_add_f32 v{St+8+k}, v{St+8+k}, v{St+12+k}")
    for k in (1, 2): A(f"v_add_f32 v{St+k}, v{St+k}, v{St+8+k}")
    A(f"v_mov_b32 v{St+3}, v{rTag}")
    A("s_waitcnt lgkmcnt(4)")
    for c in range(4): A(f"v_add_f32 v{O+c}, v{O+c}, v{O+4+c}")
    A("s_waitcnt lgkmcnt(0)")
    for c in range(4): A(f"v_add_f32 v{O+8+c}, v{O+8+c}, v{O+12+c}")
    for c in range(4): A(f"v_add_f32 v{O+c}, v{O+c}, v{O+8+c}")
    for c in range(4): A(f"v_sub_f32 v{O+c}, v{O+c}, v{St+2}")
    A("s_cmp_eq_u32 s2, 255")
    A("s_cbranch_scc1 L_rsolo")
    for c in range(4): A(f"v_perm_b32 v{O+c}, v{O+c}, v{rTag}, s{sSel+c}")
    if nofin: A("s_branch L_fin")
    if tl and 1 in tl: A("s_memrealtime s[94:95]")
    A(f"buffer_store_dwordx4 {vr(O, 4)}, v{rLin}, s[{SRD_L}:{SRD_L+3}], s{sOwn} offen sc1")
    A("s_mov_b64 exec, 15")
    A(f"buffer_store_dwordx4 {vr(St, 4)}, v{rSta}, s[{SRD_L}:{SRD_L+3}], s{sOwn} offen sc1")
    A("s_mov_b64 exec, -1")
    def own_image(p):
        for c in range(4):
            A(f"v_mov_b32 v{I[p]+c}, v{O+c}"); A(f"v_mov_b32 v{I[p]+4+c}, v{St+c}")
        if not rspec:
            A("s_waitcnt vmcnt(0)")
            if tl and 2 in tl: A("s_memrealtime s[92:93]")
            r_loads(p)
    by_part(own_image)
    def r_check(wa, wb):
        A(f"s_waitcnt vmcnt({wa})")
        for p in range(3): A(f"v_xor_b32 v{St+4+p}, v{I[p]+7}, v{rTag}")
        A(f"v_or3_b32 v{vT2}, v{St+4}, v{St+5}, v{St+6}")
        A(f"s_waitcnt vmcnt({wb})")
        for p in range(3):
            A(f"v_perm_b32 v{vT3}, v{I[p]+1}, v{I[p]}, s{sSel+4}")
            A(f"v_perm_b32 v{vT4}, v{I[p]+3}, v{I[p]+2}, s{sSel+5}")
            A(f"v_bitop3_b32 v{vT3}, v{vT3}, v{vT4}, v{rTag} bitop3:0x56")
            A(f"v_or_b32 v{vT2}, v{vT2}, v{vT3}")
        A(f"v_cmp_eq_u32 vcc, 0, v{vT2}")
    if rspec:
        r_check(4, 2)
        A("s_nop 4")
        A("s_cmp_eq_u64 vcc, -1")
        A("s_cbranch_scc1 L_rmerge")
        A("s_waitcnt vmcnt(0)")
        by_part(r_loads)
    r_check(2, 0)
    A.label("L_rmerge")
    if tl and 3 in tl: A("s_memrealtime s[94:95]")
    A.c("a lane that sees all three parts complete stores its four outputs")
    A(f"v_max3_f32 v{vT1}, v{I[0]+4}, v{I[1]+4}, v{I[2]+4}")
    for p in range(3): A(f"v_sub_f32 v{I[p]+4}, v{I[p]+4}, v{vT1}")
    for p in range(3): A(f"v_exp_f32 v{I[p]+4}, v{I[p]+4}")
    A("s_and_b64 exec, exec, vcc")
    A("s_cbranch_execz L_fin")
    for p in range(3):
        for c in range(4): A(f"v_and_b32 v{I[p]+c}, s{sSel+6}, v{I[p]+c}")
    A(f"v_mul_f32 v{St+1}, v{I[0]+4}, v{I[0]+5}")
    for p in (1, 2): A(f"v_fmac_f32 v{St+1}, v{I[p]+4}, v{I[p]+5}")
    for c in range(4):
        A(f"v_mul_f32 v{O+c}, v{I[0]+c}, v{I[0]+4}")
        for p in (1, 2): A(f"v_fmac_f32 v{O+c}, v{I[p]+c}, v{I[p]+4}")
    A.label("L_rsolo")
    A(f"v_rcp_f32 v{St+1}, v{St+1}")
    A("s_nop 0")
    for c in range(4): A(f"v_mul_f32 v{O+c}, v{O+c}, v{St+1}")
    for k in range(2): A(f"v_cvt_pk_bf16_f32 v{O+4+k}, v{O+2*k}, v{O+2*k+1}")
    A(f"buffer_store_dwordx2 {vr(O+4, 2)}, v{rOut}, s[{SRD_O}:{SRD_O+3}], s{sOut} offen {of}")
    A("s_branch L_fin")

    A.label("L_finisher")
    fOff, fLin, fTag, fM, fL, fT, fSta, fH, fHa = 8, 9, 10, 11, 12, 13, 14, 15, 7
    IMG = 4352
    fSt, fO = 16, 32
    E = [80, 100, 120]
    sN, sTag, sDone, sIb, sH1 = sM, sProg, sLev, sSlot, sPar
    A(f"v_and_b32 v{fSta}, 3, v{vLane}")
    A(f"v_mul_u32_u24 v{fOff}, 384, v{fSta}")
    A(f"v_lshrrev_b32 v{fT}, 2, v{vLane}")
    A(f"v_lshl_add_u32 v{fOff}, v{fT}, 3, v{fOff}")
    A(f"v_lshlrev_b32 v{fLin}, 4, v{vLane}")
    A(f"v_lshlrev_b32 v{fSta}, 4, v{fSta}")
    A(f"s_memrealtime s[{sNow}:{sNow+1}]")
    A("s_waitcnt lgkmcnt(0)")
    srd(SRD_O, 18, 256*1536); srd(SRD_D, 20, 256); srd(SRD_L, 22, WS_E + 340*IMG)
    def claim_tag():
        A(f"s_or_b32 s{sTag}, s{sNow}, 1")
        A(f"v_mov_b32 v{fSt}, s{sTag}"); A(f"v_mov_b32 v{fSt+1}, 0")
        A("s_mov_b64 exec, 1")
        A(f"buffer_atomic_cmpswap {vr(fSt, 2)}, v{fLin}, s[{SRD_D}:{SRD_D+3}], 0 offen sc0 sc1")
        A("s_mov_b64 exec, -1")
        A("s_waitcnt vmcnt(0)")
        A(f"v_readfirstlane_b32 s{sT0}, v{fSt}")
        A("s_nop 3")
        A(f"s_cmp_eq_u32 s{sT0}, 0")
        A(f"s_cselect_b32 s{sTag}, s{sTag}, s{sT0}")
    A("s_cmp_eq_u32 s2, 0")
    A("s_cbranch_scc0 L_fk")
    claim_tag()
    A.label("L_fk")
    uid = [0]
    def barriers(n):
        uid[0] += 1
        A(f"s_movk_i32 s{sN}, {n}")
        A.label(f"L_fb{uid[0]}")
        A("s_barrier")
        A(f"s_sub_u32 s{sN}, s{sN}, 1")
        A(f"s_cmp_lg_u32 s{sN}, 0")
        A(f"s_cbranch_scc1 L_fb{uid[0]}")
    barriers(128)
    A(f"s_load_dword s{sTag}, s[20:21], 0")
    A("s_barrier")
    A("s_waitcnt lgkmcnt(0)")
    A(f"s_cmp_eq_u32 s{sTag}, 0")
    A("s_cbranch_scc0 L_ftag")
    claim_tag()
    A.label("L_ftag")
    A(f"v_mov_b32 v{fTag}, s{sTag}")
    A(f"v_mov_b32 v{fT}, {L_TAG}")
    A(f"ds_write_b32 v{fT}, v{fTag}")
    A.c("image numbers of region-1 head h: 2h (owner), 2h+1 (helper)")
    A(f"s_lshr_b32 s{sH1}, s{sP}, 1"); A(f"s_lshl_b32 s{sT0}, s{sJ}, 1"); A(f"s_add_u32 s{sH1}, s{sH1}, s{sT0}")
    A(f"s_mul_i32 s{sIb}, s{sH1}, {2*IMG}"); A(f"s_add_u32 s{sIb}, s{sIb}, {WS_E}")
    A("s_waitcnt lgkmcnt(0)")
    def combine(I):
        A(f"v_add_u32 v{fT}, {L_STAT}, v{fSta}")
        A(f"v_lshlrev_b32 v{fM}, 2, v{vLane}"); A(f"v_add_u32 v{fM}, {L_SLOT}, v{fM}")
        for w in range(4): A(f"ds_read_b128 {vr(fSt+4*w, 4)}, v{fT} offset:{w*64}")
        for k in range(24):
            if k in (8, 16): A("s_waitcnt lgkmcnt(4)")
            A(f"ds_read2st64_b32 {vr(fO+2*k, 2)}, v{fM} offset0:{2*k} offset1:{2*k+1}")
        for k in range(5): A(f"v_mov_b32 v{I+4*k+3}, v{fTag}")
        A(f"v_mov_b32 v{I+16}, v{fSt}")
        for k in (1, 2):
            A(f"v_add_f32 v{fSt+k}, v{fSt+k}, v{fSt+4+k}"); A(f"v_add_f32 v{fSt+8+k}, v{fSt+8+k}, v{fSt+12+k}")
            A(f"v_add_f32 v{I+16+k}, v{fSt+k}, v{fSt+8+k}")
        A("s_waitcnt lgkmcnt(0)")
        for k in range(12):
            A(f"v_add_f32 v{fO+k}, v{fO+k}, v{fO+12+k}"); A(f"v_add_f32 v{fO+24+k}, v{fO+24+k}, v{fO+36+k}")
            A(f"v_add_f32 v{fO+k}, v{fO+k}, v{fO+24+k}")
            A(f"v_sub_f32 v{I + (k//3)*4 + k % 3}, v{fO+k}, v{I+18}")
    def load(I, sb, off):
        A(f"s_add_u32 s{sT0}, s{sb}, {off}"); A(f"s_add_u32 s{sT1}, s{sb}, {off + 4096}")
        A(f"buffer_load_dwordx4 {vr(I+16, 4)}, v{fSta}, s[{SRD_L}:{SRD_L+3}], s{sT1} offen sc1")
        for k in range(nst):
            A(f"buffer_load_dwordx4 {vr(I+4*k, 4)}, v{fLin}, s[{SRD_L}:{SRD_L+3}], s{sT0} offen offset:{k*1024} sc1")
    def publish(I, sb, off):
        A(f"s_add_u32 s{sT0}, s{sb}, {off}"); A(f"s_add_u32 s{sT1}, s{sb}, {off + 4096}")
        for k in range(nst):
            A(f"buffer_store_dwordx4 {vr(I+4*k, 4)}, v{fLin}, s[{SRD_L}:{SRD_L+3}], s{sT0} offen offset:{k*1024} sc1")
        A("s_mov_b64 exec, 15")
        A(f"buffer_store_dwordx4 {vr(I+16, 4)}, v{fSta}, s[{SRD_L}:{SRD_L+3}], s{sT1} offen sc1")
        A("s_mov_b64 exec, -1")
    def check(imgs):
        g = [I+4*k+3 for I in imgs for k in list(range(nst)) + [4]]
        A(f"v_xor_b32 v{fT}, v{fTag}, v{g[0]}")
        for r in g[1:]:
            A(f"v_xor_b32 v{fM}, v{fTag}, v{r}")
            A(f"v_or_b32 v{fT}, v{fT}, v{fM}")
        A(f"v_cmp_ne_u32 vcc, 0, v{fT}")
        A("s_nop 4")
        A("s_cmp_eq_u64 vcc, 0")
    def merge(imgs, shead, add):
        n = len(imgs)
        F = fSt
        if n == 3: A(f"v_max3_f32 v{fM}, v{imgs[0]+16}, v{imgs[1]+16}, v{imgs[2]+16}")
        else:      A(f"v_max_f32 v{fM}, v{imgs[0]+16}, v{imgs[-1]+16}")
        for p in range(n): A(f"v_sub_f32 v{F+p}, v{imgs[p]+16}, v{fM}")
        for p in range(n): A(f"v_exp_f32 v{F+p}, v{F+p}")
        A("s_nop 0")
        A(f"v_mul_f32 v{fL}, v{F}, v{imgs[0]+17}")
        for p in range(1, n): A(f"v_fmac_f32 v{fL}, v{F+p}, v{imgs[p]+17}")
        A(f"v_rcp_f32 v{fL}, v{fL}")
        A(f"s_add_u32 s{sT0}, s{shead}, {add}")
        A(f"s_mul_i32 s{sT0}, s{sT0}, 1536")
        for p in range(n): A(f"v_mul_f32 v{F+p}, v{F+p}, v{fL}")
        for k in range(12):
            o = (k//3)*4 + k % 3
            A(f"v_mul_f32 v{fO+k}, v{imgs[0]+o}, v{F}")
            for p in range(1, n): A(f"v_fmac_f32 v{fO+k}, v{imgs[p]+o}, v{F+p}")
        for k in range(6): A(f"v_cvt_pk_bf16_f32 v{fO+12+k}, v{fO+2*k}, v{fO+2*k+1}")
        for j in range(3):
            A(f"buffer_store_dwordx2 {vr(fO+12+2*j, 2)}, v{fOff}, s[{SRD_O}:{SRD_O+3}], s{sT0} offen offset:{j*128} {of}")
    A("s_cmp_eq_u32 s2, 255")
    A("s_cbranch_scc1 L_fin")
    A(f"s_cmp_eq_u32 s{sP}, 1")
    A("s_cbranch_scc1 L_fmid")

    A.c("outer workgroup: owns a region-1 head")
    barriers(89)
    combine(E[0])
    barriers(39)
    if nofin: A("s_branch L_fin")
    if not retry:
        load(E[1], sIb, IMG)
        A("s_barrier")
        A("s_waitcnt vmcnt(0)")
        check([E[1]])
        A("s_cbranch_scc1 L_fo7")
    else:
        A("s_barrier")
        A(f"s_mov_b32 s{sN}, {retry}")
        A.label("L_fo5")
        load(E[1], sIb, IMG)
        A("s_waitcnt vmcnt(0)")
        check([E[1]])
        A("s_cbranch_scc1 L_fo7")
        A(f"s_sub_u32 s{sN}, s{sN}, 1")
        A(f"s_cmp_lg_u32 s{sN}, 0")
        A("s_cbranch_scc1 L_fo5")
    publish(E[0], sIb, 0)
    A("s_waitcnt vmcnt(0)")
    load(E[1], sIb, IMG)
    A("s_waitcnt vmcnt(0)")
    check([E[1]])
    A("s_cbranch_scc0 L_fin")
    A.label("L_fo7")
    merge(E[:2], sH1, 0)
    A("s_branch L_fin")

    A.label("L_fmid")
    A.c("middle workgroup: helps with two region-1 heads")
    A(f"v_and_b32 v{fHa}, 1, v{vLane}")
    A(f"v_mul_u32_u24 v{fHa}, {2*IMG}, v{fHa}")
    A(f"v_add_u32 v{fHa}, {4096 + 12}, v{fHa}")
    barriers(41)
    combine(E[0])
    barriers(40)
    combine(E[1])
    barriers(47 - early)
    if nofin: A("s_branch L_fin")
    publish(E[0], sIb, IMG)
    publish(E[1], sIb, 3*IMG)
    for k in range(early + 1): A("s_barrier")
    A("s_waitcnt vmcnt(0)")
    A(f"buffer_load_dword v{fH}, v{fHa}, s[{SRD_L}:{SRD_L+3}], s{sIb} offen sc1")
    A("s_waitcnt vmcnt(0)")
    A.c("an owner that missed its helper image has published its own: finish that head here")
    A(f"v_cmp_eq_u32 vcc, v{fH}, v{fTag}")
    A("s_nop 4")
    A(f"s_and_b32 s{sDone}, vcc_lo, 3")
    A("s_cbranch_scc0 L_fin")
    for h in range(2):
        A(f"s_bitcmp1_b32 s{sDone}, {h}")
        A(f"s_cbranch_scc0 L_fm3{h}")
        A("s_waitcnt vmcnt(0)")
        load(E[2], sIb, 2*h*IMG)
        A("s_waitcnt vmcnt(0)")
        check([E[2]])
        A(f"s_cbranch_scc0 L_fm3{h}")
        merge([E[2], E[h]], sH1, h)
        A.label(f"L_fm3{h}")
    A.label("L_fin")
    if stamp:
        A("s_mov_b64 exec, -1")
        stamp_out(None)
    A.label("L_end")
    A("s_endpgm")

    kn = name + "_kernel"
    hdr = open(f"/code/{NAME}.s.ref").read().split("; Override launch")[0]
    nv = (NV + 7)//8*8
    s = hdr + f"""; @launch grid=(256,1,1) block=(448,1,1) lds={LDS}
.amdgcn_target "amdgcn-amd-amdhsa--gfx950"
.text
.globl {kn}
.p2align 8
.type {kn},@function
{kn}:
{A.text()}
.section .rodata,"a"
.p2align 6
.amdhsa_kernel {kn}
  .amdhsa_next_free_vgpr {nv}
  .amdhsa_next_free_sgpr 102
  .amdhsa_accum_offset {nv}
  .amdhsa_group_segment_fixed_size 0
  .amdhsa_kernarg_size 80
  .amdhsa_user_sgpr_count 2
  .amdhsa_user_sgpr_kernarg_segment_ptr 1
  .amdhsa_system_sgpr_workgroup_id_x 1
  .amdhsa_float_denorm_mode_32 3
.end_amdhsa_kernel
"""
    return s, kn, f"{kn}:256:448:{LDS}"

if __name__ == "__main__":
    kw = {}
    out = f"/code/{NAME}.s"
    for a in sys.argv[1:]:
        k, v = a.split("=")
        if k == "out": out = v
        else: kw[k] = eval(v)
    s, kn, spec = gen(**kw)
    open(out, "w").write(s)
    print(out, spec)
```

```python
import sys
from gen_kernel import Asm, VAlloc, vr, NAME, LOG2E, SCALE

DOC = """;
;             about 32 KiB apart, which requests both halves of a DRAM row close together.
"""

def gen(thr0=18.5, lo=16, gain=5, per=4, late=200, lead=0, lead0=48, boost=0, boost0=63, gain2=24,  skip=4, gcap=12, clk=0, tl=None, of='', diag=False, seg=None, kap=0.4, tlb=0, blast=True, seq='AAB|ABB', mirror=False, mtab=False, xm=None, nstage=1, touch=False, skipd=0, xmap=(145, 38, 68), rev2=True, phase=None, swap2=True, order=None, rot2=None, rot1=None, swb=0, f0=23.3, retry=2, rspec=True, sep=False, hi=25, top=21, hstep=1, align=0, ff=1.0, g2at=29/32, pk=False,
        stamp=False, nocomp=False, prio=3, early=1, first=1, spec=True, nofin=False, nst=4, qf='nt', slow=None,
        warm=8, name=NAME):
    KV_BYTES = 256*4096*768
    L_RING, L_PAR = 0, 73728
    L_VSZ = L_PAR + 17*3072
    L_STAT = L_VSZ + 16384
    L_SLOT = L_STAT + 256
    L_THR = L_SLOT + 4*3072
    L_TAG, L_MAX = L_THR + 4, L_THR + 64
    L_Q = L_MAX + 192
    LDS = L_Q + 4*1536
    RIMG, WS_E = 3328, 1 << 20
    WS_STAMP, WS_FB = 8 << 20, 16 << 20
    RSTR = 4096*17 if sep else 4
    FB_END = WS_FB + 8*RSTR + (256//per + 1)*256
    TAGW = 5000
    A = Asm()
    va = VAlloc(1)
    vLane = va(); vW = va(); vT1 = va(); vT2 = va(); vT3 = va(); vT4 = va()
    vPa = va(4); vLogA = va(); vRing = va(); vRd = va()
    vM = va(); vLa = va(); vLb = va()
    vPar = va(16); vPad = va(2)
    vX = va(24, 4)
    vZ = va(24, 4); vS = va(24, 4)
    vB = vZ
    vRaw = va(24, 4)
    vKb = va(12, 4); vD = va(8, 4); vGb = va(); vQA = va(); vMaxA = va(); vSlotA = va(); vStatA = va(); vMx = va(4, 4)
    vAcc = va(48, 4)
    vQ = vAcc
    vP = vAcc + 24
    vSum = va(); vCor = va(); vLg = va(); vSZ = va(4); vE = va(6)
    NV = va.n
    assert NV <= 256, NV
    sW, sBase, sT0, sT1, sT2, sBlk, sSlot, sPar = 56, 57, 58, 59, 60, 61, 62, 63
    sLog2e, sScale, sHi, s768 = 64, 65, 66, 67
    sC, sM, sLev, sProg, sRot, sHead, sInt, sLevSum = 68, 69, 70, 71, 72, 73, 74, 75
    sNow, sFbP, sRef = 96, 98, 84
    sC1, sC2, sLead, sJ, sP, sRnd = 3, 73, 72, 100, 101, 74
    WS_PART = 0
    SRD_L, SRD_KS, SRD_KZ, SRD_VS, SRD_VZ, SRD_Q, SRD_O, SRD_D = 24, 28, 32, 36, 40, 44, 48, 52
    def srd(d, p, nbytes):
        A(f"s_mov_b32 s{d}, s{p}"); A(f"s_and_b32 s{d+1}, s{p+1}, 0xffff")
        A(f"s_mov_b32 s{d+2}, {nbytes}"); A(f"s_mov_b32 s{d+3}, 0x20000")
    def tok_of(dst, n, isb, t, u):
        A(f"v_cmp_le_u32 vcc, 43, v{n}")
        A(f"v_add_u32 v{t}, 43, v{n}")
        A(f"v_mov_b32 v{u}, 42")
        A(f"v_cndmask_b32 v{dst}, v{n}, v{t}, vcc")
        A(f"v_cmp_le_u32 vcc, 86, v{n}")
        A(f"v_add_u32 v{t}, 43, v{dst}")
        A("s_nop 0")
        A(f"v_cndmask_b32 v{dst}, v{dst}, v{t}, vcc")
        A(f"v_cndmask_b32 v{u}, 43, v{u}, vcc")
        A(f"v_mad_u32_u24 v{dst}, v{u}, v{isb}, v{dst}")
    def stamp_out(idx_expr):
        A("s_waitcnt vmcnt(0)")
        A("s_memrealtime s[82:83]")
        A.label("L_fin2")
        A("s_getreg_b32 s84, hwreg(HW_REG_XCC_ID)")
        A("s_getreg_b32 s85, hwreg(HW_REG_HW_ID)")
        A("s_and_b32 s85, s85, 0xffff")
        A(f"s_or_b32 s85, s85, s{sLevSum}")
        A("s_waitcnt lgkmcnt(0)")
        srd(76, 22, WS_STAMP + 1792*32)
        for k, sr in enumerate((80, 81, 82, 83, 84, 85, 92, 94)): A(f"v_mov_b32 v{vX+k}, s{sr}")
        A("s_mul_i32 s85, s2, 7"); A(f"s_add_u32 s85, s85, s{sW}"); A("s_lshl_b32 s85, s85, 5")
        A(f"s_add_u32 s85, s85, {WS_STAMP}")
        A(f"v_mov_b32 v{vT3}, 0")
        A("s_mov_b64 exec, 1")
        A(f"buffer_store_dwordx4 {vr(vX, 4)}, v{vT3}, s[76:79], s85 offen")
        A(f"buffer_store_dwordx4 {vr(vX+4, 4)}, v{vT3}, s[76:79], s85 offen offset:16")

    A("s_load_dwordx16 s[4:19], s[0:1], 0")
    A("s_load_dwordx4 s[20:23], s[0:1], 64")
    A("s_cmp_ge_u32 s2, 256")
    A("s_cbranch_scc1 L_end")
    if stamp:
        A("s_memrealtime s[80:81]")
        A(f"s_mov_b32 s{sLevSum}, 0"); A("s_mov_b32 s92, 0"); A("s_mov_b32 s94, 0")
    if slow:
        A(f"s_mul_i32 s{sT0}, s2, {slow[0]}"); A(f"s_bfe_u32 s{sT0}, s{sT0}, {4 | (2 << 16)}")
        A(f"s_mul_i32 s{sT0}, s{sT0}, {slow[1]}")
        A.label("L_slow")
        A("s_sleep 32")
        A(f"s_sub_i32 s{sT0}, s{sT0}, 1")
        A(f"s_cmp_gt_i32 s{sT0}, 0")
        A("s_cbranch_scc1 L_slow")
    A(f"v_lshrrev_b32 v{vW}, 6, v0")
    A(f"v_and_b32 v{vLane}, 63, v0")
    A(f"v_readfirstlane_b32 s{sW}, v{vW}")
    sPhys = 72
    lBase, lOdd, lIsB, lAddr, lThr, lThrA, lTa = 8, 11, 14, 17, 20, 21, 22
    A.c("work item m = GF(2)-linear image of the workgroup id, chosen so dies and DRAM banks line up well (speed only)")
    A(f"s_mov_b32 s{sPhys}, s2")
    A(f"s_bfe_u32 s{sT0}, s2, {4 | (3 << 16)}"); A(f"s_lshr_b32 s{sT1}, s2, 1"); A(f"s_and_b32 s{sT1}, s{sT1}, 2")
    A(f"s_xor_b32 s2, s2, s{sT0}"); A(f"s_xor_b32 s2, s2, s{sT1}")
    A(f"s_bfe_u32 s{sT0}, s2, {1 | (1 << 16)}"); A(f"s_xor_b32 s2, s2, s{sT0}")
    if mtab:
        A("s_waitcnt lgkmcnt(0)")
        A(f"s_lshl_b32 s{sT0}, s{sPhys}, 2"); A(f"s_add_u32 s{sT0}, s{sT0}, {10 << 20}")
        A(f"s_load_dword s2, s[22:23], s{sT0}")
        A("s_waitcnt lgkmcnt(0)")
        A("s_and_b32 s2, s2, 255")
    if xm:
        par = lambda x: bin(x).count("1") & 1
        cls = lambda m: sum(par(m & f) << k for k, f in enumerate(xm))
        cols = [min(m for m in range(256) if cls(m) == 1 << k) for k in range(3)]
        sp = {0}
        for m in range(1, 256):
            if cls(m) == 0 and m not in sp:
                cols.append(m); sp |= {x ^ m for x in sp}
        A("s_mov_b32 s2, 0")
        for k, c in enumerate(cols):
            A(f"s_bitcmp1_b32 s{sPhys}, {k}")
            A(f"s_cselect_b32 s{sT0}, {c}, 0")
            A(f"s_xor_b32 s2, s2, s{sT0}")
    A.c("first block (32m + 1) / 3; wave w starts half-step w of it")
    A(f"s_mul_i32 s{sBase}, s2, {32*43691}"); A(f"s_add_u32 s{sBase}, s{sBase}, 43691"); A(f"s_lshr_b32 s{sBase}, s{sBase}, 17")
    A.c("a step is four rows of stream A then four rows of stream B (6 KiB), moved 1 KiB per instruction")
    A(f"v_lshlrev_b32 v{lBase}, 4, v{vLane}")
    if blast:
        A(f"s_and_b32 s{sT1}, s{sW}, 1"); A(f"s_mul_i32 s{sT1}, s{sT1}, {41*768}")
        A(f"s_lshl_b32 s{sT0}, s{sBase}, 7"); A(f"s_add_u32 s{sT0}, s{sT0}, s{sW}"); A(f"s_mul_i32 s{sT0}, s{sT0}, 1536")
        A(f"s_add_u32 s{sT0}, s{sT0}, s{sT1}")
        A(f"s_mul_i32 m0, s{sW}, 3072")
        A(f"s_mov_b32 s{SRD_L+2}, {KV_BYTES}"); A(f"s_mov_b32 s{SRD_L+3}, 0x20000")
        A("s_waitcnt lgkmcnt(0)")
        if stamp: A("s_memrealtime s[92:93]")
        A(f"s_mov_b32 s{SRD_L}, s6"); A(f"s_and_b32 s{SRD_L+1}, s7, 0xffff")
        for k in range(3):
            A(f"buffer_load_dwordx4 v{lBase}, s[{SRD_L}:{SRD_L+3}], s{sT0} offen offset:{1024*k} nt lds")
    A.c("lane k < 16: vGb = global 256-token block visited at sequence position k")
    A(f"s_mul_i32 s{sJ}, s2, 43691"); A(f"s_lshr_b32 s{sJ}, s{sJ}, 17")
    A(f"s_mul_i32 s{sP}, s{sJ}, 3"); A(f"s_sub_u32 s{sP}, s2, s{sP}")
    A(f"s_cmp_eq_u32 s2, 255"); A(f"s_cselect_b32 s{sC2}, 16, 11")
    A(f"s_cmp_eq_u32 s{sP}, 1"); A(f"s_cselect_b32 s{sC1}, 5, s{sC2}"); A(f"s_cselect_b32 s{sC2}, 10, s{sC2}")
    A(f"s_sub_u32 s{sT0}, 2, s{sP}"); A(f"s_mul_i32 s{sT0}, s{sT0}, 11"); A(f"s_lshr_b32 s{sT0}, s{sT0}, 1")
    A(f"s_lshl_b32 s{sT1}, s{sJ}, 4"); A(f"s_sub_u32 s{sT0}, s{sT0}, s{sT1}")
    A(f"s_add_u32 s{sT0}, s{sT0}, {255*16}"); A(f"s_sub_u32 s{sT0}, s{sT0}, s{sC2}")
    A(f"v_cmp_le_u32 vcc, s{sC2}, v{vLane}")
    A(f"v_add_u32 v{vT1}, s{sBase}, v{vLane}")
    A(f"v_add_u32 v{vT2}, s{sT0}, v{vLane}")
    A(f"v_cndmask_b32 v{vGb}, v{vT1}, v{vT2}, vcc")
    A(f"s_cmp_eq_u32 s{sW}, 4")
    A("s_cbranch_scc1 L_loader")
    A(f"s_cmp_lt_u32 s{sW}, 4")
    A("s_cbranch_scc1 L_consumer")
    if nstage == 1:
        A(f"s_cmp_eq_u32 s{sW}, 6")
        A("s_cbranch_scc1 L_ctl")
    A.c("stage q, kz / ks and vs / vz of all sequence blocks in LDS")
    A("s_waitcnt lgkmcnt(0)")
    srd(SRD_Q, 4, 256*1536)
    srd(SRD_KZ, 12, 256*24576); srd(SRD_KS, 10, 256*24576)
    srd(SRD_VS, 14, 256*8192); srd(SRD_VZ, 16, 256*8192)
    A(f"s_sub_u32 s{sBlk}, s{sW}, 5")
    A(f"s_mov_b32 s{sSlot}, s{sBlk}")
    A("s_mov_b32 exec_hi, 0xffff")
    A.label("L_stq")
    A(f"s_mul_i32 s{sT0}, s{sSlot}, s{sC1}")
    A(f"s_cmp_lt_u32 s{sT0}, 15")
    A("s_cbranch_scc0 L_stage")
    A(f"v_readlane_b32 s{sT0}, v{vGb}, s{sT0}")
    A(f"s_mul_i32 s{sT1}, s{sSlot}, 1536"); A(f"s_add_u32 m0, s{sT1}, {L_Q}")
    A(f"s_add_u32 s{sSlot}, s{sSlot}, {nstage}")
    A(f"s_lshr_b32 s{sT0}, s{sT0}, 4"); A(f"s_mul_i32 s{sT0}, s{sT0}, 1536")
    A(f"buffer_load_dwordx4 v{lBase}, s[{SRD_Q}:{SRD_Q+3}], s{sT0} offen nt lds")
    A(f"buffer_load_dwordx4 v{lBase}, s[{SRD_Q}:{SRD_Q+3}], s{sT0} offen offset:768 nt lds")
    A("s_branch L_stq")
    A.label("L_stage")
    A(f"v_readlane_b32 s{sT2}, v{vGb}, s{sBlk}")
    A(f"s_mul_i32 s{sT1}, s{sBlk}, 3072"); A(f"s_add_u32 m0, s{sT1}, {L_PAR + 3072}")
    A("s_mov_b32 exec_hi, 0xffff")
    A(f"s_mul_i32 s{sT0}, s{sT2}, 1536")
    for a, sr in enumerate((SRD_KZ, SRD_KS)):
        A(f"buffer_load_dwordx4 v{lBase}, s[{sr}:{sr+3}], s{sT0} offen nt lds")
        A(f"buffer_load_dwordx4 v{lBase}, s[{sr}:{sr+3}], s{sT0} offen offset:768 nt lds")
        if a == 0:
            A("s_add_u32 m0, m0, 1536"); A(f"s_lshl_b32 s{sT1}, s{sBlk}, 10")
    A(f"s_add_u32 m0, s{sT1}, {L_VSZ}")
    A("s_mov_b32 exec_hi, 0")
    A(f"s_lshl_b32 s{sT0}, s{sT2}, 9")
    A(f"buffer_load_dwordx4 v{lBase}, s[{SRD_VS}:{SRD_VS+3}], s{sT0} offen nt lds")
    A("s_add_u32 m0, m0, 512")
    A(f"s_add_u32 s{sBlk}, s{sBlk}, {nstage}")
    A(f"buffer_load_dwordx4 v{lBase}, s[{SRD_VZ}:{SRD_VZ+3}], s{sT0} offen nt lds")
    A(f"s_cmp_lt_u32 s{sBlk}, 16")
    A("s_cbranch_scc1 L_stage")
    A("s_mov_b32 exec_hi, -1")
    if nstage == 2:
        A(f"s_cmp_eq_u32 s{sW}, 6")
        A("s_cbranch_scc1 L_ctl")
    A("s_branch L_finisher")
    A.c("==================== loader")
    A.label("L_loader")

    sOff, sAcc, sThr, s1024, sAl, sBe, sJmp = sBase, sInt, sLev, sProg, sM, sSlot, sPar
    his = [(a, min(a+hstep-1, hi)) for a in range(top+1, hi+1, hstep)]
    if prio: A(f"s_setprio {prio}")
    assert blast
    lG2, lG3, lA1, lA2, lB1, lB2 = 11, 12, 13, 14, 15, 16
    sOffB, sMA, sB1, sB2a, sB2b, sMsk = sAl, sBe, sJmp, 86, 87, 84
    A(f"s_mul_i32 s{sOff}, s{sBase}, {256*768}")
    A(f"s_add_u32 s{sOffB}, s{sOff}, {(12 + 43)*768}")
    A(f"s_mov_b32 m0, {L_RING + 7*3072}")
    A(f"s_add_u32 s{sOff}, s{sOff}, {16*768}")
    for k in range(3):
        A(f"buffer_load_dwordx4 v{lBase}, s[{SRD_L}:{SRD_L+3}], s{sOffB} offen offset:{1024*k} nt lds")
    A(f"s_add_u32 s{sOffB}, s{sOffB}, {4*768}")
    A(f"v_lshrrev_b32 v{lG2}, 5, v{vLane}")
    A(f"v_add_u32 v{lTa}, 48, v{vLane}"); A(f"v_lshrrev_b32 v{lG3}, 6, v{lTa}")
    for r in (lA1, lA2, lB1, lB2): A(f"v_mov_b32 v{r}, v{lBase}")
    A(f"s_mov_b32 s{sC}, 4"); A(f"s_mov_b32 s{sMA}, {L_RING + 24576}")
    for r in (sB1, sB2a, sB2b): A(f"s_mov_b32 s{r}, 0")
    A(f"s_mov_b32 s{sThr}, {int(thr0)}"); A(f"s_mov_b32 s{sAcc}, 0")
    A(f"v_mov_b32 v{lThr}, {int(thr0*256)}"); A(f"v_mov_b32 v{lThrA}, {L_THR}")
    A(f"ds_write_b32 v{lThrA}, v{lThr}")
    if not blast:
        A("s_waitcnt lgkmcnt(0)")
        if stamp: A("s_memrealtime s[92:93]")
        srd(SRD_L, 6, KV_BYTES)
    if stamp == 7:
        A("s_waitcnt vmcnt(2)"); A("s_memrealtime s[94:95]")
    A.c("one step per pass; the entry points set the window; the next step's offsets are formed between the loads")
    def chain_loop(a, b, tag):
        def ladder(pre):
            if a == b: return
            for n in range(b, a, -1):
                A(f"s_cmp_eq_u32 s{sThr}, {n}")
                A(f"s_cbranch_scc1 {pre}{n}")
        def waits(pre):
            for n in range(a, b+1):
                A.label(f"{pre}{n}")
                A(f"s_waitcnt vmcnt({n})")
        work = [f"s_add_u32 s{sC}, s{sC}, 1", f"s_and_b32 s{sT0}, s{sC}, 31",
                f"s_add_u32 s{sT2}, s{sB1}, 3072", f"s_add_u32 s{sNA}, s{sT2}, s{sB2a}", f"s_add_u32 s{sNB}, s{sT2}, s{sB2b}",
                (f"s_cmp_eq_u32 s{sT0}, 10", f"s_cselect_b32 s{sB1}, {43*768}, 0"),
                (f"s_cmp_eq_u32 s{sT0}, 21", f"s_cselect_b32 s{sB2a}, {43*768}, 0", f"s_cselect_b32 s{sB2b}, {42*768}, 0"),
                f"v_mad_u32_u24 v{lTa}, v{lG3}, s{sB1}, v{lBase}"]
        after = {"A1": [f"v_mad_u32_u24 v{lA1}, v{lG2}, s{sB2a}, v{lBase}"], "B1": [f"v_mad_u32_u24 v{lB1}, v{lG2}, s{sB2b}, v{lBase}"],
                 "A2": [f"v_add_u32 v{lA2}, s{sB2a}, v{lTa}", f"s_add_u32 s{sOff}, s{sOff}, s{sNA}"],
                 "B2": [f"v_add_u32 v{lB2}, s{sB2b}, v{lTa}", f"s_add_u32 s{sOffB}, s{sOffB}, s{sNB}"]}
        cnt = {"A": 0, "B": 0}; late_ = []; cur = seq[0]; nw = 0
        letters = seq.replace("|", "")
        waits("L_lw")
        pos = 0
        for ch in seq:
            if ch == "|":
                nw += 1
                ladder(f"L_lx{nw}_{tag}_"); waits(f"L_lx{nw}_{tag}_")
                continue
            k = cnt[ch]; cnt[ch] += 1
            va_ = lBase if k == 0 else {"A": (lA1, lA2), "B": (lB1, lB2)}[ch][k-1]
            A(f"buffer_load_dwordx4 v{va_}, s[{SRD_L}:{SRD_L+3}], s{sOff if ch == 'A' else sOffB} offen offset:{1024*k} nt lds")
            pos += 1
            if pos < 6 and letters[pos] != ch:
                A(f"s_add_u32 m0, s{sMA}, {mo(letters[pos])}")
            late_ += after.get(ch + str(k), [])
            n = 0
            while work and n < 4:
                x = work.pop(0)
                for y in ([x] if isinstance(x, str) else x): A(y); n += 1
            if not work:
                for y in late_: A(y); n += 1
                late_ = []
            if n == 0 and pos < 6: A("s_nop 0")
        A(f"s_add_u32 s{sMA}, s{sMA}, 6144")
        A(f"s_add_u32 m0, s{sMA}, {mo(letters[0])}")
        A(f"s_and_b32 s{sT1}, s{sC}, 3")
        if a == b:
            A(f"s_cbranch_scc1 L_lw{a}")
            A("s_branch L_lunit")
            return
        A("s_cbranch_scc0 L_lunit")
        A.label(f"L_lad{tag}")
        ladder("L_lw")
        A(f"s_branch L_lw{a}")
    sNA, sNB, sMX = 88, 89, 90
    mo = lambda ch: (f"s{sMX + (ch == 'B')}" if mirror else (3072 if ch == 'B' else 0))
    A(f"s_mov_b32 s{sT0}, 4")
    A("s_branch L_lnobar")
    chain_loop(lo, top, "")
    A.label("L_lunit")
    A.c("unit boundary: release the previous unit, pick up the window size")
    A("s_waitcnt vmcnt(24)")
    A(f"s_cmp_eq_u32 s{sC}, 8")
    A("s_cbranch_scc1 L_lfirst")
    A.label("L_lbar")
    A("s_barrier")
    A.label("L_lnobar")
    A("s_waitcnt lgkmcnt(0)")
    A(f"v_readfirstlane_b32 s{sT1}, v{lThr}")
    A(f"ds_read_b32 v{lThr}, v{lThrA}")
    A(f"s_cmp_eq_u32 s{sMA}, {L_RING + 73728}")
    A(f"s_cselect_b32 s{sMA}, {L_RING}, s{sMA}")
    if mirror:
        A(f"s_cmp_ge_u32 s{sT0}, 24")
        A(f"s_cselect_b32 s{sMX}, 3072, 0"); A(f"s_cselect_b32 s{sMX+1}, 0, 3072")
        A(f"s_cmp_eq_u32 s{sT0}, 24")
        A(f"s_cselect_b32 s{sT2}, s{sOffB}, s{sOff}"); A(f"s_cselect_b32 s{sOffB}, s{sOff}, s{sOffB}"); A(f"s_mov_b32 s{sOff}, s{sT2}")
    A(f"s_add_u32 m0, s{sMA}, {mo(seq[0])}")
    A(f"s_and_b32 s{sAcc}, s{sAcc}, 255")
    A(f"s_add_u32 s{sAcc}, s{sAcc}, s{sT1}")
    A(f"s_lshr_b32 s{sThr}, s{sAcc}, 8")
    A(f"s_cmp_eq_u32 s{sT0}, 0")
    if not his:
        A("s_cbranch_scc0 L_lad")
    else:
        A("s_cbranch_scc1 L_lblock")
        A.label("L_lsel")
        A(f"s_cmp_le_u32 s{sThr}, {top}")
        A("s_cbranch_scc1 L_lad")
        for a, b in his[:-1]:
            A(f"s_cmp_le_u32 s{sThr}, {b}")
            A(f"s_cbranch_scc1 L_l{'w' if a == b else 'ad'}{a}")
        A(f"s_branch L_l{'w' if his[-1][0] == his[-1][1] else 'ad'}{his[-1][0]}")
    back = "L_lsel" if his else "L_lad"
    A.label("L_lblock")
    A(f"s_bfe_u32 s{sT0}, s{sC}, {5 | (4 << 16)}")
    A(f"v_readlane_b32 s{sOff}, v{vGb}, s{sT0}")
    A("s_nop 3")
    A(f"s_mul_i32 s{sOff}, s{sOff}, {256*768}")
    A(f"s_add_u32 s{sOffB}, s{sOff}, {43*768}")
    A(f"s_cmp_eq_u32 s{sT0}, 0")
    A(f"s_cbranch_scc0 {back}")
    A(f"s_cmp_eq_u32 s{sC}, 1024")
    A("s_cbranch_scc1 L_ldone")
    A(f"s_mov_b32 s{SRD_L}, s8"); A(f"s_and_b32 s{SRD_L+1}, s9, 0xffff")
    A(f"s_branch {back}")
    A.label("L_lfirst")
    A("s_barrier")
    A("s_branch L_lbar")
    A.label("L_ldone")
    A("s_waitcnt vmcnt(0)")
    A("s_barrier")
    if stamp:
        A("s_memrealtime s[82:83]"); A("s_barrier"); A("s_branch L_fin2")
    else: A("s_endpgm")
    for a, b in his: chain_loop(a, b, str(a))

    A.c("==================== window control")
    A.label("L_ctl")
    pRep, pVal, pThrA, pLog = 8, 9, 10, 20
    if seg: A("s_memrealtime s[78:79]")
    if warm:
        A.c("a few workgroups pull the code into their L2 ahead of its first use")
        A(f"s_sub_u32 s{sT0}, s{sPhys}, 8")
        A(f"s_cmp_lt_u32 s{sT0}, {warm}")
        A("s_cbranch_scc0 L_ctl_init")
        A(f"s_getpc_b64 s[{SRD_Q}:{SRD_Q+1}]")
        A.label("L_pc")
        A(f"s_and_b32 s{SRD_Q+1}, s{SRD_Q+1}, 0xffff")
        A(f"s_mov_b32 s{SRD_Q+2}, L_end - L_pc"); A(f"s_mov_b32 s{SRD_Q+3}, 0x20000")
        A(f"v_lshlrev_b32 v{pVal}, 7, v{vLane}")
        for k in range(4):
            A(f"s_movk_i32 s{sT0}, {k*8192}")
            A(f"buffer_load_dword v{12+k}, v{pVal}, s[{SRD_Q}:{SRD_Q+3}], s{sT0} offen")
        A.label("L_ctl_init")
    A("s_waitcnt lgkmcnt(0)")
    srd(SRD_D, 22, FB_END)
    A(f"s_mov_b32 s{sProg}, 0")
    A(f"s_add_u32 s{sFbP}, s22, {WS_FB}"); A(f"s_addc_u32 s{sFbP+1}, s23, 0")
    sRepo, sD, sSl, sFf = sBlk, sBase, 92 if not stamp else 76, 94 if not stamp else 78
    A.c("reporters: workgroups 0..7")
    A(f"s_cmp_lt_u32 s{sPhys}, 8"); A(f"s_cselect_b32 s{sRepo}, 1, 0")
    A(f"s_and_b32 s{sT1}, s{sPhys}, 7"); A(f"s_mul_i32 s{sT1}, s{sT1}, {RSTR}"); A(f"s_add_u32 s{sT1}, s{sT1}, {WS_FB}")
    if phase:
        A.c("schedule offset (0, +1, -1 windows by part) that keeps all streams at the same address phase")
        A(f"s_cmp_eq_u32 s{sP}, 2"); A(f"s_cselect_b32 s{sSl}, -1, s{sP}"); A(f"s_mov_b32 s{sD}, 0")
    if align:
        A.c("schedule offsets that make all workgroups leave region 1 together")
        tau = 652*per//8
        sl = [[round(-align*tau/33), round(align*tau/15)], [round(align*tau/15), round(-align*tau/9)]]
        fw = [[round(align*ff*256*20.5*x) for x in (1/32, -1/16)], [round(align*ff*256*20.5*x) for x in (-1/16, 1/8)]]
        for k in range(2):
            for dst, tab in ((sSl, sl), (sFf, fw)):
                A(f"s_mov_b32 s{dst+k}, {tab[0][k]}")
                A(f"s_cmp_eq_u32 s{sP}, 1"); A(f"s_cselect_b32 s{dst+k}, {tab[1][k]}, s{dst+k}")
                A(f"s_cmp_eq_u32 s2, 255"); A(f"s_cselect_b32 s{dst+k}, 0, s{dst+k}")
        A(f"s_mov_b32 s{sD}, 0")
    A(f"v_mov_b32 v{pRep}, s{sT1}"); A(f"v_mov_b32 v{pThrA}, {L_THR}")
    sCy, sCp, sFw, sCorr, sRaw = 28, 30, 31, 32, 33
    A(f"s_memtime s[{sCy}:{sCy+1}]"); A(f"s_memrealtime s[{sNow}:{sNow+1}]")
    A(f"s_mov_b32 s{sCorr}, 0")
    A("s_mov_b64 exec, 1")
    A("s_waitcnt lgkmcnt(0)")
    A(f"s_mov_b32 s{sRaw}, s{sNow}")
    A(f"s_waitcnt vmcnt({0 if nstage == 1 else 42})")
    A("s_barrier")
    if clk:
        A("s_memtime s[76:77]"); A("s_memrealtime s[78:79]"); A("s_waitcnt lgkmcnt(0)")
        A("s_mov_b32 s92, 0"); A(f"s_mov_b32 s{sLev}, {int(thr0*256)}")
    if diag:
        A("s_memtime s[76:77]"); A("s_memrealtime s[78:79]"); A("s_waitcnt lgkmcnt(0)")
        A("s_mov_b32 s92, 0"); A(f"s_mov_b32 s{sLev}, {int(thr0*256)}")
    if stamp:
        A("s_memtime s[92:93]"); A("s_memrealtime s[94:95]"); A("s_waitcnt lgkmcnt(0)")
    sPrev, sOn = sSlot, sPar
    A(f"s_mov_b32 s{sOn}, 0")
    A.label("L_ctl_loop")
    for u in range(per):
        A("s_barrier")
        if stamp == 6:
            A("s_memrealtime s[34:35]"); A("s_waitcnt lgkmcnt(0)")
            A(f"s_lshr_b32 s35, s{sProg}, 6"); A(f"s_add_u32 s35, s35, {u}"); A("s_min_u32 m0, s35, 63")
            A("s_sub_u32 s34, s34, s80")
            A(f"v_writelane_b32 v{pLog}, s34, m0")
        if u == 0:
            A(f"s_mov_b32 s{sPrev}, s{sNow}")
            if kap:
                A(f"s_mov_b32 s{sCp}, s{sCy}")
                A(f"s_memtime s[{sCy}:{sCy+1}]")
            A(f"s_memrealtime s[{sNow}:{sNow+1}]")
            A("s_waitcnt lgkmcnt(0)")
            if kap:
                A.c("a slower shader clock stretches every round trip: widen the window with the shortfall")
                A(f"s_sub_u32 s{sT0}, s{sNow}, s{sRaw}"); A(f"s_mul_i32 s{sT0}, s{sT0}, {round(f0*16)}")
                A(f"s_mov_b32 s{sRaw}, s{sNow}")
                A(f"s_sub_u32 s{sT1}, s{sCy}, s{sCp}"); A(f"s_lshl_b32 s{sT1}, s{sT1}, 4")
                A(f"s_sub_i32 s{sT0}, s{sT0}, s{sT1}")
                A(f"s_mul_i32 s{sT0}, s{sT0}, {round(kap*256*4096/(16*81.5*per))}")
                A(f"s_ashr_i32 s{sFw}, s{sT0}, 12")
            if seg:
                A(f"s_lshr_b32 m0, s{sProg}, 8")
                A(f"s_sub_u32 s{sT0}, s{sNow}, s78")
                A(f"v_writelane_b32 v{pLog}, s{sT0}, m0")
            if diag:
                A(f"s_lshr_b32 m0, s{sProg}, 8")
                A(f"s_sub_u32 s{sT0}, s{sNow}, s78")
                A(f"v_writelane_b32 v{pLog}, s{sT0}, m0")
                A(f"s_cmp_lt_u32 s{sProg}, {56*256}"); A(f"s_cselect_b32 s93, s{sLev}, 0"); A("s_max_u32 s92, s92, s93")
            if stamp == 5:
                A(f"s_lshr_b32 m0, s{sProg}, {8 + (8//per).bit_length() - 1}")
                A(f"s_sub_u32 s{sT0}, s{sNow}, s80")
                A(f"v_writelane_b32 v{pLog}, s{sT0}, m0")
                A("s_add_u32 m0, m0, 32"); A("s_nop 0")
                A(f"v_writelane_b32 v{pLog}, s{sLev}, m0")
            if lead:
                A(f"s_lshr_b32 s{sT0}, s{sProg}, 8")
                A(f"s_sub_i32 s{sT0}, s{sT0}, {lead0}")
                A(f"s_max_i32 s{sT0}, s{sT0}, 0")
                A(f"s_mul_i32 s{sT0}, s{sT0}, s{sLead}")
                A(f"s_add_u32 s{sNow}, s{sNow}, s{sT0}")
            if align:
                A(f"s_sub_u32 s{sNow}, s{sNow}, s{sD}")
                A(f"s_bfe_u32 s{sT0}, s{sProg}, {(8 + (8//per).bit_length() - 1) | (4 << 16)}")
                A(f"s_cmp_lt_u32 s{sT0}, s{sC2}")
                A(f"s_cselect_b32 s{sT0}, s{sSl}, s{sSl+1}")
                A(f"s_add_i32 s{sD}, s{sD}, s{sT0}")
            if phase:
                tw, nin, nout, pff = phase
                NP = 256//per
                def slope(dst, shift):
                    A(f"s_sub_u32 s{sT1}, s{sProg}, {(1 - shift)*256}")
                    A(f"s_cmp_lt_u32 s{sT1}, {nin*256}"); A(f"s_cselect_b32 s{dst}, {round(tw/nin)}, 0")
                    A(f"s_sub_u32 s{sT1}, s{sProg}, {(NP - 1 - nout - shift)*256}")
                    A(f"s_cmp_lt_u32 s{sT1}, {nout*256}"); A(f"s_cselect_b32 s{dst}, {-round(round(tw/nin)*nin/nout)}, s{dst}")
                    A(f"s_mul_i32 s{dst}, s{dst}, s{sSl}")
                A(f"s_sub_u32 s{sNow}, s{sNow}, s{sD}")
                slope(sT0, 0)
                A(f"s_add_i32 s{sD}, s{sD}, s{sT0}")
                slope(sT0, 1)
                A(f"s_mul_i32 s{sT0}, s{sT0}, {round(pff*20.5*256/(81.5*per))}")
                A(f"s_sub_i32 s{sFw}, s{sFw}, s{sT0}")
            A.c("window from the lead over the reporters in the previous period")
            A(f"s_cmp_eq_u32 s{sOn}, 0")
            A("s_cbranch_scc1 L_ctl_set")
            A(f"s_mov_b32 s{sT0}, 0")
            for k in range(8):
                A(f"s_sub_i32 s{sT1}, s{sRef+k}, s{sPrev}")
                A(f"s_add_i32 s{sT2}, s{sT1}, {TAGW}")
                A(f"s_cmp_lt_u32 s{sT2}, {2*TAGW}")
                A(f"s_cselect_b32 s{sT1}, s{sT1}, {late}")
                A(f"s_add_i32 s{sT0}, s{sT0}, s{sT1}")
            if gcap:
                A(f"s_min_u32 s{sT1}, s{sOn}, {gcap}")
                A(f"s_cmp_gt_i32 s{sT0}, 0")
                A(f"s_cselect_b32 s{sOn}, s{sT1}, s{sOn}")
            A(f"s_mul_i32 s{sT0}, s{sT0}, s{sOn}")
            A(f"s_ashr_i32 s{sT0}, s{sT0}, 5")
            if kap:
                A(f"s_mov_b32 s{sCorr}, s{sT0}")
                A.label("L_ctl_set")
                A(f"s_sub_i32 s{sT0}, s{sFw}, s{sCorr}")
                A(f"s_add_i32 s{sT0}, s{sT0}, {int(thr0*256)}")
            else:
                A(f"s_sub_i32 s{sT0}, {int(thr0*256)}, s{sT0}")
            if align:
                A(f"s_add_u32 s{sT1}, s{sProg}, 256")
                A(f"s_min_u32 s{sT1}, s{sT1}, {(256//per - 1)*256}")
                A(f"s_bfe_u32 s{sT1}, s{sT1}, {(8 + (8//per).bit_length() - 1) | (4 << 16)}")
                A(f"s_cmp_lt_u32 s{sT1}, s{sC2}")
                A(f"s_cselect_b32 s{sT1}, s{sFf}, s{sFf+1}")
                A(f"s_add_i32 s{sT0}, s{sT0}, s{sT1}")
            if swb:
                A(f"s_bfe_u32 s{sT1}, s{sProg}, {8 | (5 << 16)}"); A(f"s_add_u32 s{sT1}, s{sT1}, {swb[1]}")
                A(f"s_lshl_b32 s{sT2}, s{sC2}, 1")
                A(f"s_cmp_eq_u32 s{sT1}, s{sT2}"); A(f"s_cselect_b32 s{sT2}, {int(swb[0]*256)}, 0")
                A(f"s_cmp_eq_u32 s{sT1}, 32"); A(f"s_cselect_b32 s{sT2}, {int(swb[0]*256)}, s{sT2}")
                A(f"s_add_i32 s{sT0}, s{sT0}, s{sT2}")
            if boost:
                A(f"s_cmp_ge_u32 s{sProg}, {boost0*256}")
                A(f"s_cselect_b32 s{sT1}, {int(boost*256)}, 0")
                A(f"s_add_i32 s{sT0}, s{sT0}, s{sT1}")
            A(f"s_max_i32 s{sT0}, s{sT0}, {lo*256}")
            A(f"s_min_i32 s{sLev}, s{sT0}, {hi*256}")
            A(f"v_mov_b32 v{pVal}, s{sLev}")
            A(f"ds_write_b32 v{pThrA}, v{pVal}")
            if not kap: A.label("L_ctl_set")
            A.c("gain of this period (0: period not used)")
            A(f"s_and_b32 s{sT0}, s{sProg}, {(skip-1)*256}")
            A(f"s_cselect_b32 s{sOn}, 0, {gain}")
            if gain2:
                A(f"s_cmp_ge_u32 s{sProg}, {int(g2at*256/per)*256}")
                A(f"s_cselect_b32 s{sOn}, {gain2}, s{sOn}")
            A(f"s_cmp_eq_u32 s{sProg}, {(256//per - 1)*256}")
            A(f"s_cselect_b32 s{sOn}, 0, s{sOn}")
            A(f"s_mul_i32 s{sT0}, s{sOn}, s{sRepo}")
            A(f"s_cmp_eq_u32 s{sT0}, 0")
            A("s_cbranch_scc1 L_ctl_norep")
            A(f"v_mov_b32 v{pVal+2}, s{sNow}")
            A(f"buffer_store_dword v{pVal+2}, v{pRep}, s[{SRD_D}:{SRD_D+3}], s{sProg} offen sc1")
            A.label("L_ctl_norep")
        if tlb and u == 1:
            A.c("touch the block after next through the scalar path so its translation is ready")
            A(f"s_lshr_b32 s{sT0}, s{sProg}, 8"); A(f"s_add_u32 s{sT0}, s{sT0}, {tlb}"); A(f"s_lshr_b32 s{sT0}, s{sT0}, 1")
            A(f"s_and_b32 s{sT1}, s{sT0}, 15")
            A(f"v_readlane_b32 s{sT1}, v{vGb}, s{sT1}")
            A(f"s_cmp_lt_u32 s{sT0}, 16")
            A("s_cselect_b32 s34, s6, s8"); A("s_cselect_b32 s35, s7, s9")
            A(f"s_mul_i32 s{sT1}, s{sT1}, {256*768}")
            A(f"s_load_dword s33, s[34:35], s{sT1}")
        if u == per - 1 and nstage == 2: A("s_waitcnt vmcnt(0)")
        if u == per - 1:
            A(f"s_cmp_eq_u32 s{sOn}, 0")
            A("s_cbranch_scc1 L_ctl_nold")
            if sep:
                for k in range(8):
                    A(f"s_add_u32 s{sT0}, s{sProg}, {k*RSTR}")
                    A(f"s_load_dword s{sRef+k}, s[{sFbP}:{sFbP+1}], s{sT0}")
            else:
                A(f"s_load_dwordx8 s[{sRef}:{sRef+7}], s[{sFbP}:{sFbP+1}], s{sProg}")
            A.label("L_ctl_nold")
    if clk == 2:
        A(f"s_cmp_lt_u32 s{sProg}, {56*256}"); A(f"s_cselect_b32 s93, s{sLev}, 0"); A("s_max_u32 s92, s92, s93")
    A(f"s_add_u32 s{sProg}, s{sProg}, 256")
    A(f"s_cmp_lt_u32 s{sProg}, {256//per*256}")
    A("s_cbranch_scc1 L_ctl_loop")
    A("s_waitcnt lgkmcnt(0)")
    if clk:
        A("s_memtime s[80:81]"); A("s_memrealtime s[82:83]"); A("s_waitcnt lgkmcnt(0)")
        A("s_barrier")
        A("s_sub_u32 s80, s80, s76"); A("s_sub_u32 s81, s82, s78")
        A(f"s_mul_i32 s81, s81, {15 if clk > 0 else 25}")
        A("s_sub_i32 s80, s80, s81" if clk > 0 else "s_sub_i32 s80, s81, s80")
        A("s_ashr_i32 s80, s80, 3"); A("s_add_i32 s80, s80, 30000"); A("s_min_u32 s80, s80, 100000")
        if clk == 2:
            A(f"s_sub_u32 s92, s92, {int(thr0*256)}"); A("s_lshr_b32 s92, s92, 6"); A("s_mul_i32 s92, s92, 5000")
            A("s_sub_u32 s80, s82, s78"); A("s_add_u32 s80, s80, s92"); A("s_add_u32 s80, s80, 10000"); A("s_min_u32 s80, s80, 200000")
        if clk == -3:
            A("s_sub_u32 s80, s80, 30000"); A("s_lshr_b32 s80, s80, 12"); A("s_mul_i32 s92, s80, 10000")
            A("s_sub_u32 s80, s82, s78"); A("s_add_u32 s80, s80, s92"); A("s_add_u32 s80, s80, 3000"); A("s_min_u32 s80, s80, 200000")
        A.label("L_hold")
        A("s_sleep 4")
        A("s_memrealtime s[82:83]"); A("s_waitcnt lgkmcnt(0)")
        A("s_sub_u32 s81, s82, s78")
        A("s_cmp_lt_u32 s81, s80")
        A("s_cbranch_scc1 L_hold")
    A("s_mov_b64 exec, -1")
    if seg:
        a_, b_, mult, wsel = seg
        A("s_memrealtime s[82:83]"); A("s_waitcnt lgkmcnt(0)")
        A("s_barrier")
        if wsel is not None:
            A(f"s_cmp_eq_u32 s2, {wsel}"); A("s_cbranch_scc0 L_end")
        if b_ < 64: A(f"v_readlane_b32 s80, v{pLog}, {b_}")
        else: A("s_sub_u32 s80, s82, s78")
        if a_ >= 0: A(f"v_readlane_b32 s81, v{pLog}, {a_}")
        else: A("s_mov_b32 s81, 0")
        A("s_nop 3")
        A("s_sub_u32 s80, s80, s81"); A(f"s_mul_i32 s80, s80, {mult}"); A("s_add_u32 s80, s80, 30000"); A("s_min_u32 s80, s80, 200000")
        A.label("L_hold2")
        A("s_sleep 4")
        A("s_memrealtime s[82:83]"); A("s_waitcnt lgkmcnt(0)")
        A("s_sub_u32 s81, s82, s78")
        A("s_cmp_lt_u32 s81, s80")
        A("s_cbranch_scc1 L_hold2")
    if diag:
        A("s_memtime s[80:81]"); A("s_memrealtime s[82:83]"); A("s_waitcnt lgkmcnt(0)")
        A("s_barrier")
        srd(SRD_D, 20, 256)
        A("s_mov_b64 exec, 1")
        A(f"s_cmp_lt_u32 s92, {int((thr0+1.25)*256)}")
        A("s_cbranch_scc1 L_dg1")
        A("s_lshr_b32 s93, s2, 1"); A("s_lshl_b32 s94, 1, s93"); A("s_lshr_b32 s93, s93, 5"); A("s_lshl_b32 s93, s93, 2")
        A("v_mov_b32 v12, s94"); A("v_mov_b32 v13, s93")
        A(f"buffer_atomic_or v12, v13, s[{SRD_D}:{SRD_D+3}], 0 offen offset:48")
        A.label("L_dg1")
        A("s_cmp_eq_u32 s2, 99")
        A("s_cbranch_scc0 L_dg2")
        A("v_mov_b32 v13, 0")
        for k, ln in enumerate((2, 18, 24, 30, 34, 50, 56, 62)):
            A(f"v_readlane_b32 s93, v{pLog}, {ln}"); A("s_nop 3"); A("v_mov_b32 v12, s93")
            A(f"buffer_store_dword v12, v13, s[{SRD_D}:{SRD_D+3}], 0 offen offset:{4+4*k}")
        A("s_sub_u32 s80, s80, s76"); A("s_sub_u32 s82, s82, s78")
        A("v_mov_b32 v14, s82"); A("v_mov_b32 v15, s80")
        A(f"buffer_store_dwordx2 v[14:15], v13, s[{SRD_D}:{SRD_D+3}], 0 offen offset:36")
        A.label("L_dg2")
    if stamp:
        A("s_memtime s[76:77]"); A("s_memrealtime s[78:79]"); A("s_waitcnt lgkmcnt(0)")
        A("s_sub_u32 s92, s76, s92"); A("s_sub_u32 s94, s78, s94")
    if stamp and not clk: A("s_barrier")
    if stamp in (5, 6):
        srd(76, 22, (9 << 20) + 65536)
        A(f"v_lshlrev_b32 v21, 2, v{vLane}")
        A(f"s_lshl_b32 s{sT0}, s2, 8"); A(f"s_add_u32 s{sT0}, s{sT0}, {9 << 20}")
        A(f"buffer_store_dword v{pLog}, v21, s[76:79], s{sT0} offen")
    if stamp: A("s_branch L_fin")
    else: A("s_endpgm")

    A.c("==================== consumers")
    A.label("L_consumer")
    A.c("q fragments: lane = kg*16 + h'*4 + qi")
    A(f"v_lshrrev_b32 v{vT1}, 2, v{vLane}")
    A(f"v_lshlrev_b32 v{vT1}, 3, v{vT1}")
    A(f"v_and_b32 v{vT2}, 3, v{vLane}")
    A(f"v_mul_u32_u24 v{vT3}, 384, v{vT2}")
    A(f"v_add_u32 v{vQA}, v{vT1}, v{vT3}"); A(f"v_add_u32 v{vQA}, {L_Q}, v{vQA}")
    if stamp == 4: A("s_memrealtime s[92:93]")
    A(f"s_mov_b32 s{sLog2e}, {LOG2E:#x}"); A(f"s_mov_b32 s{sScale}, {SCALE:#x}")
    A(f"s_mov_b32 s{sHi}, 0xffff0000")
    A.c("K param LDS addresses: (tok>>6)*384 + (kg*4+h)*8")
    n0, isb, part = vX, vX+1, vX+2
    A(f"v_bfe_u32 v{n0}, v{vLane}, 2, 1"); A(f"v_lshl_add_u32 v{n0}, v{vW}, 2, v{n0}")
    A(f"v_bfe_u32 v{isb}, v{vLane}, 3, 1")
    A(f"v_lshrrev_b32 v{part}, 4, v{vLane}"); A(f"v_lshl_add_u32 v{part}, v{part}, 2, v{vT2}")
    A(f"v_lshlrev_b32 v{part}, 3, v{part}"); A(f"v_add_u32 v{part}, {L_PAR}, v{part}")
    A(f"s_movk_i32 s{sT0}, 384")
    for i in range(8):
        for e in range(2):
            d = vPar + 2*i + e
            A(f"v_add_u32 v{vT1}, {16*i + 2*e}, v{n0}")
            tok_of(d, vT1, isb, vT3, vT4)
            A(f"v_lshrrev_b32 v{d}, 6, v{d}")
            A(f"v_mad_u32_u24 v{d}, v{d}, s{sT0}, v{part}")
    A.c("P layout: lane = t*16 + b*4 + qi ; n = 64g + 16b + 4w + 2e + (t&1)")
    A(f"v_bfe_u32 v{n0}, v{vLane}, 4, 1"); A(f"v_lshl_add_u32 v{n0}, v{vW}, 2, v{n0}")
    A(f"v_bfe_u32 v{vT1}, v{vLane}, 2, 2"); A(f"v_lshl_add_u32 v{n0}, v{vT1}, 4, v{n0}")
    A(f"v_lshrrev_b32 v{isb}, 5, v{vLane}")
    A(f"s_mov_b32 s{sT0}, {L_VSZ}")
    for g in range(2):
        for e in range(2):
            d = vPa + 2*g + e
            A(f"v_add_u32 v{vT1}, {64*g + 2*e}, v{n0}")
            tok_of(d, vT1, isb, vT3, vT4)
            A(f"v_lshl_add_u32 v{d}, v{d}, 1, s{sT0}")
    A(f"v_lshlrev_b32 v{vLogA}, 2, v{vLane}")
    A(f"v_lshl_add_u32 v{vLogA}, v{vW}, 9, v{vLogA}")
    A(f"v_add_u32 v{vLogA}, {L_PAR}, v{vLogA}")
    def ring_addr(kind):
        if kind == "K":
            A(f"v_bfe_u32 v{vT1}, v{vLane}, 2, 2")
            A(f"v_lshrrev_b32 v{vT2}, 4, v{vLane}"); A(f"v_and_b32 v{vT3}, 3, v{vLane}")
            A(f"v_lshl_add_u32 v{vT2}, v{vT2}, 2, v{vT3}")
        else:
            A(f"v_lshrrev_b32 v{vT1}, 4, v{vLane}"); A(f"v_and_b32 v{vT2}, 15, v{vLane}")
        A(f"v_and_b32 v{vT3}, 2, v{vT1}"); A(f"v_add_u32 v{vT1}, v{vT1}, v{vT3}")
        A(f"v_lshl_add_u32 v{vT1}, v{vW}, 3, v{vT1}")
        A(f"v_mul_u32_u24 v{vT1}, 768, v{vT1}")
        A(f"v_lshl_add_u32 v{vRing}, v{vT2}, 4, v{vT1}")
    ring_addr("K")
    A(f"v_and_b32 v{vT1}, 3, v{vLane}")
    A(f"v_lshl_add_u32 v{vMaxA}, v{vT1}, 2, v{vW}")
    A(f"v_lshlrev_b32 v{vMaxA}, 2, v{vMaxA}"); A(f"v_add_u32 v{vMaxA}, {L_MAX}, v{vMaxA}")
    A(f"v_mov_b32 v{vM}, 0xff800000")
    A(f"s_mov_b32 s{sBlk}, 0"); A(f"s_mov_b32 s{sSlot}, {L_RING}"); A(f"s_movk_i32 s{sPar}, 3072")
    if stamp == 4: A("s_memrealtime s[94:95]")
    A("s_waitcnt vmcnt(0) lgkmcnt(0)")
    if stamp == 3: A("s_memrealtime s[94:95]")
    A("s_barrier")
    if stamp and stamp not in (3, 4): A("s_memrealtime s[92:93]")

    def par_reads(i):
        out = [f"v_add_u32 v{vPad+e}, s{sPar}, v{vPar+2*i+e}" for e in range(2)]
        for e in range(2):
            for j in range(3):
                out.append(f"ds_read_b64 {vr(vRaw+e*12+j*4, 2)}, v{vPad+e} offset:{j*128}")
                out.append(f"ds_read_b64 {vr(vRaw+e*12+j*4+2, 2)}, v{vPad+e} offset:{1536 + j*128}")
        return out
    def par_unpack():
        A("s_waitcnt lgkmcnt(0)")
        for k in range(6):
            for dst, src in ((vZ+4*k, vRaw+4*k), (vS+4*k, vRaw+4*k+2)):
                for h in range(2):
                    A(f"v_lshlrev_b32 v{dst+2*h}, 16, v{src+h}")
                    A(f"v_and_b32 v{dst+2*h+1}, s{sHi}, v{src+h}")
    def fetch_unit(order=range(6), pre=()):
        A(f"v_add_u32 v{vRd}, s{sSlot}, v{vRing}")
        A(f"s_add_u32 s{sSlot}, s{sSlot}, 24576")
        A(f"s_cmp_eq_u32 s{sSlot}, {L_RING + 73728}")
        A(f"s_cselect_b32 s{sSlot}, {L_RING}, s{sSlot}")
        A("s_barrier")
        if nocomp: return
        for x in pre: A(x)
        for k in order:
            A(f"ds_read_b128 {vr(vX+4*k, 4)}, v{vRd} offset:{(k//3)*1536 + (k % 3)*256}")
    def dpp_sum(e, b):
        D = vD + 4*e
        L = vLa if e == 0 else vLb
        t = vT1 + e
        return [f"v_add_f32_dpp v{t}, v{D+(b+1) % 4}, v{D+b} row_ror:12 row_mask:0xf bank_mask:0xf",
                f"v_add_f32_dpp v{t}, v{D+(b+2) % 4}, v{t} row_ror:8 row_mask:0xf bank_mask:0xf",
                f"v_add_f32_dpp v{L}, v{D+(b+3) % 4}, v{t} row_ror:4 row_mask:0xf bank_mask:{1 << b:#x}"]

    def xlane(op, r, t):
        A("s_nop 1")
        A(f"{op}_dpp v{r}, v{r}, v{r} row_ror:4 row_mask:0xf bank_mask:0xf")
        A("s_nop 1")
        A(f"{op}_dpp v{r}, v{r}, v{r} row_ror:8 row_mask:0xf bank_mask:0xf")
        for sw in ("v_permlane16_swap_b32", "v_permlane32_swap_b32"):
            A(f"v_mov_b32 v{t}, v{r}")
            A("s_nop 1")
            A(f"{sw} v{r}, v{t}")
            A(f"{op} v{r}, v{r}, v{t}")
    def q_reads():
        for j in range(3): A(f"ds_read_b64 {vr(vQ+2*j, 2)}, v{vQA} offset:{j*128}")
        A(f"v_add_u32 v{vQA}, 1536, v{vQA}")
    q_reads()
    for x in par_reads(0): A(x)
    par_unpack()
    A.label("L_kblk")
    for i in range(8):
        b = i % 4
        A.c(f"K step {i}")
        fetch_unit()
        if nocomp: continue
        for e in range(2):
            o = e*12
            A(f"s_waitcnt lgkmcnt({3 - 3*e})")
            for k in range(12): A(f"v_cvt_f32_i32 v{vX+o+k}, v{vX+o+k}")
            if pk:
                for k in range(0, 12, 2): A(f"v_pk_add_f32 {vr(vX+o+k, 2)}, {vr(vX+o+k, 2)}, {vr(vZ+o+k, 2)} neg_lo:[0,1] neg_hi:[0,1]")
            else:
                for k in range(12): A(f"v_sub_f32 v{vX+o+k}, v{vX+o+k}, v{vZ+o+k}")
            for k in range(12): A(f"v_cvt_pk_bf16_f32 v{vX+o+k}, 0, v{vX+o+k}")
            if pk:
                for k in range(0, 12, 2): A(f"v_pk_mul_f32 {vr(vX+o+k, 2)}, {vr(vX+o+k, 2)}, {vr(vS+o+k, 2)}")
            else:
                for k in range(12): A(f"v_mul_f32 v{vX+o+k}, v{vX+o+k}, v{vS+o+k}")
            packs = [f"v_cvt_pk_bf16_f32 v{vKb+e*6+k}, v{vX+o+2*k}, v{vX+o+2*k+1}" for k in range(6)]
            if e == 1:
                d = dpp_sum(0, b)
                packs = packs[0:2] + d[0:1] + packs[2:4] + d[1:2] + packs[4:6] + d[2:3]
            for x in packs: A(x)
            D = vr(vD+4*e, 4)
            for j in range(3):
                A(f"v_mfma_f32_16x16x16_bf16 {D}, {vr(vKb+e*6+2*j, 2)}, {vr(vQ+2*j, 2)}, {'0' if j == 0 else D}")
        if i == 7: A(f"s_add_u32 s{sPar}, s{sPar}, 3072")
        pr = par_reads((i+1) % 8)
        d = dpp_sum(1, b)
        for x in pr[:9] + d[0:1] + pr[9:11] + d[1:2] + pr[11:14] + d[2:3]: A(x)
        if b == 3:
            A(f"v_cvt_pk_bf16_f32 v{vT1}, 0, v{vLa}")
            A(f"v_cvt_pk_bf16_f32 v{vT2}, 0, v{vLb}")
            A(f"v_mul_f32 v{vT1}, s{sScale}, v{vT1}")
            A(f"v_mul_f32 v{vT2}, s{sScale}, v{vT2}")
            A(f"v_cvt_pk_bf16_f32 v{vT3}, v{vT1}, v{vT2}")
            A(f"v_max3_f32 v{vM}, v{vM}, v{vT1}, v{vT2}")
            A(f"ds_write_b32 v{vLogA}, v{vT3} offset:{(i//4)*256}")
        par_unpack()
    def round_end_test(loop):
        A(f"s_add_u32 s{sBlk}, s{sBlk}, 1")
        A(f"s_cmp_eq_u32 s{sBlk}, s{sC1}")
        A(f"s_cbranch_scc1 {loop}_end")
        A(f"s_cmp_eq_u32 s{sBlk}, s{sC2}")
        A(f"s_cbranch_scc1 {loop}_end")
        A(f"s_cmp_lt_u32 s{sBlk}, 16")
        A(f"s_cbranch_scc1 {loop}")
        A.label(f"{loop}_end")
    A(f"v_add_u32 v{vLogA}, 3072, v{vLogA}")
    round_end_test("L_kblk")
    A.c("end of a K round: publish the wave's max, fetch the next q")
    xlane("v_max_f32", vM, vT1)
    A(f"v_cvt_pk_bf16_f32 v{vM}, 0, v{vM}")
    A(f"v_mul_f32 v{vM}, s{sLog2e}, v{vM}")
    A(f"ds_write_b32 v{vMaxA}, v{vM}")
    A(f"v_add_u32 v{vMaxA}, 64, v{vMaxA}")
    q_reads()
    A(f"v_mov_b32 v{vM}, 0xff800000")
    A("s_waitcnt lgkmcnt(0)")
    A(f"s_cmp_lt_u32 s{sBlk}, 16")
    A("s_cbranch_scc1 L_kblk")

    if stamp and stamp not in (3, 4): A("s_memrealtime s[94:95]")
    def p_reads(g):
        return [f"v_add_u32 v{vSZ}, s{sPar}, v{vPa+2*g}",
                f"v_add_u32 v{vSZ+1}, s{sPar}, v{vPa+2*g+1}",
                f"ds_read_b32 v{vLg}, v{vLogA} offset:{g*256}",
                f"ds_read_u16 v{vSZ+2}, v{vSZ} offset:512",
                f"ds_read_u16 v{vSZ+3}, v{vSZ+1} offset:512",
                f"ds_read_u16 v{vSZ}, v{vSZ}",
                f"ds_read_u16 v{vSZ+1}, v{vSZ+1}"]
    ring_addr("V")
    A(f"v_subrev_u32 v{vLogA}, {16*3072}, v{vLogA}")
    A(f"s_mov_b32 s{sPar}, 0")
    for x in p_reads(0): A(x)
    for k in range(16): A(f"v_mov_b32 v{vP+k}, 0")
    A(f"s_mov_b32 s{sBlk}, 0")
    A.c("addresses for the end of a round and for the last hand-off (lane = ch*4 + qi, wave = third)")
    rRd, rSt, rLin, rSta, rOut, rTag = range(vPar, vPar+6)
    sLast, sImg, sOwn, sOut, sSel = sRnd, sC, sProg, sBase, 84
    A(f"v_and_b32 v{vT1}, 3, v{vLane}")
    A(f"v_lshlrev_b32 v{rSta}, 4, v{vT1}")
    A(f"v_add_u32 v{vMaxA}, {L_MAX}, v{rSta}")
    A(f"v_add_u32 v{rSt}, {L_STAT}, v{rSta}")
    A(f"v_lshl_add_u32 v{vStatA}, v{vW}, 6, v{rSt}")
    A(f"v_lshl_add_u32 v{rSta}, v{vW}, 6, v{rSta}"); A(f"v_add_u32 v{rSta}, 3072, v{rSta}")
    A(f"v_mul_u32_u24 v{vSlotA}, 3072, v{vW}"); A(f"v_lshl_add_u32 v{vSlotA}, v{vLane}, 4, v{vSlotA}")
    A(f"v_add_u32 v{vSlotA}, {L_SLOT}, v{vSlotA}")
    A(f"v_lshlrev_b32 v{vT2}, 10, v{vW}")
    A(f"v_lshl_add_u32 v{rLin}, v{vLane}, 4, v{vT2}")
    A(f"v_lshl_add_u32 v{rRd}, v{vLane}, 2, v{vT2}"); A(f"v_add_u32 v{rRd}, {L_SLOT}, v{rRd}")
    A(f"v_mul_u32_u24 v{rOut}, 384, v{vT1}"); A(f"v_lshrrev_b32 v{vT2}, 2, v{vLane}")
    A(f"v_lshl_add_u32 v{rOut}, v{vT2}, 3, v{rOut}"); A(f"v_lshl_add_u32 v{rOut}, v{vW}, 7, v{rOut}")
    srd(SRD_O, 18, 256*1536); srd(SRD_L, 22, 255*RIMG)
    A(f"s_mul_i32 s{sImg}, s{sJ}, {3*RIMG}"); A(f"s_mul_i32 s{sOwn}, s2, {RIMG}")
    A(f"s_add_u32 s{sImg+1}, s{sImg}, {RIMG}"); A(f"s_add_u32 s{sImg+2}, s{sImg}, {2*RIMG}")
    if rev2: A(f"s_sub_u32 s{sOut}, 255, s{sJ}")
    else:
        A(f"s_add_u32 s{sOut}, s{sJ}, 171"); A("s_cmp_eq_u32 s2, 255"); A(f"s_cselect_b32 s{sOut}, 170, s{sOut}")
    A(f"s_mul_i32 s{sOut}, s{sOut}, 1536")
    for c in range(4): A(f"s_mov_b32 s{sSel+c}, {0x07060500 | c:#x}")
    A(f"s_mov_b32 s{sSel+4}, 0x0c0c0400"); A(f"s_mov_b32 s{sSel+5}, 0x04000c0c"); A(f"s_mov_b32 s{sSel+6}, 0xffffff00")
    if stamp: A("s_waitcnt lgkmcnt(0)")

    A.label("L_vround")
    for k in range(12): A(f"v_mov_b32 v{vAcc+k}, 0")
    A(f"v_mov_b32 v{vSum}, 0"); A(f"v_mov_b32 v{vCor}, 0")
    A.label("L_vblk")
    A(f"s_add_u32 s{sBlk}, s{sBlk}, 1")
    A(f"s_cmp_eq_u32 s{sBlk}, s{sC1}"); A(f"s_cselect_b32 s{sLast}, 1, 0")
    A(f"s_cmp_eq_u32 s{sBlk}, s{sC2}"); A(f"s_cselect_b32 s{sLast}, 1, s{sLast}")
    A(f"s_cmp_eq_u32 s{sBlk}, 16"); A(f"s_cselect_b32 s{sLast}, 1, s{sLast}")
    for i in range(8):
        b, g = i % 4, i//4
        A.c(f"V step {i}")
        fetch_unit((0, 3, 1, 4, 2, 5), [f"ds_read_b128 {vr(vMx, 4)}, v{vMaxA}"] if i == 0 else ())
        if nocomp: continue
        if i == 0:
            A("s_waitcnt lgkmcnt(6)")
            A(f"v_max_f32 v{vM}, v{vMx}, v{vMx+1}")
            A(f"v_max3_f32 v{vM}, v{vM}, v{vMx+2}, v{vMx+3}")
        if b == 0:
            E = vE
            for x in ["s_waitcnt lgkmcnt(6)",
                      f"v_lshlrev_b32 v{E}, 16, v{vLg}",
                      f"v_and_b32 v{E+1}, s{sHi}, v{vLg}",
                      f"v_fma_f32 v{E}, v{E}, s{sLog2e}, -v{vM}",
                      f"v_fma_f32 v{E+1}, v{E+1}, s{sLog2e}, -v{vM}",
                      f"v_exp_f32 v{E}, v{E}",
                      f"v_exp_f32 v{E+1}, v{E+1}",
                      f"v_lshlrev_b32 v{E+2}, 16, v{vSZ}",
                      f"v_lshlrev_b32 v{E+3}, 16, v{vSZ+1}",
                      f"v_mul_f32 v{E+2}, v{E}, v{E+2}",
                      f"v_mul_f32 v{E+3}, v{E+1}, v{E+3}",
                      f"v_add_f32 v{vSum}, v{vSum}, v{E}",
                      f"v_cvt_pk_bf16_f32 v{E+2}, v{E+2}, v{E+3}",
                      f"v_add_f32 v{vSum}, v{vSum}, v{E+1}",
                      f"v_lshlrev_b32 v{E+4}, 16, v{vSZ+2}",
                      f"v_lshlrev_b32 v{E+5}, 16, v{vSZ+3}",
                      f"v_lshlrev_b32 v{E}, 16, v{E+2}",
                      f"v_and_b32 v{E+1}, s{sHi}, v{E+2}",
                      f"v_fmac_f32 v{vCor}, v{E}, v{E+4}",
                      f"v_fmac_f32 v{vCor}, v{E+1}, v{E+5}"]: A(x)
            for c in range(4):
                for k in range(4):
                    ctl = "quad_perm:[0,1,2,3]" if k == c else f"row_ror:{4*((c - k) % 4)}"
                    A(f"v_mov_b32_dpp v{vP+4*c+k}, v{E+2} {ctl} row_mask:0xf bank_mask:{1 << c:#x}")
        mf = lambda k: f"v_mfma_f32_16x16x32_bf16 {vr(vAcc+4*(k//4), 4)}, {vr(vP+4*(k % 4), 4)}, {vr(vB+4*k, 4)}, {vr(vAcc+4*(k//4), 4)}"
        for j in range(3):
            A(f"s_waitcnt lgkmcnt({4 - 2*j})")
            va_ = [f"v_cvt_f32_i32 v{vX+o+4*j+c}, v{vX+o+4*j+c}" for o in (0, 12) for c in range(4)]
            va_ += [f"v_cvt_pk_bf16_f32 v{vB+(4*j+c)*4+b}, v{vX+4*j+c}, v{vX+12+4*j+c}" for c in range(4)]
            for n, x in enumerate(va_):
                A(x)
                if b == 3 and j and n % 3 == 2: A(mf(4*(j-1) + n//3))
        if b == 3:
            for k in range(8, 12): A(mf(k))
        if b == 0:
            if g == 1:
                A(f"v_add_u32 v{vLogA}, 3072, v{vLogA}")
                A(f"s_add_u32 s{sPar}, s{sPar}, 1024")
            for x in p_reads(1-g): A(x)
        if i == 5:
            A.c("last block of a round: its (m, l, c) are final, park them in LDS")
            A(f"s_cmp_eq_u32 s{sLast}, 0")
            A("s_cbranch_scc1 L_vnostat")
            A(f"v_mov_b32 v{rTag}, {L_TAG}")
            A(f"ds_read_b32 v{rTag}, v{rTag}")
            xlane("v_add_f32", vSum, vT1)
            xlane("v_add_f32", vCor, vT1)
            A(f"v_mov_b32 v{vMx}, v{vM}"); A(f"v_mov_b32 v{vMx+1}, v{vSum}"); A(f"v_mov_b32 v{vMx+2}, v{vCor}")
            A(f"ds_write_b128 v{vStatA}, {vr(vMx, 4)}")
            A(f"v_add_u32 v{vMaxA}, 64, v{vMaxA}")
            A.label("L_vnostat")
    A(f"s_cmp_eq_u32 s{sLast}, 0")
    A("s_cbranch_scc1 L_vblk")

    A.c("end of a V round: lane c*16+ch holds O[query][64*third + 4*ch + c]; park it in LDS")
    A(f"ds_write_b128 v{vSlotA}, {vr(vAcc, 4)}")
    A("s_nop 0")
    A(f"ds_write_b128 v{vSlotA}, {vr(vAcc+4, 4)} offset:1024")
    A(f"s_cmp_lt_u32 s{sBlk}, 16")
    A("s_nop 1")
    A(f"ds_write_b128 v{vSlotA}, {vr(vAcc+8, 4)} offset:2048")
    A("s_waitcnt lgkmcnt(0)")
    A("s_cbranch_scc1 L_vround")
    A("s_barrier")
    if tl and 0 in tl: A("s_memrealtime s[92:93]"); A("s_waitcnt lgkmcnt(0)")

    A(f"s_cmp_eq_u32 s{sW}, 3")
    A("s_cbranch_scc1 L_fin")
    St, O, I = vX, vZ, [vAcc, vAcc+8, vAcc+16]
    rn = [0]
    def by_part(body):
        rn[0] += 1
        for p in range(3):
            if p < 2:
                A(f"s_cmp_eq_u32 s{sP}, {p}")
                A(f"s_cbranch_scc0 L_rp{rn[0]}{p}")
            body(p)
            if p < 2:
                A(f"s_branch L_rp{rn[0]}2")
                A.label(f"L_rp{rn[0]}{p}")
        A.label(f"L_rp{rn[0]}2")
    def r_loads(own):
        ps = [x for x in range(3) if x != own]
        for p in ps:
            A(f"buffer_load_dwordx4 {vr(I[p]+4, 4)}, v{rSta}, s[{SRD_L}:{SRD_L+3}], s{sImg+p} offen sc1")
        for p in ps:
            A(f"buffer_load_dwordx4 {vr(I[p], 4)}, v{rLin}, s[{SRD_L}:{SRD_L+3}], s{sImg+p} offen sc1")
    for w in range(4): A(f"ds_read_b128 {vr(St+4*w, 4)}, v{rSt} offset:{w*64}")
    for w in range(4):
        for h in range(2):
            A(f"ds_read2st64_b32 {vr(O+4*w+2*h, 2)}, v{rRd} offset0:{12*w+2*h} offset1:{12*w+2*h+1}")
    if rspec: by_part(r_loads)
    A("s_waitcnt lgkmcnt(8)")
    for k in (1, 2):
        A(f"v_add_f32 v{St+k}, v{St+k}, v{St+4+k}"); A(f"v_add_f32 v{St+8+k}, v{St+8+k}, v{St+12+k}")
    for k in (1, 2): A(f"v_add_f32 v{St+k}, v{St+k}, v{St+8+k}")
    A(f"v_mov_b32 v{St+3}, v{rTag}")
    A("s_waitcnt lgkmcnt(4)")
    for c in range(4): A(f"v_add_f32 v{O+c}, v{O+c}, v{O+4+c}")
    A("s_waitcnt lgkmcnt(0)")
    for c in range(4): A(f"v_add_f32 v{O+8+c}, v{O+8+c}, v{O+12+c}")
    for c in range(4): A(f"v_add_f32 v{O+c}, v{O+c}, v{O+8+c}")
    for c in range(4): A(f"v_sub_f32 v{O+c}, v{O+c}, v{St+2}")
    A("s_cmp_eq_u32 s2, 255")
    A("s_cbranch_scc1 L_rsolo")
    for c in range(4): A(f"v_perm_b32 v{O+c}, v{O+c}, v{rTag}, s{sSel+c}")
    if nofin: A("s_branch L_fin")
    if tl and 1 in tl: A("s_memrealtime s[94:95]")
    A(f"buffer_store_dwordx4 {vr(O, 4)}, v{rLin}, s[{SRD_L}:{SRD_L+3}], s{sOwn} offen sc1")
    A("s_mov_b64 exec, 15")
    A(f"buffer_store_dwordx4 {vr(St, 4)}, v{rSta}, s[{SRD_L}:{SRD_L+3}], s{sOwn} offen sc1")
    A("s_mov_b64 exec, -1")
    def own_image(p):
        for c in range(4):
            A(f"v_mov_b32 v{I[p]+c}, v{O+c}"); A(f"v_mov_b32 v{I[p]+4+c}, v{St+c}")
        if not rspec:
            A("s_waitcnt vmcnt(0)")
            if tl and 2 in tl: A("s_memrealtime s[92:93]")
            r_loads(p)
    by_part(own_image)
    def r_check(wa, wb):
        A(f"s_waitcnt vmcnt({wa})")
        for p in range(3): A(f"v_xor_b32 v{St+4+p}, v{I[p]+7}, v{rTag}")
        A(f"v_or3_b32 v{vT2}, v{St+4}, v{St+5}, v{St+6}")
        A(f"s_waitcnt vmcnt({wb})")
        for p in range(3):
            A(f"v_perm_b32 v{vT3}, v{I[p]+1}, v{I[p]}, s{sSel+4}")
            A(f"v_perm_b32 v{vT4}, v{I[p]+3}, v{I[p]+2}, s{sSel+5}")
            A(f"v_bitop3_b32 v{vT3}, v{vT3}, v{vT4}, v{rTag} bitop3:0x56")
            A(f"v_or_b32 v{vT2}, v{vT2}, v{vT3}")
        A(f"v_cmp_eq_u32 vcc, 0, v{vT2}")
    if rspec:
        r_check(4, 2)
        A("s_nop 4")
        A("s_cmp_eq_u64 vcc, -1")
        A("s_cbranch_scc1 L_rmerge")
        A("s_waitcnt vmcnt(0)")
        by_part(r_loads)
    r_check(2, 0)
    A.label("L_rmerge")
    if tl and 3 in tl: A("s_memrealtime s[94:95]")
    A.c("a lane that sees all three parts complete stores its four outputs")
    A(f"v_max3_f32 v{vT1}, v{I[0]+4}, v{I[1]+4}, v{I[2]+4}")
    for p in range(3): A(f"v_sub_f32 v{I[p]+4}, v{I[p]+4}, v{vT1}")
    for p in range(3): A(f"v_exp_f32 v{I[p]+4}, v{I[p]+4}")
    A("s_and_b64 exec, exec, vcc")
    A("s_cbranch_execz L_fin")
    for p in range(3):
        for c in range(4): A(f"v_and_b32 v{I[p]+c}, s{sSel+6}, v{I[p]+c}")
    A(f"v_mul_f32 v{St+1}, v{I[0]+4}, v{I[0]+5}")
    for p in (1, 2): A(f"v_fmac_f32 v{St+1}, v{I[p]+4}, v{I[p]+5}")
    for c in range(4):
        A(f"v_mul_f32 v{O+c}, v{I[0]+c}, v{I[0]+4}")
        for p in (1, 2): A(f"v_fmac_f32 v{O+c}, v{I[p]+c}, v{I[p]+4}")
    A.label("L_rsolo")
    A(f"v_rcp_f32 v{St+1}, v{St+1}")
    A("s_nop 0")
    for c in range(4): A(f"v_mul_f32 v{O+c}, v{O+c}, v{St+1}")
    for k in range(2): A(f"v_cvt_pk_bf16_f32 v{O+4+k}, v{O+2*k}, v{O+2*k+1}")
    A(f"buffer_store_dwordx2 {vr(O+4, 2)}, v{rOut}, s[{SRD_O}:{SRD_O+3}], s{sOut} offen {of}")
    A("s_branch L_fin")

    A.c("==================== merge of the first-region heads")
    A.label("L_finisher")
    if touch:
        A.c("first touch of every small array up front, so the address translations overlap")
        A("s_waitcnt lgkmcnt(0)")
        A(f"v_and_b32 v{vT3}, 15, v{vLane}"); A(f"v_cmp_eq_u32 vcc, v{vT3}, v{vLane}")
        A("s_mov_b64 exec, 0x8001")
        for n, (ptr, mul, nb) in enumerate(((12, 1536, 256*24576), (10, 1536, 256*24576), (14, 512, 256*8192), (16, 512, 256*8192), (4, 96, 256*1536))):
            srd(SRD_O, ptr, nb)
            A(f"v_mul_u32_u24 v{vT3}, {mul}, v{vGb}")
            A(f"buffer_load_dword v{24+n}, v{vT3}, s[{SRD_O}:{SRD_O+3}], 0 offen nt")
        A("s_mov_b64 exec, -1")
    fOff, fLin, fTag, fM, fL, fT, fSta, fH, fHa = 8, 9, 10, 11, 12, 13, 14, 15, 7
    IMG = 4352
    fSt, fO = 16, 32
    E = [80, 100, 120]
    sN, sTag, sDone, sIb, sH1 = sM, sProg, sLev, sSlot, sPar
    A(f"v_and_b32 v{fSta}, 3, v{vLane}")
    A(f"v_mul_u32_u24 v{fOff}, 384, v{fSta}")
    A(f"v_lshrrev_b32 v{fT}, 2, v{vLane}")
    A(f"v_lshl_add_u32 v{fOff}, v{fT}, 3, v{fOff}")
    A(f"v_lshlrev_b32 v{fLin}, 4, v{vLane}")
    A(f"v_lshlrev_b32 v{fSta}, 4, v{fSta}")
    A(f"s_memrealtime s[{sNow}:{sNow+1}]")
    A("s_waitcnt lgkmcnt(0)")
    srd(SRD_O, 18, 256*1536); srd(SRD_D, 20, 256); srd(SRD_L, 22, WS_E + 340*IMG)
    def claim_tag(wait=True):
        A(f"s_or_b32 s{sTag}, s{sNow}, 1")
        A(f"v_mov_b32 v{fSt}, s{sTag}"); A(f"v_mov_b32 v{fSt+1}, 0")
        A("s_mov_b64 exec, 1")
        A(f"buffer_atomic_cmpswap {vr(fSt, 2)}, v{fLin}, s[{SRD_D}:{SRD_D+3}], 0 offen {'sc0 ' if wait else ''}sc1")
        A("s_mov_b64 exec, -1")
        if not wait: return
        A("s_waitcnt vmcnt(0)")
        A(f"v_readfirstlane_b32 s{sT0}, v{fSt}")
        A("s_nop 3")
        A(f"s_cmp_eq_u32 s{sT0}, 0")
        A(f"s_cselect_b32 s{sTag}, s{sTag}, s{sT0}")
    A.label("L_fk")
    A(f"s_waitcnt vmcnt({min(63, 96//nstage - 6)})")
    uid = [0]
    def barriers(n):
        uid[0] += 1
        A(f"s_movk_i32 s{sN}, {n}")
        A.label(f"L_fb{uid[0]}")
        A("s_barrier")
        A(f"s_sub_u32 s{sN}, s{sN}, 1")
        A(f"s_cmp_lg_u32 s{sN}, 0")
        A(f"s_cbranch_scc1 L_fb{uid[0]}")
    barriers(4)
    A("s_waitcnt vmcnt(0)")
    A("s_cmp_eq_u32 s2, 0")
    A("s_cbranch_scc0 L_fk2")
    claim_tag(False)
    A.label("L_fk2")
    barriers(124)
    A(f"s_load_dword s{sTag}, s[20:21], 0")
    A("s_barrier")
    A("s_waitcnt lgkmcnt(0)")
    A(f"s_cmp_eq_u32 s{sTag}, 0")
    A("s_cbranch_scc0 L_ftag")
    claim_tag()
    A.label("L_ftag")
    A(f"v_mov_b32 v{fTag}, s{sTag}")
    A(f"v_mov_b32 v{fT}, {L_TAG}")
    A(f"ds_write_b32 v{fT}, v{fTag}")
    A.c("image numbers of region-1 head h: 2h (owner), 2h+1 (helper)")
    A(f"s_lshr_b32 s{sH1}, s{sP}, 1"); A(f"s_lshl_b32 s{sT0}, s{sJ}, 1"); A(f"s_add_u32 s{sH1}, s{sH1}, s{sT0}")
    A(f"s_mul_i32 s{sIb}, s{sH1}, {2*IMG}"); A(f"s_add_u32 s{sIb}, s{sIb}, {WS_E}")
    A("s_waitcnt lgkmcnt(0)")
    def combine(I):
        A(f"v_add_u32 v{fT}, {L_STAT}, v{fSta}")
        A(f"v_lshlrev_b32 v{fM}, 2, v{vLane}"); A(f"v_add_u32 v{fM}, {L_SLOT}, v{fM}")
        for w in range(4): A(f"ds_read_b128 {vr(fSt+4*w, 4)}, v{fT} offset:{w*64}")
        for k in range(24):
            if k in (8, 16): A("s_waitcnt lgkmcnt(4)")
            A(f"ds_read2st64_b32 {vr(fO+2*k, 2)}, v{fM} offset0:{2*k} offset1:{2*k+1}")
        for k in range(5): A(f"v_mov_b32 v{I+4*k+3}, v{fTag}")
        A(f"v_mov_b32 v{I+16}, v{fSt}")
        for k in (1, 2):
            A(f"v_add_f32 v{fSt+k}, v{fSt+k}, v{fSt+4+k}"); A(f"v_add_f32 v{fSt+8+k}, v{fSt+8+k}, v{fSt+12+k}")
            A(f"v_add_f32 v{I+16+k}, v{fSt+k}, v{fSt+8+k}")
        A("s_waitcnt lgkmcnt(0)")
        for k in range(12):
            A(f"v_add_f32 v{fO+k}, v{fO+k}, v{fO+12+k}"); A(f"v_add_f32 v{fO+24+k}, v{fO+24+k}, v{fO+36+k}")
            A(f"v_add_f32 v{fO+k}, v{fO+k}, v{fO+24+k}")
            A(f"v_sub_f32 v{I + (k//3)*4 + k % 3}, v{fO+k}, v{I+18}")
    def load(I, sb, off):
        A(f"s_add_u32 s{sT0}, s{sb}, {off}"); A(f"s_add_u32 s{sT1}, s{sb}, {off + 4096}")
        A(f"buffer_load_dwordx4 {vr(I+16, 4)}, v{fSta}, s[{SRD_L}:{SRD_L+3}], s{sT1} offen sc1")
        for k in range(nst):
            A(f"buffer_load_dwordx4 {vr(I+4*k, 4)}, v{fLin}, s[{SRD_L}:{SRD_L+3}], s{sT0} offen offset:{k*1024} sc1")
    def publish(I, sb, off):
        A(f"s_add_u32 s{sT0}, s{sb}, {off}"); A(f"s_add_u32 s{sT1}, s{sb}, {off + 4096}")
        for k in range(nst):
            A(f"buffer_store_dwordx4 {vr(I+4*k, 4)}, v{fLin}, s[{SRD_L}:{SRD_L+3}], s{sT0} offen offset:{k*1024} sc1")
        A("s_mov_b64 exec, 15")
        A(f"buffer_store_dwordx4 {vr(I+16, 4)}, v{fSta}, s[{SRD_L}:{SRD_L+3}], s{sT1} offen sc1")
        A("s_mov_b64 exec, -1")
    def check(imgs):
        g = [I+4*k+3 for I in imgs for k in list(range(nst)) + [4]]
        A(f"v_xor_b32 v{fT}, v{fTag}, v{g[0]}")
        for r in g[1:]:
            A(f"v_xor_b32 v{fM}, v{fTag}, v{r}")
            A(f"v_or_b32 v{fT}, v{fT}, v{fM}")
        A(f"v_cmp_ne_u32 vcc, 0, v{fT}")
        A("s_nop 4")
        A("s_cmp_eq_u64 vcc, 0")
    def merge(imgs, shead, add):
        n = len(imgs)
        F = fSt
        if n == 3: A(f"v_max3_f32 v{fM}, v{imgs[0]+16}, v{imgs[1]+16}, v{imgs[2]+16}")
        else:      A(f"v_max_f32 v{fM}, v{imgs[0]+16}, v{imgs[-1]+16}")
        for p in range(n): A(f"v_sub_f32 v{F+p}, v{imgs[p]+16}, v{fM}")
        for p in range(n): A(f"v_exp_f32 v{F+p}, v{F+p}")
        A("s_nop 0")
        A(f"v_mul_f32 v{fL}, v{F}, v{imgs[0]+17}")
        for p in range(1, n): A(f"v_fmac_f32 v{fL}, v{F+p}, v{imgs[p]+17}")
        A(f"v_rcp_f32 v{fL}, v{fL}")
        A(f"s_add_u32 s{sT0}, s{shead}, {add}")
        A(f"s_mul_i32 s{sT0}, s{sT0}, 1536")
        for p in range(n): A(f"v_mul_f32 v{F+p}, v{F+p}, v{fL}")
        for k in range(12):
            o = (k//3)*4 + k % 3
            A(f"v_mul_f32 v{fO+k}, v{imgs[0]+o}, v{F}")
            for p in range(1, n): A(f"v_fmac_f32 v{fO+k}, v{imgs[p]+o}, v{F+p}")
        for k in range(6): A(f"v_cvt_pk_bf16_f32 v{fO+12+k}, v{fO+2*k}, v{fO+2*k+1}")
        for j in range(3):
            A(f"buffer_store_dwordx2 {vr(fO+12+2*j, 2)}, v{fOff}, s[{SRD_O}:{SRD_O+3}], s{sT0} offen offset:{j*128} {of}")
    A("s_cmp_eq_u32 s2, 255")
    A("s_cbranch_scc1 L_fin")
    A(f"s_cmp_eq_u32 s{sP}, 1")
    A("s_cbranch_scc1 L_fmid")

    A.c("outer workgroup: owns a region-1 head")
    barriers(89)
    combine(E[0])
    barriers(39)
    if nofin: A("s_branch L_fin")
    if not retry:
        load(E[1], sIb, IMG)
        A("s_barrier")
        A("s_waitcnt vmcnt(0)")
        check([E[1]])
        A("s_cbranch_scc1 L_fo7")
    else:
        A("s_barrier")
        A(f"s_mov_b32 s{sN}, {retry}")
        A.label("L_fo5")
        load(E[1], sIb, IMG)
        A("s_waitcnt vmcnt(0)")
        check([E[1]])
        A("s_cbranch_scc1 L_fo7")
        A(f"s_sub_u32 s{sN}, s{sN}, 1")
        A(f"s_cmp_lg_u32 s{sN}, 0")
        A("s_cbranch_scc1 L_fo5")
    publish(E[0], sIb, 0)
    A("s_waitcnt vmcnt(0)")
    load(E[1], sIb, IMG)
    A("s_waitcnt vmcnt(0)")
    check([E[1]])
    A("s_cbranch_scc0 L_fin")
    A.label("L_fo7")
    merge(E[:2], sH1, 0)
    A("s_branch L_fin")

    A.label("L_fmid")
    A.c("middle workgroup: helps with two region-1 heads")
    A(f"v_and_b32 v{fHa}, 1, v{vLane}")
    A(f"v_mul_u32_u24 v{fHa}, {2*IMG}, v{fHa}")
    A(f"v_add_u32 v{fHa}, {4096 + 12}, v{fHa}")
    barriers(41)
    combine(E[0])
    barriers(40)
    combine(E[1])
    barriers(47 - early)
    if nofin: A("s_branch L_fin")
    publish(E[0], sIb, IMG)
    publish(E[1], sIb, 3*IMG)
    for k in range(early + 1): A("s_barrier")
    A("s_waitcnt vmcnt(0)")
    A(f"buffer_load_dword v{fH}, v{fHa}, s[{SRD_L}:{SRD_L+3}], s{sIb} offen sc1")
    A("s_waitcnt vmcnt(0)")
    A.c("an owner that missed its helper image has published its own: finish that head here")
    A(f"v_cmp_eq_u32 vcc, v{fH}, v{fTag}")
    A("s_nop 4")
    A(f"s_and_b32 s{sDone}, vcc_lo, 3")
    A("s_cbranch_scc0 L_fin")
    for h in range(2):
        A(f"s_bitcmp1_b32 s{sDone}, {h}")
        A(f"s_cbranch_scc0 L_fm3{h}")
        A("s_waitcnt vmcnt(0)")
        load(E[2], sIb, 2*h*IMG)
        A("s_waitcnt vmcnt(0)")
        check([E[2]])
        A(f"s_cbranch_scc0 L_fm3{h}")
        merge([E[2], E[h]], sH1, h)
        A.label(f"L_fm3{h}")
    A.label("L_fin")
    if stamp:
        A("s_mov_b64 exec, -1")
        stamp_out(None)
    A.label("L_end")
    A("s_endpgm")
    if order:
        rows = [[int(x) for x in l.split()] for l in open(order)]
        A(".p2align 8")
        A(".type block_order,@object")
        A.label("block_order")
        for x in range(8):
            for w in range(x, 256, 8):
                A(".quad %#018x" % sum(v << (4*k) for k, v in enumerate(rows[w])))
        A(".size block_order, 2048")

    kn = name + "_kernel"
    hdr = open(f"/code/{NAME}.s.ref").read().split("; Override launch")[0]
    nv = (NV + 7)//8*8
    s = hdr + f"""; @launch grid=(256,1,1) block=(448,1,1) lds={LDS}
{DOC}.amdgcn_target "amdgcn-amd-amdhsa--gfx950"
.text
.globl {kn}
.p2align 8
.type {kn},@function
{kn}:
{A.text()}
.section .rodata,"a"
.p2align 6
.amdhsa_kernel {kn}
  .amdhsa_next_free_vgpr {nv}
  .amdhsa_next_free_sgpr 102
  .amdhsa_accum_offset {nv}
  .amdhsa_group_segment_fixed_size 0
  .amdhsa_kernarg_size 80
  .amdhsa_user_sgpr_count 2
  .amdhsa_user_sgpr_kernarg_segment_ptr 1
  .amdhsa_system_sgpr_workgroup_id_x 1
  .amdhsa_float_denorm_mode_32 3
.end_amdhsa_kernel
"""
    return s, kn, f"{kn}:256:448:{LDS}"

if __name__ == "__main__":
    kw = {}
    out = f"/code/{NAME}.s"
    for a in sys.argv[1:]:
        k, v = a.split("=")
        if k == "out": out = v
        else: kw[k] = eval(v)
    s, kn, spec = gen(**kw)
    open(out, "w").write(s)
    print(out, spec)
```

```python
import sys
from gen_kernel import Asm, VAlloc, vr, NAME, LOG2E, SCALE

DOC = """;
;             about 32 KiB apart, which requests both halves of a DRAM row close together.
"""

def gen(thr0=18.6, lo=16, gain=5, per=4, late=200, lead=0, lead0=48, boost=0, boost0=63, gain2=32,  skip=4, gcap=16, clk=0, tl=None, of='', diag=False, seg=None, kap=0.45, tlb=0, blast=True, seq='AAB|ABB', mirror=False, lf1='sc1', lf2='sc1', lfe='sc1 nt', eld=0, lad2=3, al=None, sf='sc1', sfe='sc1 nt', mtab=False, xm=None, nstage=1, touch=False, skipd=0, xmap=(145, 38, 68), rev2=True, phase=None, swap2=True, order=None, rot2=None, rot1=None, swb=0, f0=23.3, retry=0, rspec=True, sep=False, hi=25, top=22, hstep=1, align=0, ff=1.0, g2at=29/32, pk=False,
        stamp=False, nocomp=False, prio=3, early=2, first=1, spec=True, nofin=False, nst=4, qf='nt', slow=None,
        warm=8, name=NAME):
    KV_BYTES = 256*4096*768
    L_RING, L_PAR = 0, 73728
    L_VSZ = L_PAR + 17*3072
    L_STAT = L_VSZ + 16384
    L_SLOT = L_STAT + 256
    L_THR = L_SLOT + 4*3072
    L_TAG, L_MAX = L_THR + 4, L_THR + 64
    L_Q = L_MAX + 192
    LDS = L_Q + 4*1536
    RIMG, WS_E = 3328, 1 << 20
    WS_STAMP, WS_FB = 8 << 20, 16 << 20
    RSTR = 4096*17 if sep else 4
    FB_END = WS_FB + 8*RSTR + (256//per + 1)*256
    TAGW = 5000
    A = Asm()
    va = VAlloc(1)
    vLane = va(); vW = va(); vT1 = va(); vT2 = va(); vT3 = va(); vT4 = va()
    vPa = va(4); vLogA = va(); vRing = va(); vRd = va()
    vM = va(); vLa = va(); vLb = va()
    vPar = va(16); vPad = va(2)
    vX = va(24, 4)
    vZ = va(24, 4); vS = va(24, 4)
    vB = vZ
    vRaw = va(24, 4)
    vKb = va(12, 4); vD = va(8, 4); vGb = va(); vQA = va(); vMaxA = va(); vSlotA = va(); vStatA = va(); vMx = va(4, 4)
    vAcc = va(48, 4)
    vQ = vAcc
    vP = vAcc + 24
    vSum = va(); vCor = va(); vLg = va(); vSZ = va(4); vE = va(6)
    NV = va.n
    assert NV <= 256, NV
    sW, sBase, sT0, sT1, sT2, sBlk, sSlot, sPar = 56, 57, 58, 59, 60, 61, 62, 63
    sLog2e, sScale, sHi, s768 = 64, 65, 66, 67
    sC, sM, sLev, sProg, sRot, sHead, sInt, sLevSum = 68, 69, 70, 71, 72, 73, 74, 75
    sNow, sFbP, sRef = 96, 98, 84
    sC1, sC2, sLead, sJ, sP, sRnd = 3, 73, 72, 100, 101, 74
    WS_PART = 0
    SRD_L, SRD_KS, SRD_KZ, SRD_VS, SRD_VZ, SRD_Q, SRD_O, SRD_D = 24, 28, 32, 36, 40, 44, 48, 52
    def srd(d, p, nbytes):
        A(f"s_mov_b32 s{d}, s{p}"); A(f"s_and_b32 s{d+1}, s{p+1}, 0xffff")
        A(f"s_mov_b32 s{d+2}, {nbytes}"); A(f"s_mov_b32 s{d+3}, 0x20000")
    def tok_of(dst, n, isb, t, u):
        A(f"v_cmp_le_u32 vcc, 43, v{n}")
        A(f"v_add_u32 v{t}, 43, v{n}")
        A(f"v_mov_b32 v{u}, 42")
        A(f"v_cndmask_b32 v{dst}, v{n}, v{t}, vcc")
        A(f"v_cmp_le_u32 vcc, 86, v{n}")
        A(f"v_add_u32 v{t}, 43, v{dst}")
        A("s_nop 0")
        A(f"v_cndmask_b32 v{dst}, v{dst}, v{t}, vcc")
        A(f"v_cndmask_b32 v{u}, 43, v{u}, vcc")
        A(f"v_mad_u32_u24 v{dst}, v{u}, v{isb}, v{dst}")
    def stamp_out(idx_expr):
        A("s_waitcnt vmcnt(0)")
        A("s_memrealtime s[82:83]")
        A.label("L_fin2")
        A("s_getreg_b32 s84, hwreg(HW_REG_XCC_ID)")
        A("s_getreg_b32 s85, hwreg(HW_REG_HW_ID)")
        A("s_and_b32 s85, s85, 0xffff")
        A(f"s_or_b32 s85, s85, s{sLevSum}")
        A("s_waitcnt lgkmcnt(0)")
        srd(76, 22, WS_STAMP + 1792*32)
        for k, sr in enumerate((80, 81, 82, 83, 84, 85, 92, 94)): A(f"v_mov_b32 v{vX+k}, s{sr}")
        A("s_mul_i32 s85, s2, 7"); A(f"s_add_u32 s85, s85, s{sW}"); A("s_lshl_b32 s85, s85, 5")
        A(f"s_add_u32 s85, s85, {WS_STAMP}")
        A(f"v_mov_b32 v{vT3}, 0")
        A("s_mov_b64 exec, 1")
        A(f"buffer_store_dwordx4 {vr(vX, 4)}, v{vT3}, s[76:79], s85 offen")
        A(f"buffer_store_dwordx4 {vr(vX+4, 4)}, v{vT3}, s[76:79], s85 offen offset:16")

    A("s_load_dwordx16 s[4:19], s[0:1], 0")
    A("s_load_dwordx4 s[20:23], s[0:1], 64")
    A("s_cmp_ge_u32 s2, 256")
    A("s_cbranch_scc1 L_end")
    if stamp:
        A("s_memrealtime s[80:81]")
        A(f"s_mov_b32 s{sLevSum}, 0"); A("s_mov_b32 s92, 0"); A("s_mov_b32 s94, 0")
    if slow:
        A(f"s_mul_i32 s{sT0}, s2, {slow[0]}"); A(f"s_bfe_u32 s{sT0}, s{sT0}, {4 | (2 << 16)}")
        A(f"s_mul_i32 s{sT0}, s{sT0}, {slow[1]}")
        A.label("L_slow")
        A("s_sleep 32")
        A(f"s_sub_i32 s{sT0}, s{sT0}, 1")
        A(f"s_cmp_gt_i32 s{sT0}, 0")
        A("s_cbranch_scc1 L_slow")
    A(f"v_lshrrev_b32 v{vW}, 6, v0")
    A(f"v_and_b32 v{vLane}, 63, v0")
    A(f"v_readfirstlane_b32 s{sW}, v{vW}")
    sPhys = 72
    lBase, lOdd, lIsB, lAddr, lThr, lThrA, lTa = 8, 11, 14, 17, 20, 21, 22
    A.c("work item m = GF(2)-linear image of the workgroup id, chosen so dies and DRAM banks line up well (speed only)")
    A(f"s_mov_b32 s{sPhys}, s2")
    A(f"s_bfe_u32 s{sT0}, s2, {4 | (3 << 16)}"); A(f"s_lshr_b32 s{sT1}, s2, 1"); A(f"s_and_b32 s{sT1}, s{sT1}, 2")
    A(f"s_xor_b32 s2, s2, s{sT0}"); A(f"s_xor_b32 s2, s2, s{sT1}")
    A(f"s_bfe_u32 s{sT0}, s2, {1 | (1 << 16)}"); A(f"s_xor_b32 s2, s2, s{sT0}")
    if mtab:
        A("s_waitcnt lgkmcnt(0)")
        A(f"s_lshl_b32 s{sT0}, s{sPhys}, 2"); A(f"s_add_u32 s{sT0}, s{sT0}, {10 << 20}")
        A(f"s_load_dword s2, s[22:23], s{sT0}")
        A("s_waitcnt lgkmcnt(0)")
        A("s_and_b32 s2, s2, 255")
    if xm:
        par = lambda x: bin(x).count("1") & 1
        cls = lambda m: sum(par(m & f) << k for k, f in enumerate(xm))
        cols = [min(m for m in range(256) if cls(m) == 1 << k) for k in range(3)]
        sp = {0}
        for m in range(1, 256):
            if cls(m) == 0 and m not in sp:
                cols.append(m); sp |= {x ^ m for x in sp}
        A("s_mov_b32 s2, 0")
        for k, c in enumerate(cols):
            A(f"s_bitcmp1_b32 s{sPhys}, {k}")
            A(f"s_cselect_b32 s{sT0}, {c}, 0")
            A(f"s_xor_b32 s2, s2, s{sT0}")
    A.c("first block (32m + 1) / 3; wave w starts half-step w of it")
    A(f"s_mul_i32 s{sBase}, s2, {32*43691}"); A(f"s_add_u32 s{sBase}, s{sBase}, 43691"); A(f"s_lshr_b32 s{sBase}, s{sBase}, 17")
    A.c("a step is four rows of stream A then four rows of stream B (6 KiB), moved 1 KiB per instruction")
    A(f"v_lshlrev_b32 v{lBase}, 4, v{vLane}")
    if blast:
        A(f"s_and_b32 s{sT1}, s{sW}, 1"); A(f"s_mul_i32 s{sT1}, s{sT1}, {41*768}")
        A(f"s_lshl_b32 s{sT0}, s{sBase}, 7"); A(f"s_add_u32 s{sT0}, s{sT0}, s{sW}"); A(f"s_mul_i32 s{sT0}, s{sT0}, 1536")
        A(f"s_add_u32 s{sT0}, s{sT0}, s{sT1}")
        A(f"s_mul_i32 m0, s{sW}, 3072")
        A(f"s_mov_b32 s{SRD_L+2}, {KV_BYTES}"); A(f"s_mov_b32 s{SRD_L+3}, 0x20000")
        A("s_waitcnt lgkmcnt(0)")
        if stamp: A("s_memrealtime s[92:93]")
        A(f"s_mov_b32 s{SRD_L}, s6"); A(f"s_and_b32 s{SRD_L+1}, s7, 0xffff")
        for k in range(3):
            A(f"buffer_load_dwordx4 v{lBase}, s[{SRD_L}:{SRD_L+3}], s{sT0} offen offset:{1024*k} nt lds")
    A.c("lane k < 16: vGb = global 256-token block visited at sequence position k")
    A(f"s_mul_i32 s{sJ}, s2, 43691"); A(f"s_lshr_b32 s{sJ}, s{sJ}, 17")
    A(f"s_mul_i32 s{sP}, s{sJ}, 3"); A(f"s_sub_u32 s{sP}, s2, s{sP}")
    A(f"s_cmp_eq_u32 s2, 255"); A(f"s_cselect_b32 s{sC2}, 16, 11")
    A(f"s_cmp_eq_u32 s{sP}, 1"); A(f"s_cselect_b32 s{sC1}, 5, s{sC2}"); A(f"s_cselect_b32 s{sC2}, 10, s{sC2}")
    A(f"s_sub_u32 s{sT0}, 2, s{sP}"); A(f"s_mul_i32 s{sT0}, s{sT0}, 11"); A(f"s_lshr_b32 s{sT0}, s{sT0}, 1")
    A(f"s_lshl_b32 s{sT1}, s{sJ}, 4"); A(f"s_sub_u32 s{sT0}, s{sT0}, s{sT1}")
    A(f"s_add_u32 s{sT0}, s{sT0}, {255*16}"); A(f"s_sub_u32 s{sT0}, s{sT0}, s{sC2}")
    A(f"v_cmp_le_u32 vcc, s{sC2}, v{vLane}")
    A(f"v_add_u32 v{vT1}, s{sBase}, v{vLane}")
    A(f"v_add_u32 v{vT2}, s{sT0}, v{vLane}")
    A(f"v_cndmask_b32 v{vGb}, v{vT1}, v{vT2}, vcc")
    A(f"s_cmp_eq_u32 s{sW}, 4")
    A("s_cbranch_scc1 L_loader")
    A(f"s_cmp_lt_u32 s{sW}, 4")
    A("s_cbranch_scc1 L_consumer")
    if nstage == 1:
        A(f"s_cmp_eq_u32 s{sW}, 6")
        A("s_cbranch_scc1 L_ctl")
    A.c("stage q, kz / ks and vs / vz of all sequence blocks in LDS")
    A("s_waitcnt lgkmcnt(0)")
    srd(SRD_Q, 4, 256*1536)
    srd(SRD_KZ, 12, 256*24576); srd(SRD_KS, 10, 256*24576)
    srd(SRD_VS, 14, 256*8192); srd(SRD_VZ, 16, 256*8192)
    A(f"s_sub_u32 s{sBlk}, s{sW}, 5")
    A(f"s_mov_b32 s{sSlot}, s{sBlk}")
    A("s_mov_b32 exec_hi, 0xffff")
    A.label("L_stq")
    A(f"s_mul_i32 s{sT0}, s{sSlot}, s{sC1}")
    A(f"s_cmp_lt_u32 s{sT0}, 15")
    A("s_cbranch_scc0 L_stage")
    A(f"v_readlane_b32 s{sT0}, v{vGb}, s{sT0}")
    A(f"s_mul_i32 s{sT1}, s{sSlot}, 1536"); A(f"s_add_u32 m0, s{sT1}, {L_Q}")
    A(f"s_add_u32 s{sSlot}, s{sSlot}, {nstage}")
    A(f"s_lshr_b32 s{sT0}, s{sT0}, 4"); A(f"s_mul_i32 s{sT0}, s{sT0}, 1536")
    A(f"buffer_load_dwordx4 v{lBase}, s[{SRD_Q}:{SRD_Q+3}], s{sT0} offen nt lds")
    A(f"buffer_load_dwordx4 v{lBase}, s[{SRD_Q}:{SRD_Q+3}], s{sT0} offen offset:768 nt lds")
    A("s_branch L_stq")
    A.label("L_stage")
    A(f"v_readlane_b32 s{sT2}, v{vGb}, s{sBlk}")
    A(f"s_mul_i32 s{sT1}, s{sBlk}, 3072"); A(f"s_add_u32 m0, s{sT1}, {L_PAR + 3072}")
    A("s_mov_b32 exec_hi, 0xffff")
    A(f"s_mul_i32 s{sT0}, s{sT2}, 1536")
    for a, sr in enumerate((SRD_KZ, SRD_KS)):
        A(f"buffer_load_dwordx4 v{lBase}, s[{sr}:{sr+3}], s{sT0} offen nt lds")
        A(f"buffer_load_dwordx4 v{lBase}, s[{sr}:{sr+3}], s{sT0} offen offset:768 nt lds")
        if a == 0:
            A("s_add_u32 m0, m0, 1536"); A(f"s_lshl_b32 s{sT1}, s{sBlk}, 10")
    A(f"s_add_u32 m0, s{sT1}, {L_VSZ}")
    A("s_mov_b32 exec_hi, 0")
    A(f"s_lshl_b32 s{sT0}, s{sT2}, 9")
    A(f"buffer_load_dwordx4 v{lBase}, s[{SRD_VS}:{SRD_VS+3}], s{sT0} offen nt lds")
    A("s_add_u32 m0, m0, 512")
    A(f"s_add_u32 s{sBlk}, s{sBlk}, {nstage}")
    A(f"buffer_load_dwordx4 v{lBase}, s[{SRD_VZ}:{SRD_VZ+3}], s{sT0} offen nt lds")
    A(f"s_cmp_lt_u32 s{sBlk}, 16")
    A("s_cbranch_scc1 L_stage")
    A("s_mov_b32 exec_hi, -1")
    if nstage == 2:
        A(f"s_cmp_eq_u32 s{sW}, 6")
        A("s_cbranch_scc1 L_ctl")
    A("s_branch L_finisher")
    A.c("==================== loader")
    A.label("L_loader")

    sOff, sAcc, sThr, s1024, sAl, sBe, sJmp = sBase, sInt, sLev, sProg, sM, sSlot, sPar
    his = [(a, min(a+hstep-1, hi)) for a in range(top+1, hi+1, hstep)]
    if prio: A(f"s_setprio {prio}")
    assert blast
    lG2, lG3, lA1, lA2, lB1, lB2 = 11, 12, 13, 14, 15, 16
    sOffB, sMA, sB1, sB2a, sB2b, sMsk = sAl, sBe, sJmp, 86, 87, 84
    A(f"s_mul_i32 s{sOff}, s{sBase}, {256*768}")
    A(f"s_add_u32 s{sOffB}, s{sOff}, {(12 + 43)*768}")
    A(f"s_mov_b32 m0, {L_RING + 7*3072}")
    A(f"s_add_u32 s{sOff}, s{sOff}, {16*768}")
    for k in range(3):
        A(f"buffer_load_dwordx4 v{lBase}, s[{SRD_L}:{SRD_L+3}], s{sOffB} offen offset:{1024*k} nt lds")
    A(f"s_add_u32 s{sOffB}, s{sOffB}, {4*768}")
    A(f"v_lshrrev_b32 v{lG2}, 5, v{vLane}")
    A(f"v_add_u32 v{lTa}, 48, v{vLane}"); A(f"v_lshrrev_b32 v{lG3}, 6, v{lTa}")
    for r in (lA1, lA2, lB1, lB2): A(f"v_mov_b32 v{r}, v{lBase}")
    A(f"s_mov_b32 s{sC}, 4"); A(f"s_mov_b32 s{sMA}, {L_RING + 24576}")
    for r in (sB1, sB2a, sB2b): A(f"s_mov_b32 s{r}, 0")
    A(f"s_mov_b32 s{sThr}, {int(thr0)}"); A(f"s_mov_b32 s{sAcc}, 0")
    A(f"v_mov_b32 v{lThr}, {int(thr0*256)}"); A(f"v_mov_b32 v{lThrA}, {L_THR}")
    A(f"ds_write_b32 v{lThrA}, v{lThr}")
    if not blast:
        A("s_waitcnt lgkmcnt(0)")
        if stamp: A("s_memrealtime s[92:93]")
        srd(SRD_L, 6, KV_BYTES)
    if stamp == 7:
        A("s_waitcnt vmcnt(2)"); A("s_memrealtime s[94:95]")
    A.c("one step per pass; the entry points set the window; the next step's offsets are formed between the loads")
    def chain_loop(a, b, tag):
        def ladder(pre):
            if a == b: return
            for n in range(b, a, -1):
                A(f"s_cmp_eq_u32 s{sThr}, {n}")
                A(f"s_cbranch_scc1 {pre}{n}")
        def waits(pre):
            for n in range(a, b+1):
                A.label(f"{pre}{n}")
                A(f"s_waitcnt vmcnt({n})")
        work = [f"s_add_u32 s{sC}, s{sC}, 1", f"s_and_b32 s{sT0}, s{sC}, 31",
                f"s_add_u32 s{sT2}, s{sB1}, 3072", f"s_add_u32 s{sNA}, s{sT2}, s{sB2a}", f"s_add_u32 s{sNB}, s{sT2}, s{sB2b}",
                (f"s_cmp_eq_u32 s{sT0}, 10", f"s_cselect_b32 s{sB1}, {43*768}, 0"),
                (f"s_cmp_eq_u32 s{sT0}, 21", f"s_cselect_b32 s{sB2a}, {43*768}, 0", f"s_cselect_b32 s{sB2b}, {42*768}, 0"),
                f"v_mad_u32_u24 v{lTa}, v{lG3}, s{sB1}, v{lBase}"]
        after = {"A1": [f"v_mad_u32_u24 v{lA1}, v{lG2}, s{sB2a}, v{lBase}"], "B1": [f"v_mad_u32_u24 v{lB1}, v{lG2}, s{sB2b}, v{lBase}"],
                 "A2": [f"v_add_u32 v{lA2}, s{sB2a}, v{lTa}", f"s_add_u32 s{sOff}, s{sOff}, s{sNA}"],
                 "B2": [f"v_add_u32 v{lB2}, s{sB2b}, v{lTa}", f"s_add_u32 s{sOffB}, s{sOffB}, s{sNB}"]}
        cnt = {"A": 0, "B": 0}; late_ = []; cur = seq[0]; nw = 0
        letters = seq.replace("|", "")
        waits("L_lw")
        pos = 0
        for ch in seq:
            if ch == "|":
                nw += 1
                ladder(f"L_lx{nw}_{tag}_"); waits(f"L_lx{nw}_{tag}_")
                continue
            k = cnt[ch]; cnt[ch] += 1
            va_ = lBase if k == 0 else {"A": (lA1, lA2), "B": (lB1, lB2)}[ch][k-1]
            A(f"buffer_load_dwordx4 v{va_}, s[{SRD_L}:{SRD_L+3}], s{sOff if ch == 'A' else sOffB} offen offset:{1024*k} nt lds")
            pos += 1
            if pos < 6 and letters[pos] != ch:
                A(f"s_add_u32 m0, s{sMA}, {mo(letters[pos])}")
            late_ += after.get(ch + str(k), [])
            n = 0
            while work and n < 4:
                x = work.pop(0)
                for y in ([x] if isinstance(x, str) else x): A(y); n += 1
            if not work:
                for y in late_: A(y); n += 1
                late_ = []
            if n == 0 and pos < 6: A("s_nop 0")
        A(f"s_add_u32 s{sMA}, s{sMA}, 6144")
        A(f"s_add_u32 m0, s{sMA}, {mo(letters[0])}")
        A(f"s_and_b32 s{sT1}, s{sC}, 3")
        if a == b:
            A(f"s_cbranch_scc1 L_lw{a}")
            A("s_branch L_lunit")
            return
        A("s_cbranch_scc0 L_lunit")
        A.label(f"L_lad{tag}")
        ladder("L_lw")
        A(f"s_branch L_lw{a}")
    sNA, sNB, sMX = 88, 89, 90
    mo = lambda ch: (f"s{sMX + (ch == 'B')}" if mirror else (3072 if ch == 'B' else 0))
    A(f"s_mov_b32 s{sT0}, 4")
    A("s_branch L_lnobar")
    if al is not None:
        A(".p2align 6, 0x00")
        if al: A(f".fill {al//4}, 4, 0")
    chain_loop(lo, top, "")
    A.label("L_lunit")
    A.c("unit boundary: release the previous unit, pick up the window size")
    A("s_waitcnt vmcnt(24)")
    A(f"s_cmp_eq_u32 s{sC}, 8")
    A("s_cbranch_scc1 L_lfirst")
    A.label("L_lbar")
    A("s_barrier")
    A.label("L_lnobar")
    A("s_waitcnt lgkmcnt(0)")
    A(f"v_readfirstlane_b32 s{sT1}, v{lThr}")
    A(f"ds_read_b32 v{lThr}, v{lThrA}")
    A(f"s_cmp_eq_u32 s{sMA}, {L_RING + 73728}")
    A(f"s_cselect_b32 s{sMA}, {L_RING}, s{sMA}")
    if mirror:
        A(f"s_cmp_ge_u32 s{sT0}, 24")
        A(f"s_cselect_b32 s{sMX}, 3072, 0"); A(f"s_cselect_b32 s{sMX+1}, 0, 3072")
        A(f"s_cmp_eq_u32 s{sT0}, 24")
        A(f"s_cselect_b32 s{sT2}, s{sOffB}, s{sOff}"); A(f"s_cselect_b32 s{sOffB}, s{sOff}, s{sOffB}"); A(f"s_mov_b32 s{sOff}, s{sT2}")
    A(f"s_add_u32 m0, s{sMA}, {mo(seq[0])}")
    A(f"s_and_b32 s{sAcc}, s{sAcc}, 255")
    A(f"s_add_u32 s{sAcc}, s{sAcc}, s{sT1}")
    A(f"s_lshr_b32 s{sThr}, s{sAcc}, 8")
    A(f"s_cmp_eq_u32 s{sT0}, 0")
    if not his:
        A("s_cbranch_scc0 L_lad")
    else:
        A("s_cbranch_scc1 L_lblock")
        A.label("L_lsel")
        if lad2:
            for n in sorted(range(lo, top+1), key=lambda n: abs(n - thr0 - 0.6))[:lad2]:
                A(f"s_cmp_eq_u32 s{sThr}, {n}")
                A(f"s_cbranch_scc1 L_lw{n}")
        A(f"s_cmp_le_u32 s{sThr}, {top}")
        A("s_cbranch_scc1 L_lad")
        for a, b in his[:-1]:
            A(f"s_cmp_le_u32 s{sThr}, {b}")
            A(f"s_cbranch_scc1 L_l{'w' if a == b else 'ad'}{a}")
        A(f"s_branch L_l{'w' if his[-1][0] == his[-1][1] else 'ad'}{his[-1][0]}")
    back = "L_lsel" if his else "L_lad"
    A.label("L_lblock")
    A(f"s_bfe_u32 s{sT0}, s{sC}, {5 | (4 << 16)}")
    A(f"v_readlane_b32 s{sOff}, v{vGb}, s{sT0}")
    A("s_nop 3")
    A(f"s_mul_i32 s{sOff}, s{sOff}, {256*768}")
    A(f"s_add_u32 s{sOffB}, s{sOff}, {43*768}")
    A(f"s_cmp_eq_u32 s{sT0}, 0")
    A(f"s_cbranch_scc0 {back}")
    A(f"s_cmp_eq_u32 s{sC}, 1024")
    A("s_cbranch_scc1 L_ldone")
    A(f"s_mov_b32 s{SRD_L}, s8"); A(f"s_and_b32 s{SRD_L+1}, s9, 0xffff")
    A(f"s_branch {back}")
    A.label("L_lfirst")
    A("s_barrier")
    A("s_branch L_lbar")
    A.label("L_ldone")
    A("s_waitcnt vmcnt(0)")
    A("s_barrier")
    if stamp:
        A("s_memrealtime s[82:83]"); A("s_barrier"); A("s_branch L_fin2")
    else: A("s_endpgm")
    for a, b in his: chain_loop(a, b, str(a))

    A.c("==================== window control")
    A.label("L_ctl")
    pRep, pVal, pThrA, pLog = 8, 9, 10, 20
    if seg: A("s_memrealtime s[78:79]")
    if warm:
        A.c("a few workgroups pull the code into their L2 ahead of its first use")
        A(f"s_sub_u32 s{sT0}, s{sPhys}, 8")
        A(f"s_cmp_lt_u32 s{sT0}, {warm}")
        A("s_cbranch_scc0 L_ctl_init")
        A(f"s_getpc_b64 s[{SRD_Q}:{SRD_Q+1}]")
        A.label("L_pc")
        A(f"s_and_b32 s{SRD_Q+1}, s{SRD_Q+1}, 0xffff")
        A(f"s_mov_b32 s{SRD_Q+2}, L_end - L_pc"); A(f"s_mov_b32 s{SRD_Q+3}, 0x20000")
        A(f"v_lshlrev_b32 v{pVal}, 7, v{vLane}")
        for k in range(4):
            A(f"s_movk_i32 s{sT0}, {k*8192}")
            A(f"buffer_load_dword v{12+k}, v{pVal}, s[{SRD_Q}:{SRD_Q+3}], s{sT0} offen")
        A.label("L_ctl_init")
    A("s_waitcnt lgkmcnt(0)")
    srd(SRD_D, 22, FB_END)
    A(f"s_mov_b32 s{sProg}, 0")
    A(f"s_add_u32 s{sFbP}, s22, {WS_FB}"); A(f"s_addc_u32 s{sFbP+1}, s23, 0")
    sRepo, sD, sSl, sFf = sBlk, sBase, 92 if not stamp else 76, 94 if not stamp else 78
    A.c("reporters: workgroups 0..7")
    A(f"s_cmp_lt_u32 s{sPhys}, 8"); A(f"s_cselect_b32 s{sRepo}, 1, 0")
    A(f"s_and_b32 s{sT1}, s{sPhys}, 7"); A(f"s_mul_i32 s{sT1}, s{sT1}, {RSTR}"); A(f"s_add_u32 s{sT1}, s{sT1}, {WS_FB}")
    if phase:
        A.c("schedule offset (0, +1, -1 windows by part) that keeps all streams at the same address phase")
        A(f"s_cmp_eq_u32 s{sP}, 2"); A(f"s_cselect_b32 s{sSl}, -1, s{sP}"); A(f"s_mov_b32 s{sD}, 0")
    if align:
        A.c("schedule offsets that make all workgroups leave region 1 together")
        tau = 652*per//8
        sl = [[round(-align*tau/33), round(align*tau/15)], [round(align*tau/15), round(-align*tau/9)]]
        fw = [[round(align*ff*256*20.5*x) for x in (1/32, -1/16)], [round(align*ff*256*20.5*x) for x in (-1/16, 1/8)]]
        for k in range(2):
            for dst, tab in ((sSl, sl), (sFf, fw)):
                A(f"s_mov_b32 s{dst+k}, {tab[0][k]}")
                A(f"s_cmp_eq_u32 s{sP}, 1"); A(f"s_cselect_b32 s{dst+k}, {tab[1][k]}, s{dst+k}")
                A(f"s_cmp_eq_u32 s2, 255"); A(f"s_cselect_b32 s{dst+k}, 0, s{dst+k}")
        A(f"s_mov_b32 s{sD}, 0")
    A(f"v_mov_b32 v{pRep}, s{sT1}"); A(f"v_mov_b32 v{pThrA}, {L_THR}")
    sCy, sCp, sFw, sCorr, sRaw = 28, 30, 31, 32, 33
    A(f"s_memtime s[{sCy}:{sCy+1}]"); A(f"s_memrealtime s[{sNow}:{sNow+1}]")
    A(f"s_mov_b32 s{sCorr}, 0")
    A("s_mov_b64 exec, 1")
    A("s_waitcnt lgkmcnt(0)")
    A(f"s_mov_b32 s{sRaw}, s{sNow}")
    A(f"s_waitcnt vmcnt({0 if nstage == 1 else 42})")
    A("s_barrier")
    if clk:
        A("s_memtime s[76:77]"); A("s_memrealtime s[78:79]"); A("s_waitcnt lgkmcnt(0)")
        A("s_mov_b32 s92, 0"); A(f"s_mov_b32 s{sLev}, {int(thr0*256)}")
    if diag:
        A("s_memtime s[76:77]"); A("s_memrealtime s[78:79]"); A("s_waitcnt lgkmcnt(0)")
        A("s_mov_b32 s92, 0"); A(f"s_mov_b32 s{sLev}, {int(thr0*256)}")
    if stamp:
        A("s_memtime s[92:93]"); A("s_memrealtime s[94:95]"); A("s_waitcnt lgkmcnt(0)")
    sPrev, sOn = sSlot, sPar
    A(f"s_mov_b32 s{sOn}, 0")
    A.label("L_ctl_loop")
    for u in range(per):
        A("s_barrier")
        if stamp == 6:
            A("s_memrealtime s[34:35]"); A("s_waitcnt lgkmcnt(0)")
            A(f"s_lshr_b32 s35, s{sProg}, 6"); A(f"s_add_u32 s35, s35, {u}"); A("s_min_u32 m0, s35, 63")
            A("s_sub_u32 s34, s34, s80")
            A(f"v_writelane_b32 v{pLog}, s34, m0")
        if u == 0:
            A(f"s_mov_b32 s{sPrev}, s{sNow}")
            if kap:
                A(f"s_mov_b32 s{sCp}, s{sCy}")
                A(f"s_memtime s[{sCy}:{sCy+1}]")
            A(f"s_memrealtime s[{sNow}:{sNow+1}]")
            A("s_waitcnt lgkmcnt(0)")
            if kap:
                A.c("a slower shader clock stretches every round trip: widen the window with the shortfall")
                A(f"s_sub_u32 s{sT0}, s{sNow}, s{sRaw}"); A(f"s_mul_i32 s{sT0}, s{sT0}, {round(f0*16)}")
                A(f"s_mov_b32 s{sRaw}, s{sNow}")
                A(f"s_sub_u32 s{sT1}, s{sCy}, s{sCp}"); A(f"s_lshl_b32 s{sT1}, s{sT1}, 4")
                A(f"s_sub_i32 s{sT0}, s{sT0}, s{sT1}")
                A(f"s_mul_i32 s{sT0}, s{sT0}, {round(kap*256*4096/(16*81.5*per))}")
                A(f"s_ashr_i32 s{sFw}, s{sT0}, 12")
            if seg:
                A(f"s_lshr_b32 m0, s{sProg}, 8")
                A(f"s_sub_u32 s{sT0}, s{sNow}, s78")
                A(f"v_writelane_b32 v{pLog}, s{sT0}, m0")
            if diag:
                A(f"s_lshr_b32 m0, s{sProg}, 8")
                A(f"s_sub_u32 s{sT0}, s{sNow}, s78")
                A(f"v_writelane_b32 v{pLog}, s{sT0}, m0")
                A(f"s_cmp_lt_u32 s{sProg}, {56*256}"); A(f"s_cselect_b32 s93, s{sLev}, 0"); A("s_max_u32 s92, s92, s93")
            if stamp == 5:
                A(f"s_lshr_b32 m0, s{sProg}, {8 + (8//per).bit_length() - 1}")
                A(f"s_sub_u32 s{sT0}, s{sNow}, s80")
                A(f"v_writelane_b32 v{pLog}, s{sT0}, m0")
                A("s_add_u32 m0, m0, 32"); A("s_nop 0")
                A(f"v_writelane_b32 v{pLog}, s{sLev}, m0")
            if lead:
                A(f"s_lshr_b32 s{sT0}, s{sProg}, 8")
                A(f"s_sub_i32 s{sT0}, s{sT0}, {lead0}")
                A(f"s_max_i32 s{sT0}, s{sT0}, 0")
                A(f"s_mul_i32 s{sT0}, s{sT0}, s{sLead}")
                A(f"s_add_u32 s{sNow}, s{sNow}, s{sT0}")
            if align:
                A(f"s_sub_u32 s{sNow}, s{sNow}, s{sD}")
                A(f"s_bfe_u32 s{sT0}, s{sProg}, {(8 + (8//per).bit_length() - 1) | (4 << 16)}")
                A(f"s_cmp_lt_u32 s{sT0}, s{sC2}")
                A(f"s_cselect_b32 s{sT0}, s{sSl}, s{sSl+1}")
                A(f"s_add_i32 s{sD}, s{sD}, s{sT0}")
            if phase:
                tw, nin, nout, pff = phase
                NP = 256//per
                def slope(dst, shift):
                    A(f"s_sub_u32 s{sT1}, s{sProg}, {(1 - shift)*256}")
                    A(f"s_cmp_lt_u32 s{sT1}, {nin*256}"); A(f"s_cselect_b32 s{dst}, {round(tw/nin)}, 0")
                    A(f"s_sub_u32 s{sT1}, s{sProg}, {(NP - 1 - nout - shift)*256}")
                    A(f"s_cmp_lt_u32 s{sT1}, {nout*256}"); A(f"s_cselect_b32 s{dst}, {-round(round(tw/nin)*nin/nout)}, s{dst}")
                    A(f"s_mul_i32 s{dst}, s{dst}, s{sSl}")
                A(f"s_sub_u32 s{sNow}, s{sNow}, s{sD}")
                slope(sT0, 0)
                A(f"s_add_i32 s{sD}, s{sD}, s{sT0}")
                slope(sT0, 1)
                A(f"s_mul_i32 s{sT0}, s{sT0}, {round(pff*20.5*256/(81.5*per))}")
                A(f"s_sub_i32 s{sFw}, s{sFw}, s{sT0}")
            A.c("window from the lead over the reporters in the previous period")
            A(f"s_cmp_eq_u32 s{sOn}, 0")
            A("s_cbranch_scc1 L_ctl_set")
            A(f"s_mov_b32 s{sT0}, 0")
            for k in range(8):
                A(f"s_sub_i32 s{sT1}, s{sRef+k}, s{sPrev}")
                A(f"s_add_i32 s{sT2}, s{sT1}, {TAGW}")
                A(f"s_cmp_lt_u32 s{sT2}, {2*TAGW}")
                A(f"s_cselect_b32 s{sT1}, s{sT1}, {late}")
                A(f"s_add_i32 s{sT0}, s{sT0}, s{sT1}")
            if gcap:
                A(f"s_min_u32 s{sT1}, s{sOn}, {gcap}")
                A(f"s_cmp_gt_i32 s{sT0}, 0")
                A(f"s_cselect_b32 s{sOn}, s{sT1}, s{sOn}")
            A(f"s_mul_i32 s{sT0}, s{sT0}, s{sOn}")
            A(f"s_ashr_i32 s{sT0}, s{sT0}, 5")
            if kap:
                A(f"s_mov_b32 s{sCorr}, s{sT0}")
                A.label("L_ctl_set")
                A(f"s_sub_i32 s{sT0}, s{sFw}, s{sCorr}")
                A(f"s_add_i32 s{sT0}, s{sT0}, {int(thr0*256)}")
            else:
                A(f"s_sub_i32 s{sT0}, {int(thr0*256)}, s{sT0}")
            if align:
                A(f"s_add_u32 s{sT1}, s{sProg}, 256")
                A(f"s_min_u32 s{sT1}, s{sT1}, {(256//per - 1)*256}")
                A(f"s_bfe_u32 s{sT1}, s{sT1}, {(8 + (8//per).bit_length() - 1) | (4 << 16)}")
                A(f"s_cmp_lt_u32 s{sT1}, s{sC2}")
                A(f"s_cselect_b32 s{sT1}, s{sFf}, s{sFf+1}")
                A(f"s_add_i32 s{sT0}, s{sT0}, s{sT1}")
            if swb:
                A(f"s_bfe_u32 s{sT1}, s{sProg}, {8 | (5 << 16)}"); A(f"s_add_u32 s{sT1}, s{sT1}, {swb[1]}")
                A(f"s_lshl_b32 s{sT2}, s{sC2}, 1")
                A(f"s_cmp_eq_u32 s{sT1}, s{sT2}"); A(f"s_cselect_b32 s{sT2}, {int(swb[0]*256)}, 0")
                A(f"s_cmp_eq_u32 s{sT1}, 32"); A(f"s_cselect_b32 s{sT2}, {int(swb[0]*256)}, s{sT2}")
                A(f"s_add_i32 s{sT0}, s{sT0}, s{sT2}")
            if boost:
                A(f"s_cmp_ge_u32 s{sProg}, {boost0*256}")
                A(f"s_cselect_b32 s{sT1}, {int(boost*256)}, 0")
                A(f"s_add_i32 s{sT0}, s{sT0}, s{sT1}")
            A(f"s_max_i32 s{sT0}, s{sT0}, {lo*256}")
            A(f"s_min_i32 s{sLev}, s{sT0}, {hi*256}")
            A(f"v_mov_b32 v{pVal}, s{sLev}")
            A(f"ds_write_b32 v{pThrA}, v{pVal}")
            if not kap: A.label("L_ctl_set")
            A.c("gain of this period (0: period not used)")
            A(f"s_and_b32 s{sT0}, s{sProg}, {(skip-1)*256}")
            A(f"s_cselect_b32 s{sOn}, 0, {gain}")
            if gain2:
                A(f"s_cmp_ge_u32 s{sProg}, {int(g2at*256/per)*256}")
                A(f"s_cselect_b32 s{sOn}, {gain2}, s{sOn}")
            A(f"s_cmp_eq_u32 s{sProg}, {(256//per - 1)*256}")
            A(f"s_cselect_b32 s{sOn}, 0, s{sOn}")
            A(f"s_mul_i32 s{sT0}, s{sOn}, s{sRepo}")
            A(f"s_cmp_eq_u32 s{sT0}, 0")
            A("s_cbranch_scc1 L_ctl_norep")
            A(f"v_mov_b32 v{pVal+2}, s{sNow}")
            A(f"buffer_store_dword v{pVal+2}, v{pRep}, s[{SRD_D}:{SRD_D+3}], s{sProg} offen sc1")
            A.label("L_ctl_norep")
        if tlb and u == 1:
            A.c("touch the block after next through the scalar path so its translation is ready")
            A(f"s_lshr_b32 s{sT0}, s{sProg}, 8"); A(f"s_add_u32 s{sT0}, s{sT0}, {tlb}"); A(f"s_lshr_b32 s{sT0}, s{sT0}, 1")
            A(f"s_and_b32 s{sT1}, s{sT0}, 15")
            A(f"v_readlane_b32 s{sT1}, v{vGb}, s{sT1}")
            A(f"s_cmp_lt_u32 s{sT0}, 16")
            A("s_cselect_b32 s34, s6, s8"); A("s_cselect_b32 s35, s7, s9")
            A(f"s_mul_i32 s{sT1}, s{sT1}, {256*768}")
            A(f"s_load_dword s33, s[34:35], s{sT1}")
        if u == per - 1 and nstage == 2: A("s_waitcnt vmcnt(0)")
        if u == per - 1:
            A(f"s_cmp_eq_u32 s{sOn}, 0")
            A("s_cbranch_scc1 L_ctl_nold")
            if sep:
                for k in range(8):
                    A(f"s_add_u32 s{sT0}, s{sProg}, {k*RSTR}")
                    A(f"s_load_dword s{sRef+k}, s[{sFbP}:{sFbP+1}], s{sT0}")
            else:
                A(f"s_load_dwordx8 s[{sRef}:{sRef+7}], s[{sFbP}:{sFbP+1}], s{sProg}")
            A.label("L_ctl_nold")
    if clk == 2:
        A(f"s_cmp_lt_u32 s{sProg}, {56*256}"); A(f"s_cselect_b32 s93, s{sLev}, 0"); A("s_max_u32 s92, s92, s93")
    A(f"s_add_u32 s{sProg}, s{sProg}, 256")
    A(f"s_cmp_lt_u32 s{sProg}, {256//per*256}")
    A("s_cbranch_scc1 L_ctl_loop")
    A("s_waitcnt lgkmcnt(0)")
    if clk:
        A("s_memtime s[80:81]"); A("s_memrealtime s[82:83]"); A("s_waitcnt lgkmcnt(0)")
        A("s_barrier")
        A("s_sub_u32 s80, s80, s76"); A("s_sub_u32 s81, s82, s78")
        A(f"s_mul_i32 s81, s81, {15 if clk > 0 else 25}")
        A("s_sub_i32 s80, s80, s81" if clk > 0 else "s_sub_i32 s80, s81, s80")
        A("s_ashr_i32 s80, s80, 3"); A("s_add_i32 s80, s80, 30000"); A("s_min_u32 s80, s80, 100000")
        if clk == 2:
            A(f"s_sub_u32 s92, s92, {int(thr0*256)}"); A("s_lshr_b32 s92, s92, 6"); A("s_mul_i32 s92, s92, 5000")
            A("s_sub_u32 s80, s82, s78"); A("s_add_u32 s80, s80, s92"); A("s_add_u32 s80, s80, 10000"); A("s_min_u32 s80, s80, 200000")
        if clk == -3:
            A("s_sub_u32 s80, s80, 30000"); A("s_lshr_b32 s80, s80, 12"); A("s_mul_i32 s92, s80, 10000")
            A("s_sub_u32 s80, s82, s78"); A("s_add_u32 s80, s80, s92"); A("s_add_u32 s80, s80, 3000"); A("s_min_u32 s80, s80, 200000")
        A.label("L_hold")
        A("s_sleep 4")
        A("s_memrealtime s[82:83]"); A("s_waitcnt lgkmcnt(0)")
        A("s_sub_u32 s81, s82, s78")
        A("s_cmp_lt_u32 s81, s80")
        A("s_cbranch_scc1 L_hold")
    A("s_mov_b64 exec, -1")
    if seg:
        a_, b_, mult, wsel = seg
        A("s_memrealtime s[82:83]"); A("s_waitcnt lgkmcnt(0)")
        A("s_barrier")
        if wsel is not None:
            A(f"s_cmp_eq_u32 s2, {wsel}"); A("s_cbranch_scc0 L_end")
        if b_ < 64: A(f"v_readlane_b32 s80, v{pLog}, {b_}")
        else: A("s_sub_u32 s80, s82, s78")
        if a_ >= 0: A(f"v_readlane_b32 s81, v{pLog}, {a_}")
        else: A("s_mov_b32 s81, 0")
        A("s_nop 3")
        A("s_sub_u32 s80, s80, s81"); A(f"s_mul_i32 s80, s80, {mult}"); A("s_add_u32 s80, s80, 30000"); A("s_min_u32 s80, s80, 200000")
        A.label("L_hold2")
        A("s_sleep 4")
        A("s_memrealtime s[82:83]"); A("s_waitcnt lgkmcnt(0)")
        A("s_sub_u32 s81, s82, s78")
        A("s_cmp_lt_u32 s81, s80")
        A("s_cbranch_scc1 L_hold2")
    if diag:
        A("s_memtime s[80:81]"); A("s_memrealtime s[82:83]"); A("s_waitcnt lgkmcnt(0)")
        A("s_barrier")
        srd(SRD_D, 20, 256)
        A("s_mov_b64 exec, 1")
        A(f"s_cmp_lt_u32 s92, {int((thr0+1.25)*256)}")
        A("s_cbranch_scc1 L_dg1")
        A("s_lshr_b32 s93, s2, 1"); A("s_lshl_b32 s94, 1, s93"); A("s_lshr_b32 s93, s93, 5"); A("s_lshl_b32 s93, s93, 2")
        A("v_mov_b32 v12, s94"); A("v_mov_b32 v13, s93")
        A(f"buffer_atomic_or v12, v13, s[{SRD_D}:{SRD_D+3}], 0 offen offset:48")
        A.label("L_dg1")
        A("s_cmp_eq_u32 s2, 99")
        A("s_cbranch_scc0 L_dg2")
        A("v_mov_b32 v13, 0")
        for k, ln in enumerate((2, 18, 24, 30, 34, 50, 56, 62)):
            A(f"v_readlane_b32 s93, v{pLog}, {ln}"); A("s_nop 3"); A("v_mov_b32 v12, s93")
            A(f"buffer_store_dword v12, v13, s[{SRD_D}:{SRD_D+3}], 0 offen offset:{4+4*k}")
        A("s_sub_u32 s80, s80, s76"); A("s_sub_u32 s82, s82, s78")
        A("v_mov_b32 v14, s82"); A("v_mov_b32 v15, s80")
        A(f"buffer_store_dwordx2 v[14:15], v13, s[{SRD_D}:{SRD_D+3}], 0 offen offset:36")
        A.label("L_dg2")
    if stamp:
        A("s_memtime s[76:77]"); A("s_memrealtime s[78:79]"); A("s_waitcnt lgkmcnt(0)")
        A("s_sub_u32 s92, s76, s92"); A("s_sub_u32 s94, s78, s94")
    if stamp and not clk: A("s_barrier")
    if stamp in (5, 6):
        srd(76, 22, (9 << 20) + 65536)
        A(f"v_lshlrev_b32 v21, 2, v{vLane}")
        A(f"s_lshl_b32 s{sT0}, s2, 8"); A(f"s_add_u32 s{sT0}, s{sT0}, {9 << 20}")
        A(f"buffer_store_dword v{pLog}, v21, s[76:79], s{sT0} offen")
    if stamp: A("s_branch L_fin")
    else: A("s_endpgm")

    A.c("==================== consumers")
    A.label("L_consumer")
    A.c("q fragments: lane = kg*16 + h'*4 + qi")
    A(f"v_lshrrev_b32 v{vT1}, 2, v{vLane}")
    A(f"v_lshlrev_b32 v{vT1}, 3, v{vT1}")
    A(f"v_and_b32 v{vT2}, 3, v{vLane}")
    A(f"v_mul_u32_u24 v{vT3}, 384, v{vT2}")
    A(f"v_add_u32 v{vQA}, v{vT1}, v{vT3}"); A(f"v_add_u32 v{vQA}, {L_Q}, v{vQA}")
    if stamp == 4: A("s_memrealtime s[92:93]")
    A(f"s_mov_b32 s{sLog2e}, {LOG2E:#x}"); A(f"s_mov_b32 s{sScale}, {SCALE:#x}")
    A(f"s_mov_b32 s{sHi}, 0xffff0000")
    A.c("K param LDS addresses: (tok>>6)*384 + (kg*4+h)*8")
    n0, isb, part = vX, vX+1, vX+2
    A(f"v_bfe_u32 v{n0}, v{vLane}, 2, 1"); A(f"v_lshl_add_u32 v{n0}, v{vW}, 2, v{n0}")
    A(f"v_bfe_u32 v{isb}, v{vLane}, 3, 1")
    A(f"v_lshrrev_b32 v{part}, 4, v{vLane}"); A(f"v_lshl_add_u32 v{part}, v{part}, 2, v{vT2}")
    A(f"v_lshlrev_b32 v{part}, 3, v{part}"); A(f"v_add_u32 v{part}, {L_PAR}, v{part}")
    A(f"s_movk_i32 s{sT0}, 384")
    for i in range(8):
        for e in range(2):
            d = vPar + 2*i + e
            A(f"v_add_u32 v{vT1}, {16*i + 2*e}, v{n0}")
            tok_of(d, vT1, isb, vT3, vT4)
            A(f"v_lshrrev_b32 v{d}, 6, v{d}")
            A(f"v_mad_u32_u24 v{d}, v{d}, s{sT0}, v{part}")
    A.c("P layout: lane = t*16 + b*4 + qi ; n = 64g + 16b + 4w + 2e + (t&1)")
    A(f"v_bfe_u32 v{n0}, v{vLane}, 4, 1"); A(f"v_lshl_add_u32 v{n0}, v{vW}, 2, v{n0}")
    A(f"v_bfe_u32 v{vT1}, v{vLane}, 2, 2"); A(f"v_lshl_add_u32 v{n0}, v{vT1}, 4, v{n0}")
    A(f"v_lshrrev_b32 v{isb}, 5, v{vLane}")
    A(f"s_mov_b32 s{sT0}, {L_VSZ}")
    for g in range(2):
        for e in range(2):
            d = vPa + 2*g + e
            A(f"v_add_u32 v{vT1}, {64*g + 2*e}, v{n0}")
            tok_of(d, vT1, isb, vT3, vT4)
            A(f"v_lshl_add_u32 v{d}, v{d}, 1, s{sT0}")
    A(f"v_lshlrev_b32 v{vLogA}, 2, v{vLane}")
    A(f"v_lshl_add_u32 v{vLogA}, v{vW}, 9, v{vLogA}")
    A(f"v_add_u32 v{vLogA}, {L_PAR}, v{vLogA}")
    def ring_addr(kind):
        if kind == "K":
            A(f"v_bfe_u32 v{vT1}, v{vLane}, 2, 2")
            A(f"v_lshrrev_b32 v{vT2}, 4, v{vLane}"); A(f"v_and_b32 v{vT3}, 3, v{vLane}")
            A(f"v_lshl_add_u32 v{vT2}, v{vT2}, 2, v{vT3}")
        else:
            A(f"v_lshrrev_b32 v{vT1}, 4, v{vLane}"); A(f"v_and_b32 v{vT2}, 15, v{vLane}")
        A(f"v_and_b32 v{vT3}, 2, v{vT1}"); A(f"v_add_u32 v{vT1}, v{vT1}, v{vT3}")
        A(f"v_lshl_add_u32 v{vT1}, v{vW}, 3, v{vT1}")
        A(f"v_mul_u32_u24 v{vT1}, 768, v{vT1}")
        A(f"v_lshl_add_u32 v{vRing}, v{vT2}, 4, v{vT1}")
    ring_addr("K")
    A(f"v_and_b32 v{vT1}, 3, v{vLane}")
    A(f"v_lshl_add_u32 v{vMaxA}, v{vT1}, 2, v{vW}")
    A(f"v_lshlrev_b32 v{vMaxA}, 2, v{vMaxA}"); A(f"v_add_u32 v{vMaxA}, {L_MAX}, v{vMaxA}")
    A(f"v_mov_b32 v{vM}, 0xff800000")
    A(f"s_mov_b32 s{sBlk}, 0"); A(f"s_mov_b32 s{sSlot}, {L_RING}"); A(f"s_movk_i32 s{sPar}, 3072")
    if stamp == 4: A("s_memrealtime s[94:95]")
    A("s_waitcnt vmcnt(0) lgkmcnt(0)")
    if stamp == 3: A("s_memrealtime s[94:95]")
    A("s_barrier")
    if stamp and stamp not in (3, 4): A("s_memrealtime s[92:93]")

    def par_reads(i):
        out = [f"v_add_u32 v{vPad+e}, s{sPar}, v{vPar+2*i+e}" for e in range(2)]
        for e in range(2):
            for j in range(3):
                out.append(f"ds_read_b64 {vr(vRaw+e*12+j*4, 2)}, v{vPad+e} offset:{j*128}")
                out.append(f"ds_read_b64 {vr(vRaw+e*12+j*4+2, 2)}, v{vPad+e} offset:{1536 + j*128}")
        return out
    def par_unpack():
        A("s_waitcnt lgkmcnt(0)")
        for k in range(6):
            for dst, src in ((vZ+4*k, vRaw+4*k), (vS+4*k, vRaw+4*k+2)):
                for h in range(2):
                    A(f"v_lshlrev_b32 v{dst+2*h}, 16, v{src+h}")
                    A(f"v_and_b32 v{dst+2*h+1}, s{sHi}, v{src+h}")
    def fetch_unit(order=range(6), pre=()):
        A(f"v_add_u32 v{vRd}, s{sSlot}, v{vRing}")
        A(f"s_add_u32 s{sSlot}, s{sSlot}, 24576")
        A(f"s_cmp_eq_u32 s{sSlot}, {L_RING + 73728}")
        A(f"s_cselect_b32 s{sSlot}, {L_RING}, s{sSlot}")
        A("s_barrier")
        if nocomp: return
        for x in pre: A(x)
        for k in order:
            A(f"ds_read_b128 {vr(vX+4*k, 4)}, v{vRd} offset:{(k//3)*1536 + (k % 3)*256}")
    def dpp_sum(e, b):
        D = vD + 4*e
        L = vLa if e == 0 else vLb
        t = vT1 + e
        return [f"v_add_f32_dpp v{t}, v{D+(b+1) % 4}, v{D+b} row_ror:12 row_mask:0xf bank_mask:0xf",
                f"v_add_f32_dpp v{t}, v{D+(b+2) % 4}, v{t} row_ror:8 row_mask:0xf bank_mask:0xf",
                f"v_add_f32_dpp v{L}, v{D+(b+3) % 4}, v{t} row_ror:4 row_mask:0xf bank_mask:{1 << b:#x}"]

    def xlane(op, r, t):
        A("s_nop 1")
        A(f"{op}_dpp v{r}, v{r}, v{r} row_ror:4 row_mask:0xf bank_mask:0xf")
        A("s_nop 1")
        A(f"{op}_dpp v{r}, v{r}, v{r} row_ror:8 row_mask:0xf bank_mask:0xf")
        for sw in ("v_permlane16_swap_b32", "v_permlane32_swap_b32"):
            A(f"v_mov_b32 v{t}, v{r}")
            A("s_nop 1")
            A(f"{sw} v{r}, v{t}")
            A(f"{op} v{r}, v{r}, v{t}")
    def q_reads():
        for j in range(3): A(f"ds_read_b64 {vr(vQ+2*j, 2)}, v{vQA} offset:{j*128}")
        A(f"v_add_u32 v{vQA}, 1536, v{vQA}")
    q_reads()
    for x in par_reads(0): A(x)
    par_unpack()
    A.label("L_kblk")
    for i in range(8):
        b = i % 4
        A.c(f"K step {i}")
        fetch_unit()
        if nocomp: continue
        for e in range(2):
            o = e*12
            A(f"s_waitcnt lgkmcnt({3 - 3*e})")
            for k in range(12): A(f"v_cvt_f32_i32 v{vX+o+k}, v{vX+o+k}")
            if pk:
                for k in range(0, 12, 2): A(f"v_pk_add_f32 {vr(vX+o+k, 2)}, {vr(vX+o+k, 2)}, {vr(vZ+o+k, 2)} neg_lo:[0,1] neg_hi:[0,1]")
            else:
                for k in range(12): A(f"v_sub_f32 v{vX+o+k}, v{vX+o+k}, v{vZ+o+k}")
            for k in range(12): A(f"v_cvt_pk_bf16_f32 v{vX+o+k}, 0, v{vX+o+k}")
            if pk:
                for k in range(0, 12, 2): A(f"v_pk_mul_f32 {vr(vX+o+k, 2)}, {vr(vX+o+k, 2)}, {vr(vS+o+k, 2)}")
            else:
                for k in range(12): A(f"v_mul_f32 v{vX+o+k}, v{vX+o+k}, v{vS+o+k}")
            packs = [f"v_cvt_pk_bf16_f32 v{vKb+e*6+k}, v{vX+o+2*k}, v{vX+o+2*k+1}" for k in range(6)]
            if e == 1:
                d = dpp_sum(0, b)
                packs = packs[0:2] + d[0:1] + packs[2:4] + d[1:2] + packs[4:6] + d[2:3]
            for x in packs: A(x)
            D = vr(vD+4*e, 4)
            for j in range(3):
                A(f"v_mfma_f32_16x16x16_bf16 {D}, {vr(vKb+e*6+2*j, 2)}, {vr(vQ+2*j, 2)}, {'0' if j == 0 else D}")
        if i == 7: A(f"s_add_u32 s{sPar}, s{sPar}, 3072")
        pr = par_reads((i+1) % 8)
        d = dpp_sum(1, b)
        for x in pr[:9] + d[0:1] + pr[9:11] + d[1:2] + pr[11:14] + d[2:3]: A(x)
        if b == 3:
            A(f"v_cvt_pk_bf16_f32 v{vT1}, 0, v{vLa}")
            A(f"v_cvt_pk_bf16_f32 v{vT2}, 0, v{vLb}")
            A(f"v_mul_f32 v{vT1}, s{sScale}, v{vT1}")
            A(f"v_mul_f32 v{vT2}, s{sScale}, v{vT2}")
            A(f"v_cvt_pk_bf16_f32 v{vT3}, v{vT1}, v{vT2}")
            A(f"v_max3_f32 v{vM}, v{vM}, v{vT1}, v{vT2}")
            A(f"ds_write_b32 v{vLogA}, v{vT3} offset:{(i//4)*256}")
        par_unpack()
    def round_end_test(loop):
        A(f"s_add_u32 s{sBlk}, s{sBlk}, 1")
        A(f"s_cmp_eq_u32 s{sBlk}, s{sC1}")
        A(f"s_cbranch_scc1 {loop}_end")
        A(f"s_cmp_eq_u32 s{sBlk}, s{sC2}")
        A(f"s_cbranch_scc1 {loop}_end")
        A(f"s_cmp_lt_u32 s{sBlk}, 16")
        A(f"s_cbranch_scc1 {loop}")
        A.label(f"{loop}_end")
    A(f"v_add_u32 v{vLogA}, 3072, v{vLogA}")
    round_end_test("L_kblk")
    A.c("end of a K round: publish the wave's max, fetch the next q")
    xlane("v_max_f32", vM, vT1)
    A(f"v_cvt_pk_bf16_f32 v{vM}, 0, v{vM}")
    A(f"v_mul_f32 v{vM}, s{sLog2e}, v{vM}")
    A(f"ds_write_b32 v{vMaxA}, v{vM}")
    A(f"v_add_u32 v{vMaxA}, 64, v{vMaxA}")
    q_reads()
    A(f"v_mov_b32 v{vM}, 0xff800000")
    A("s_waitcnt lgkmcnt(0)")
    A(f"s_cmp_lt_u32 s{sBlk}, 16")
    A("s_cbranch_scc1 L_kblk")

    if stamp and stamp not in (3, 4): A("s_memrealtime s[94:95]")
    def p_reads(g):
        return [f"v_add_u32 v{vSZ}, s{sPar}, v{vPa+2*g}",
                f"v_add_u32 v{vSZ+1}, s{sPar}, v{vPa+2*g+1}",
                f"ds_read_b32 v{vLg}, v{vLogA} offset:{g*256}",
                f"ds_read_u16 v{vSZ+2}, v{vSZ} offset:512",
                f"ds_read_u16 v{vSZ+3}, v{vSZ+1} offset:512",
                f"ds_read_u16 v{vSZ}, v{vSZ}",
                f"ds_read_u16 v{vSZ+1}, v{vSZ+1}"]
    ring_addr("V")
    A(f"v_subrev_u32 v{vLogA}, {16*3072}, v{vLogA}")
    A(f"s_mov_b32 s{sPar}, 0")
    for x in p_reads(0): A(x)
    for k in range(16): A(f"v_mov_b32 v{vP+k}, 0")
    A(f"s_mov_b32 s{sBlk}, 0")
    A.c("addresses for the end of a round and for the last hand-off (lane = ch*4 + qi, wave = third)")
    rRd, rSt, rLin, rSta, rOut, rTag = range(vPar, vPar+6)
    sLast, sImg, sOwn, sOut, sSel = sRnd, sC, sProg, sBase, 84
    A(f"v_and_b32 v{vT1}, 3, v{vLane}")
    A(f"v_lshlrev_b32 v{rSta}, 4, v{vT1}")
    A(f"v_add_u32 v{vMaxA}, {L_MAX}, v{rSta}")
    A(f"v_add_u32 v{rSt}, {L_STAT}, v{rSta}")
    A(f"v_lshl_add_u32 v{vStatA}, v{vW}, 6, v{rSt}")
    A(f"v_lshl_add_u32 v{rSta}, v{vW}, 6, v{rSta}"); A(f"v_add_u32 v{rSta}, 3072, v{rSta}")
    A(f"v_mul_u32_u24 v{vSlotA}, 3072, v{vW}"); A(f"v_lshl_add_u32 v{vSlotA}, v{vLane}, 4, v{vSlotA}")
    A(f"v_add_u32 v{vSlotA}, {L_SLOT}, v{vSlotA}")
    A(f"v_lshlrev_b32 v{vT2}, 10, v{vW}")
    A(f"v_lshl_add_u32 v{rLin}, v{vLane}, 4, v{vT2}")
    A(f"v_lshl_add_u32 v{rRd}, v{vLane}, 2, v{vT2}"); A(f"v_add_u32 v{rRd}, {L_SLOT}, v{rRd}")
    A(f"v_mul_u32_u24 v{rOut}, 384, v{vT1}"); A(f"v_lshrrev_b32 v{vT2}, 2, v{vLane}")
    A(f"v_lshl_add_u32 v{rOut}, v{vT2}, 3, v{rOut}"); A(f"v_lshl_add_u32 v{rOut}, v{vW}, 7, v{rOut}")
    srd(SRD_O, 18, 256*1536); srd(SRD_L, 22, 255*RIMG)
    A(f"s_mul_i32 s{sImg}, s{sJ}, {3*RIMG}"); A(f"s_mul_i32 s{sOwn}, s2, {RIMG}")
    A(f"s_add_u32 s{sImg+1}, s{sImg}, {RIMG}"); A(f"s_add_u32 s{sImg+2}, s{sImg}, {2*RIMG}")
    if rev2: A(f"s_sub_u32 s{sOut}, 255, s{sJ}")
    else:
        A(f"s_add_u32 s{sOut}, s{sJ}, 171"); A("s_cmp_eq_u32 s2, 255"); A(f"s_cselect_b32 s{sOut}, 170, s{sOut}")
    A(f"s_mul_i32 s{sOut}, s{sOut}, 1536")
    for c in range(4): A(f"s_mov_b32 s{sSel+c}, {0x07060500 | c:#x}")
    A(f"s_mov_b32 s{sSel+4}, 0x0c0c0400"); A(f"s_mov_b32 s{sSel+5}, 0x04000c0c"); A(f"s_mov_b32 s{sSel+6}, 0xffffff00")
    if stamp: A("s_waitcnt lgkmcnt(0)")

    A.label("L_vround")
    for k in range(12): A(f"v_mov_b32 v{vAcc+k}, 0")
    A(f"v_mov_b32 v{vSum}, 0"); A(f"v_mov_b32 v{vCor}, 0")
    A.label("L_vblk")
    A(f"s_add_u32 s{sBlk}, s{sBlk}, 1")
    A(f"s_cmp_eq_u32 s{sBlk}, s{sC1}"); A(f"s_cselect_b32 s{sLast}, 1, 0")
    A(f"s_cmp_eq_u32 s{sBlk}, s{sC2}"); A(f"s_cselect_b32 s{sLast}, 1, s{sLast}")
    A(f"s_cmp_eq_u32 s{sBlk}, 16"); A(f"s_cselect_b32 s{sLast}, 1, s{sLast}")
    for i in range(8):
        b, g = i % 4, i//4
        A.c(f"V step {i}")
        fetch_unit((0, 3, 1, 4, 2, 5), [f"ds_read_b128 {vr(vMx, 4)}, v{vMaxA}"] if i == 0 else ())
        if nocomp: continue
        if i == 0:
            A("s_waitcnt lgkmcnt(6)")
            A(f"v_max_f32 v{vM}, v{vMx}, v{vMx+1}")
            A(f"v_max3_f32 v{vM}, v{vM}, v{vMx+2}, v{vMx+3}")
        if b == 0:
            E = vE
            for x in ["s_waitcnt lgkmcnt(6)",
                      f"v_lshlrev_b32 v{E}, 16, v{vLg}",
                      f"v_and_b32 v{E+1}, s{sHi}, v{vLg}",
                      f"v_fma_f32 v{E}, v{E}, s{sLog2e}, -v{vM}",
                      f"v_fma_f32 v{E+1}, v{E+1}, s{sLog2e}, -v{vM}",
                      f"v_exp_f32 v{E}, v{E}",
                      f"v_exp_f32 v{E+1}, v{E+1}",
                      f"v_lshlrev_b32 v{E+2}, 16, v{vSZ}",
                      f"v_lshlrev_b32 v{E+3}, 16, v{vSZ+1}",
                      f"v_mul_f32 v{E+2}, v{E}, v{E+2}",
                      f"v_mul_f32 v{E+3}, v{E+1}, v{E+3}",
                      f"v_add_f32 v{vSum}, v{vSum}, v{E}",
                      f"v_cvt_pk_bf16_f32 v{E+2}, v{E+2}, v{E+3}",
                      f"v_add_f32 v{vSum}, v{vSum}, v{E+1}",
                      f"v_lshlrev_b32 v{E+4}, 16, v{vSZ+2}",
                      f"v_lshlrev_b32 v{E+5}, 16, v{vSZ+3}",
                      f"v_lshlrev_b32 v{E}, 16, v{E+2}",
                      f"v_and_b32 v{E+1}, s{sHi}, v{E+2}",
                      f"v_fmac_f32 v{vCor}, v{E}, v{E+4}",
                      f"v_fmac_f32 v{vCor}, v{E+1}, v{E+5}"]: A(x)
            for c in range(4):
                for k in range(4):
                    ctl = "quad_perm:[0,1,2,3]" if k == c else f"row_ror:{4*((c - k) % 4)}"
                    A(f"v_mov_b32_dpp v{vP+4*c+k}, v{E+2} {ctl} row_mask:0xf bank_mask:{1 << c:#x}")
        mf = lambda k: f"v_mfma_f32_16x16x32_bf16 {vr(vAcc+4*(k//4), 4)}, {vr(vP+4*(k % 4), 4)}, {vr(vB+4*k, 4)}, {vr(vAcc+4*(k//4), 4)}"
        for j in range(3):
            A(f"s_waitcnt lgkmcnt({4 - 2*j})")
            va_ = [f"v_cvt_f32_i32 v{vX+o+4*j+c}, v{vX+o+4*j+c}" for o in (0, 12) for c in range(4)]
            va_ += [f"v_cvt_pk_bf16_f32 v{vB+(4*j+c)*4+b}, v{vX+4*j+c}, v{vX+12+4*j+c}" for c in range(4)]
            for n, x in enumerate(va_):
                A(x)
                if b == 3 and j and n % 3 == 2: A(mf(4*(j-1) + n//3))
        if b == 3:
            for k in range(8, 12): A(mf(k))
        if b == 0:
            if g == 1:
                A(f"v_add_u32 v{vLogA}, 3072, v{vLogA}")
                A(f"s_add_u32 s{sPar}, s{sPar}, 1024")
            for x in p_reads(1-g): A(x)
        if i == 5:
            A.c("last block of a round: its (m, l, c) are final, park them in LDS")
            A(f"s_cmp_eq_u32 s{sLast}, 0")
            A("s_cbranch_scc1 L_vnostat")
            A(f"v_mov_b32 v{rTag}, {L_TAG}")
            A(f"ds_read_b32 v{rTag}, v{rTag}")
            xlane("v_add_f32", vSum, vT1)
            xlane("v_add_f32", vCor, vT1)
            A(f"v_mov_b32 v{vMx}, v{vM}"); A(f"v_mov_b32 v{vMx+1}, v{vSum}"); A(f"v_mov_b32 v{vMx+2}, v{vCor}")
            A(f"ds_write_b128 v{vStatA}, {vr(vMx, 4)}")
            A(f"v_add_u32 v{vMaxA}, 64, v{vMaxA}")
            A.label("L_vnostat")
    A(f"s_cmp_eq_u32 s{sLast}, 0")
    A("s_cbranch_scc1 L_vblk")

    A.c("end of a V round: lane c*16+ch holds O[query][64*third + 4*ch + c]; park it in LDS")
    A(f"ds_write_b128 v{vSlotA}, {vr(vAcc, 4)}")
    A("s_nop 0")
    A(f"ds_write_b128 v{vSlotA}, {vr(vAcc+4, 4)} offset:1024")
    A(f"s_cmp_lt_u32 s{sBlk}, 16")
    A("s_nop 1")
    A(f"ds_write_b128 v{vSlotA}, {vr(vAcc+8, 4)} offset:2048")
    A("s_waitcnt lgkmcnt(0)")
    A("s_cbranch_scc1 L_vround")
    A("s_barrier")
    if tl and 0 in tl: A("s_memrealtime s[92:93]"); A("s_waitcnt lgkmcnt(0)")

    A(f"s_cmp_eq_u32 s{sW}, 3")
    A("s_cbranch_scc1 L_fin")
    St, O, I = vX, vZ, [vAcc, vAcc+8, vAcc+16]
    rn = [0]
    def by_part(body):
        rn[0] += 1
        for p in range(3):
            if p < 2:
                A(f"s_cmp_eq_u32 s{sP}, {p}")
                A(f"s_cbranch_scc0 L_rp{rn[0]}{p}")
            body(p)
            if p < 2:
                A(f"s_branch L_rp{rn[0]}2")
                A.label(f"L_rp{rn[0]}{p}")
        A.label(f"L_rp{rn[0]}2")
    def r_loads(own, fl=None):
        fl = fl or lf2
        ps = [x for x in range(3) if x != own]
        for p in ps:
            A(f"buffer_load_dwordx4 {vr(I[p]+4, 4)}, v{rSta}, s[{SRD_L}:{SRD_L+3}], s{sImg+p} offen {fl}")
        for p in ps:
            A(f"buffer_load_dwordx4 {vr(I[p], 4)}, v{rLin}, s[{SRD_L}:{SRD_L+3}], s{sImg+p} offen {fl}")
    for w in range(4): A(f"ds_read_b128 {vr(St+4*w, 4)}, v{rSt} offset:{w*64}")
    for w in range(4):
        for h in range(2):
            A(f"ds_read2st64_b32 {vr(O+4*w+2*h, 2)}, v{rRd} offset0:{12*w+2*h} offset1:{12*w+2*h+1}")
    if rspec: by_part(lambda p: r_loads(p, lf1))
    A("s_waitcnt lgkmcnt(8)")
    for k in (1, 2):
        A(f"v_add_f32 v{St+k}, v{St+k}, v{St+4+k}"); A(f"v_add_f32 v{St+8+k}, v{St+8+k}, v{St+12+k}")
    for k in (1, 2): A(f"v_add_f32 v{St+k}, v{St+k}, v{St+8+k}")
    A(f"v_mov_b32 v{St+3}, v{rTag}")
    A("s_waitcnt lgkmcnt(4)")
    for c in range(4): A(f"v_add_f32 v{O+c}, v{O+c}, v{O+4+c}")
    A("s_waitcnt lgkmcnt(0)")
    for c in range(4): A(f"v_add_f32 v{O+8+c}, v{O+8+c}, v{O+12+c}")
    for c in range(4): A(f"v_add_f32 v{O+c}, v{O+c}, v{O+8+c}")
    for c in range(4): A(f"v_sub_f32 v{O+c}, v{O+c}, v{St+2}")
    A("s_cmp_eq_u32 s2, 255")
    A("s_cbranch_scc1 L_rsolo")
    for c in range(4): A(f"v_perm_b32 v{O+c}, v{O+c}, v{rTag}, s{sSel+c}")
    if nofin: A("s_branch L_fin")
    if tl and 1 in tl: A("s_memrealtime s[94:95]")
    A(f"buffer_store_dwordx4 {vr(O, 4)}, v{rLin}, s[{SRD_L}:{SRD_L+3}], s{sOwn} offen {sf}")
    A("s_mov_b64 exec, 15")
    A(f"buffer_store_dwordx4 {vr(St, 4)}, v{rSta}, s[{SRD_L}:{SRD_L+3}], s{sOwn} offen {sf}")
    A("s_mov_b64 exec, -1")
    def own_image(p):
        for c in range(4):
            A(f"v_mov_b32 v{I[p]+c}, v{O+c}"); A(f"v_mov_b32 v{I[p]+4+c}, v{St+c}")
        if not rspec:
            A("s_waitcnt vmcnt(0)")
            if tl and 2 in tl: A("s_memrealtime s[92:93]")
            r_loads(p)
    by_part(own_image)
    def r_check(wa, wb):
        A(f"s_waitcnt vmcnt({wa})")
        for p in range(3): A(f"v_xor_b32 v{St+4+p}, v{I[p]+7}, v{rTag}")
        A(f"v_or3_b32 v{vT2}, v{St+4}, v{St+5}, v{St+6}")
        A(f"s_waitcnt vmcnt({wb})")
        for p in range(3):
            A(f"v_perm_b32 v{vT3}, v{I[p]+1}, v{I[p]}, s{sSel+4}")
            A(f"v_perm_b32 v{vT4}, v{I[p]+3}, v{I[p]+2}, s{sSel+5}")
            A(f"v_bitop3_b32 v{vT3}, v{vT3}, v{vT4}, v{rTag} bitop3:0x56")
            A(f"v_or_b32 v{vT2}, v{vT2}, v{vT3}")
        A(f"v_cmp_eq_u32 vcc, 0, v{vT2}")
    if rspec:
        r_check(4, 2)
        A("s_nop 4")
        A("s_cmp_eq_u64 vcc, -1")
        A("s_cbranch_scc1 L_rmerge")
        A("s_waitcnt vmcnt(0)")
        by_part(r_loads)
    r_check(2, 0)
    A.label("L_rmerge")
    if tl and 3 in tl: A("s_memrealtime s[94:95]")
    A.c("a lane that sees all three parts complete stores its four outputs")
    A(f"v_max3_f32 v{vT1}, v{I[0]+4}, v{I[1]+4}, v{I[2]+4}")
    for p in range(3): A(f"v_sub_f32 v{I[p]+4}, v{I[p]+4}, v{vT1}")
    for p in range(3): A(f"v_exp_f32 v{I[p]+4}, v{I[p]+4}")
    A("s_and_b64 exec, exec, vcc")
    A("s_cbranch_execz L_fin")
    for p in range(3):
        for c in range(4): A(f"v_and_b32 v{I[p]+c}, s{sSel+6}, v{I[p]+c}")
    A(f"v_mul_f32 v{St+1}, v{I[0]+4}, v{I[0]+5}")
    for p in (1, 2): A(f"v_fmac_f32 v{St+1}, v{I[p]+4}, v{I[p]+5}")
    for c in range(4):
        A(f"v_mul_f32 v{O+c}, v{I[0]+c}, v{I[0]+4}")
        for p in (1, 2): A(f"v_fmac_f32 v{O+c}, v{I[p]+c}, v{I[p]+4}")
    A.label("L_rsolo")
    A(f"v_rcp_f32 v{St+1}, v{St+1}")
    A("s_nop 0")
    for c in range(4): A(f"v_mul_f32 v{O+c}, v{O+c}, v{St+1}")
    for k in range(2): A(f"v_cvt_pk_bf16_f32 v{O+4+k}, v{O+2*k}, v{O+2*k+1}")
    A(f"buffer_store_dwordx2 {vr(O+4, 2)}, v{rOut}, s[{SRD_O}:{SRD_O+3}], s{sOut} offen {of}")
    A("s_branch L_fin")

    A.c("==================== merge of the first-region heads")
    A.label("L_finisher")
    if touch:
        A.c("first touch of every small array up front, so the address translations overlap")
        A("s_waitcnt lgkmcnt(0)")
        A(f"v_and_b32 v{vT3}, 15, v{vLane}"); A(f"v_cmp_eq_u32 vcc, v{vT3}, v{vLane}")
        A("s_mov_b64 exec, 0x8001")
        for n, (ptr, mul, nb) in enumerate(((12, 1536, 256*24576), (10, 1536, 256*24576), (14, 512, 256*8192), (16, 512, 256*8192), (4, 96, 256*1536))):
            srd(SRD_O, ptr, nb)
            A(f"v_mul_u32_u24 v{vT3}, {mul}, v{vGb}")
            A(f"buffer_load_dword v{24+n}, v{vT3}, s[{SRD_O}:{SRD_O+3}], 0 offen nt")
        A("s_mov_b64 exec, -1")
    fOff, fLin, fTag, fM, fL, fT, fSta, fH, fHa = 8, 9, 10, 11, 12, 13, 14, 15, 7
    IMG = 4352
    fSt, fO = 16, 32
    E = [80, 100, 120]
    sN, sTag, sDone, sIb, sH1 = sM, sProg, sLev, sSlot, sPar
    A(f"v_and_b32 v{fSta}, 3, v{vLane}")
    A(f"v_mul_u32_u24 v{fOff}, 384, v{fSta}")
    A(f"v_lshrrev_b32 v{fT}, 2, v{vLane}")
    A(f"v_lshl_add_u32 v{fOff}, v{fT}, 3, v{fOff}")
    A(f"v_lshlrev_b32 v{fLin}, 4, v{vLane}")
    A(f"v_lshlrev_b32 v{fSta}, 4, v{fSta}")
    A(f"s_memrealtime s[{sNow}:{sNow+1}]")
    A("s_waitcnt lgkmcnt(0)")
    srd(SRD_O, 18, 256*1536); srd(SRD_D, 20, 256); srd(SRD_L, 22, WS_E + 340*IMG)
    def claim_tag(wait=True):
        A(f"s_or_b32 s{sTag}, s{sNow}, 1")
        A(f"v_mov_b32 v{fSt}, s{sTag}"); A(f"v_mov_b32 v{fSt+1}, 0")
        A("s_mov_b64 exec, 1")
        A(f"buffer_atomic_cmpswap {vr(fSt, 2)}, v{fLin}, s[{SRD_D}:{SRD_D+3}], 0 offen {'sc0 ' if wait else ''}sc1")
        A("s_mov_b64 exec, -1")
        if not wait: return
        A("s_waitcnt vmcnt(0)")
        A(f"v_readfirstlane_b32 s{sT0}, v{fSt}")
        A("s_nop 3")
        A(f"s_cmp_eq_u32 s{sT0}, 0")
        A(f"s_cselect_b32 s{sTag}, s{sTag}, s{sT0}")
    A.label("L_fk")
    A(f"s_waitcnt vmcnt({min(63, 96//nstage - 6)})")
    uid = [0]
    def barriers(n):
        uid[0] += 1
        A(f"s_movk_i32 s{sN}, {n}")
        A.label(f"L_fb{uid[0]}")
        A("s_barrier")
        A(f"s_sub_u32 s{sN}, s{sN}, 1")
        A(f"s_cmp_lg_u32 s{sN}, 0")
        A(f"s_cbranch_scc1 L_fb{uid[0]}")
    barriers(4)
    A("s_waitcnt vmcnt(0)")
    A("s_cmp_eq_u32 s2, 0")
    A("s_cbranch_scc0 L_fk2")
    claim_tag(False)
    A.label("L_fk2")
    barriers(124)
    A(f"s_load_dword s{sTag}, s[20:21], 0")
    A("s_barrier")
    A("s_waitcnt lgkmcnt(0)")
    A(f"s_cmp_eq_u32 s{sTag}, 0")
    A("s_cbranch_scc0 L_ftag")
    claim_tag()
    A.label("L_ftag")
    A(f"v_mov_b32 v{fTag}, s{sTag}")
    A(f"v_mov_b32 v{fT}, {L_TAG}")
    A(f"ds_write_b32 v{fT}, v{fTag}")
    A.c("image numbers of region-1 head h: 2h (owner), 2h+1 (helper)")
    A(f"s_lshr_b32 s{sH1}, s{sP}, 1"); A(f"s_lshl_b32 s{sT0}, s{sJ}, 1"); A(f"s_add_u32 s{sH1}, s{sH1}, s{sT0}")
    A(f"s_mul_i32 s{sIb}, s{sH1}, {2*IMG}"); A(f"s_add_u32 s{sIb}, s{sIb}, {WS_E}")
    A("s_waitcnt lgkmcnt(0)")
    def combine(I):
        A(f"v_add_u32 v{fT}, {L_STAT}, v{fSta}")
        A(f"v_lshlrev_b32 v{fM}, 2, v{vLane}"); A(f"v_add_u32 v{fM}, {L_SLOT}, v{fM}")
        for w in range(4): A(f"ds_read_b128 {vr(fSt+4*w, 4)}, v{fT} offset:{w*64}")
        for k in range(24):
            if k in (8, 16): A("s_waitcnt lgkmcnt(4)")
            A(f"ds_read2st64_b32 {vr(fO+2*k, 2)}, v{fM} offset0:{2*k} offset1:{2*k+1}")
        for k in range(5): A(f"v_mov_b32 v{I+4*k+3}, v{fTag}")
        A(f"v_mov_b32 v{I+16}, v{fSt}")
        for k in (1, 2):
            A(f"v_add_f32 v{fSt+k}, v{fSt+k}, v{fSt+4+k}"); A(f"v_add_f32 v{fSt+8+k}, v{fSt+8+k}, v{fSt+12+k}")
            A(f"v_add_f32 v{I+16+k}, v{fSt+k}, v{fSt+8+k}")
        A("s_waitcnt lgkmcnt(0)")
        for k in range(12):
            A(f"v_add_f32 v{fO+k}, v{fO+k}, v{fO+12+k}"); A(f"v_add_f32 v{fO+24+k}, v{fO+24+k}, v{fO+36+k}")
            A(f"v_add_f32 v{fO+k}, v{fO+k}, v{fO+24+k}")
            A(f"v_sub_f32 v{I + (k//3)*4 + k % 3}, v{fO+k}, v{I+18}")
    def load(I, sb, off):
        A(f"s_add_u32 s{sT0}, s{sb}, {off}"); A(f"s_add_u32 s{sT1}, s{sb}, {off + 4096}")
        A(f"buffer_load_dwordx4 {vr(I+16, 4)}, v{fSta}, s[{SRD_L}:{SRD_L+3}], s{sT1} offen {lfe}")
        for k in range(nst):
            A(f"buffer_load_dwordx4 {vr(I+4*k, 4)}, v{fLin}, s[{SRD_L}:{SRD_L+3}], s{sT0} offen offset:{k*1024} {lfe}")
    def publish(I, sb, off):
        A(f"s_add_u32 s{sT0}, s{sb}, {off}"); A(f"s_add_u32 s{sT1}, s{sb}, {off + 4096}")
        for k in range(nst):
            A(f"buffer_store_dwordx4 {vr(I+4*k, 4)}, v{fLin}, s[{SRD_L}:{SRD_L+3}], s{sT0} offen offset:{k*1024} {sfe}")
        A("s_mov_b64 exec, 15")
        A(f"buffer_store_dwordx4 {vr(I+16, 4)}, v{fSta}, s[{SRD_L}:{SRD_L+3}], s{sT1} offen {sfe}")
        A("s_mov_b64 exec, -1")
    def check(imgs):
        g = [I+4*k+3 for I in imgs for k in list(range(nst)) + [4]]
        A(f"v_xor_b32 v{fT}, v{fTag}, v{g[0]}")
        for r in g[1:]:
            A(f"v_xor_b32 v{fM}, v{fTag}, v{r}")
            A(f"v_or_b32 v{fT}, v{fT}, v{fM}")
        A(f"v_cmp_ne_u32 vcc, 0, v{fT}")
        A("s_nop 4")
        A("s_cmp_eq_u64 vcc, 0")
    def merge(imgs, shead, add):
        n = len(imgs)
        F = fSt
        if n == 3: A(f"v_max3_f32 v{fM}, v{imgs[0]+16}, v{imgs[1]+16}, v{imgs[2]+16}")
        else:      A(f"v_max_f32 v{fM}, v{imgs[0]+16}, v{imgs[-1]+16}")
        for p in range(n): A(f"v_sub_f32 v{F+p}, v{imgs[p]+16}, v{fM}")
        for p in range(n): A(f"v_exp_f32 v{F+p}, v{F+p}")
        A("s_nop 0")
        A(f"v_mul_f32 v{fL}, v{F}, v{imgs[0]+17}")
        for p in range(1, n): A(f"v_fmac_f32 v{fL}, v{F+p}, v{imgs[p]+17}")
        A(f"v_rcp_f32 v{fL}, v{fL}")
        A(f"s_add_u32 s{sT0}, s{shead}, {add}")
        A(f"s_mul_i32 s{sT0}, s{sT0}, 1536")
        for p in range(n): A(f"v_mul_f32 v{F+p}, v{F+p}, v{fL}")
        for k in range(12):
            o = (k//3)*4 + k % 3
            A(f"v_mul_f32 v{fO+k}, v{imgs[0]+o}, v{F}")
            for p in range(1, n): A(f"v_fmac_f32 v{fO+k}, v{imgs[p]+o}, v{F+p}")
        for k in range(6): A(f"v_cvt_pk_bf16_f32 v{fO+12+k}, v{fO+2*k}, v{fO+2*k+1}")
        for j in range(3):
            A(f"buffer_store_dwordx2 {vr(fO+12+2*j, 2)}, v{fOff}, s[{SRD_O}:{SRD_O+3}], s{sT0} offen offset:{j*128} {of}")
    A("s_cmp_eq_u32 s2, 255")
    A("s_cbranch_scc1 L_fin")
    A(f"s_cmp_eq_u32 s{sP}, 1")
    A("s_cbranch_scc1 L_fmid")

    A.c("outer workgroup: owns a region-1 head")
    barriers(89)
    combine(E[0])
    barriers(39 - eld)
    if nofin: A("s_branch L_fin")
    if not retry:
        load(E[1], sIb, IMG)
        for k in range(eld + 1): A("s_barrier")
        A("s_waitcnt vmcnt(0)")
        check([E[1]])
        A("s_cbranch_scc1 L_fo7")
    else:
        A("s_barrier")
        A(f"s_mov_b32 s{sN}, {retry}")
        A.label("L_fo5")
        load(E[1], sIb, IMG)
        A("s_waitcnt vmcnt(0)")
        check([E[1]])
        A("s_cbranch_scc1 L_fo7")
        A(f"s_sub_u32 s{sN}, s{sN}, 1")
        A(f"s_cmp_lg_u32 s{sN}, 0")
        A("s_cbranch_scc1 L_fo5")
    publish(E[0], sIb, 0)
    A("s_waitcnt vmcnt(0)")
    load(E[1], sIb, IMG)
    A("s_waitcnt vmcnt(0)")
    check([E[1]])
    A("s_cbranch_scc0 L_fin")
    A.label("L_fo7")
    merge(E[:2], sH1, 0)
    A("s_branch L_fin")

    A.label("L_fmid")
    A.c("middle workgroup: helps with two region-1 heads")
    A(f"v_and_b32 v{fHa}, 1, v{vLane}")
    A(f"v_mul_u32_u24 v{fHa}, {2*IMG}, v{fHa}")
    A(f"v_add_u32 v{fHa}, {4096 + 12}, v{fHa}")
    barriers(41)
    combine(E[0])
    barriers(40)
    combine(E[1])
    barriers(47 - early)
    if nofin: A("s_branch L_fin")
    publish(E[0], sIb, IMG)
    publish(E[1], sIb, 3*IMG)
    for k in range(early + 1): A("s_barrier")
    A("s_waitcnt vmcnt(0)")
    A(f"buffer_load_dword v{fH}, v{fHa}, s[{SRD_L}:{SRD_L+3}], s{sIb} offen sc1")
    A("s_waitcnt vmcnt(0)")
    A.c("an owner that missed its helper image has published its own: finish that head here")
    A(f"v_cmp_eq_u32 vcc, v{fH}, v{fTag}")
    A("s_nop 4")
    A(f"s_and_b32 s{sDone}, vcc_lo, 3")
    A("s_cbranch_scc0 L_fin")
    for h in range(2):
        A(f"s_bitcmp1_b32 s{sDone}, {h}")
        A(f"s_cbranch_scc0 L_fm3{h}")
        A("s_waitcnt vmcnt(0)")
        load(E[2], sIb, 2*h*IMG)
        A("s_waitcnt vmcnt(0)")
        check([E[2]])
        A(f"s_cbranch_scc0 L_fm3{h}")
        merge([E[2], E[h]], sH1, h)
        A.label(f"L_fm3{h}")
    A.label("L_fin")
    if stamp:
        A("s_mov_b64 exec, -1")
        stamp_out(None)
    A.label("L_end")
    A("s_endpgm")
    if order:
        rows = [[int(x) for x in l.split()] for l in open(order)]
        A(".p2align 8")
        A(".type block_order,@object")
        A.label("block_order")
        for x in range(8):
            for w in range(x, 256, 8):
                A(".quad %#018x" % sum(v << (4*k) for k, v in enumerate(rows[w])))
        A(".size block_order, 2048")

    kn = name + "_kernel"
    hdr = open(f"/code/{NAME}.s.ref").read().split("; Override launch")[0]
    nv = (NV + 7)//8*8
    s = hdr + f"""; @launch grid=(256,1,1) block=(448,1,1) lds={LDS}
{DOC}.amdgcn_target "amdgcn-amd-amdhsa--gfx950"
.text
.globl {kn}
.p2align 8
.type {kn},@function
{kn}:
{A.text()}
.section .rodata,"a"
.p2align 6
.amdhsa_kernel {kn}
  .amdhsa_next_free_vgpr {nv}
  .amdhsa_next_free_sgpr 102
  .amdhsa_accum_offset {nv}
  .amdhsa_group_segment_fixed_size 0
  .amdhsa_kernarg_size 80
  .amdhsa_user_sgpr_count 2
  .amdhsa_user_sgpr_kernarg_segment_ptr 1
  .amdhsa_system_sgpr_workgroup_id_x 1
  .amdhsa_float_denorm_mode_32 3
.end_amdhsa_kernel
"""
    return s, kn, f"{kn}:256:448:{LDS}"

if __name__ == "__main__":
    kw = {}
    out = f"/code/{NAME}.s"
    for a in sys.argv[1:]:
        k, v = a.split("=")
        if k == "out": out = v
        else: kw[k] = eval(v)
    s, kn, spec = gen(**kw)
    open(out, "w").write(s)
    print(out, spec)
```

```python
import sys
from gen_kernel import Asm, VAlloc, vr, NAME, LOG2E, SCALE

DOC = """;
;             about 32 KiB apart, which requests both halves of a DRAM row close together.
"""

def gen(thr0=18.8, lo=16, gain=5, per=4, late=200, lead=0, lead0=48, boost=0, boost0=63, gain2=32,  skip=4, gcap=16, clk=0, tl=None, of='', diag=False, seg=None, kap=0.4, tlb=0, blast=True, seq='AAB|ABB', mirror=False, lf1='sc1', lf2='sc1', lfe='sc1 nt', eld=0, lad2=3, al=None, rho=0, tnom=323, rmax=1.5, sf='sc1', sfe='sc1 nt', mtab=False, xm=None, nstage=1, touch=False, skipd=0, xmap=(145, 38, 68), rev2=True, phase=None, swap2=True, order=None, rot2=None, rot1=None, swb=0, f0=23.3, retry=0, rspec=True, sep=False, hi=25, top=22, hstep=1, align=0, ff=1.0, g2at=29/32, pk=False,
        stamp=False, nocomp=False, prio=3, early=2, first=1, spec=True, nofin=False, nst=4, qf='nt', slow=None,
        warm=8, name=NAME):
    KV_BYTES = 256*4096*768
    L_RING, L_PAR = 0, 73728
    L_VSZ = L_PAR + 17*3072
    L_STAT = L_VSZ + 16384
    L_SLOT = L_STAT + 256
    L_THR = L_SLOT + 4*3072
    L_TAG, L_MAX = L_THR + 4, L_THR + 64
    L_Q = L_MAX + 192
    LDS = L_Q + 4*1536
    RIMG, WS_E = 3328, 1 << 20
    WS_STAMP, WS_FB = 8 << 20, 16 << 20
    RSTR = 4096*17 if sep else 4
    FB_END = WS_FB + 8*RSTR + (256//per + 1)*256
    TAGW = 5000
    A = Asm()
    va = VAlloc(1)
    vLane = va(); vW = va(); vT1 = va(); vT2 = va(); vT3 = va(); vT4 = va()
    vPa = va(4); vLogA = va(); vRing = va(); vRd = va()
    vM = va(); vLa = va(); vLb = va()
    vPar = va(16); vPad = va(2)
    vX = va(24, 4)
    vZ = va(24, 4); vS = va(24, 4)
    vB = vZ
    vRaw = va(24, 4)
    vKb = va(12, 4); vD = va(8, 4); vGb = va(); vQA = va(); vMaxA = va(); vSlotA = va(); vStatA = va(); vMx = va(4, 4)
    vAcc = va(48, 4)
    vQ = vAcc
    vP = vAcc + 24
    vSum = va(); vCor = va(); vLg = va(); vSZ = va(4); vE = va(6)
    NV = va.n
    assert NV <= 256, NV
    sW, sBase, sT0, sT1, sT2, sBlk, sSlot, sPar = 56, 57, 58, 59, 60, 61, 62, 63
    sLog2e, sScale, sHi, s768 = 64, 65, 66, 67
    sC, sM, sLev, sProg, sRot, sHead, sInt, sLevSum = 68, 69, 70, 71, 72, 73, 74, 75
    sNow, sFbP, sRef = 96, 98, 84
    sC1, sC2, sLead, sJ, sP, sRnd = 3, 73, 72, 100, 101, 74
    WS_PART = 0
    SRD_L, SRD_KS, SRD_KZ, SRD_VS, SRD_VZ, SRD_Q, SRD_O, SRD_D = 24, 28, 32, 36, 40, 44, 48, 52
    def srd(d, p, nbytes):
        A(f"s_mov_b32 s{d}, s{p}"); A(f"s_and_b32 s{d+1}, s{p+1}, 0xffff")
        A(f"s_mov_b32 s{d+2}, {nbytes}"); A(f"s_mov_b32 s{d+3}, 0x20000")
    def tok_of(dst, n, isb, t, u):
        A(f"v_cmp_le_u32 vcc, 43, v{n}")
        A(f"v_add_u32 v{t}, 43, v{n}")
        A(f"v_mov_b32 v{u}, 42")
        A(f"v_cndmask_b32 v{dst}, v{n}, v{t}, vcc")
        A(f"v_cmp_le_u32 vcc, 86, v{n}")
        A(f"v_add_u32 v{t}, 43, v{dst}")
        A("s_nop 0")
        A(f"v_cndmask_b32 v{dst}, v{dst}, v{t}, vcc")
        A(f"v_cndmask_b32 v{u}, 43, v{u}, vcc")
        A(f"v_mad_u32_u24 v{dst}, v{u}, v{isb}, v{dst}")
    def stamp_out(idx_expr):
        A("s_waitcnt vmcnt(0)")
        A("s_memrealtime s[82:83]")
        A.label("L_fin2")
        A("s_getreg_b32 s84, hwreg(HW_REG_XCC_ID)")
        A("s_getreg_b32 s85, hwreg(HW_REG_HW_ID)")
        A("s_and_b32 s85, s85, 0xffff")
        A(f"s_or_b32 s85, s85, s{sLevSum}")
        A("s_waitcnt lgkmcnt(0)")
        srd(76, 22, WS_STAMP + 1792*32)
        for k, sr in enumerate((80, 81, 82, 83, 84, 85, 92, 94)): A(f"v_mov_b32 v{vX+k}, s{sr}")
        A("s_mul_i32 s85, s2, 7"); A(f"s_add_u32 s85, s85, s{sW}"); A("s_lshl_b32 s85, s85, 5")
        A(f"s_add_u32 s85, s85, {WS_STAMP}")
        A(f"v_mov_b32 v{vT3}, 0")
        A("s_mov_b64 exec, 1")
        A(f"buffer_store_dwordx4 {vr(vX, 4)}, v{vT3}, s[76:79], s85 offen")
        A(f"buffer_store_dwordx4 {vr(vX+4, 4)}, v{vT3}, s[76:79], s85 offen offset:16")

    A("s_load_dwordx16 s[4:19], s[0:1], 0")
    A("s_load_dwordx4 s[20:23], s[0:1], 64")
    A("s_cmp_ge_u32 s2, 256")
    A("s_cbranch_scc1 L_end")
    if stamp:
        A("s_memrealtime s[80:81]")
        A(f"s_mov_b32 s{sLevSum}, 0"); A("s_mov_b32 s92, 0"); A("s_mov_b32 s94, 0")
    if slow:
        A(f"s_mul_i32 s{sT0}, s2, {slow[0]}"); A(f"s_bfe_u32 s{sT0}, s{sT0}, {4 | (2 << 16)}")
        A(f"s_mul_i32 s{sT0}, s{sT0}, {slow[1]}")
        A.label("L_slow")
        A("s_sleep 32")
        A(f"s_sub_i32 s{sT0}, s{sT0}, 1")
        A(f"s_cmp_gt_i32 s{sT0}, 0")
        A("s_cbranch_scc1 L_slow")
    A(f"v_lshrrev_b32 v{vW}, 6, v0")
    A(f"v_and_b32 v{vLane}, 63, v0")
    A(f"v_readfirstlane_b32 s{sW}, v{vW}")
    sPhys = 72
    lBase, lOdd, lIsB, lAddr, lThr, lThrA, lTa = 8, 11, 14, 17, 20, 21, 22
    A.c("work item m = GF(2)-linear image of the workgroup id, chosen so dies and DRAM banks line up well (speed only)")
    A(f"s_mov_b32 s{sPhys}, s2")
    A(f"s_bfe_u32 s{sT0}, s2, {4 | (3 << 16)}"); A(f"s_lshr_b32 s{sT1}, s2, 1"); A(f"s_and_b32 s{sT1}, s{sT1}, 2")
    A(f"s_xor_b32 s2, s2, s{sT0}"); A(f"s_xor_b32 s2, s2, s{sT1}")
    A(f"s_bfe_u32 s{sT0}, s2, {1 | (1 << 16)}"); A(f"s_xor_b32 s2, s2, s{sT0}")
    if mtab:
        A("s_waitcnt lgkmcnt(0)")
        A(f"s_lshl_b32 s{sT0}, s{sPhys}, 2"); A(f"s_add_u32 s{sT0}, s{sT0}, {10 << 20}")
        A(f"s_load_dword s2, s[22:23], s{sT0}")
        A("s_waitcnt lgkmcnt(0)")
        A("s_and_b32 s2, s2, 255")
    if xm:
        par = lambda x: bin(x).count("1") & 1
        cls = lambda m: sum(par(m & f) << k for k, f in enumerate(xm))
        cols = [min(m for m in range(256) if cls(m) == 1 << k) for k in range(3)]
        sp = {0}
        for m in range(1, 256):
            if cls(m) == 0 and m not in sp:
                cols.append(m); sp |= {x ^ m for x in sp}
        A("s_mov_b32 s2, 0")
        for k, c in enumerate(cols):
            A(f"s_bitcmp1_b32 s{sPhys}, {k}")
            A(f"s_cselect_b32 s{sT0}, {c}, 0")
            A(f"s_xor_b32 s2, s2, s{sT0}")
    A.c("first block (32m + 1) / 3; wave w starts half-step w of it")
    A(f"s_mul_i32 s{sBase}, s2, {32*43691}"); A(f"s_add_u32 s{sBase}, s{sBase}, 43691"); A(f"s_lshr_b32 s{sBase}, s{sBase}, 17")
    A.c("a step is four rows of stream A then four rows of stream B (6 KiB), moved 1 KiB per instruction")
    A(f"v_lshlrev_b32 v{lBase}, 4, v{vLane}")
    if blast:
        A(f"s_and_b32 s{sT1}, s{sW}, 1"); A(f"s_mul_i32 s{sT1}, s{sT1}, {41*768}")
        A(f"s_lshl_b32 s{sT0}, s{sBase}, 7"); A(f"s_add_u32 s{sT0}, s{sT0}, s{sW}"); A(f"s_mul_i32 s{sT0}, s{sT0}, 1536")
        A(f"s_add_u32 s{sT0}, s{sT0}, s{sT1}")
        A(f"s_mul_i32 m0, s{sW}, 3072")
        A(f"s_mov_b32 s{SRD_L+2}, {KV_BYTES}"); A(f"s_mov_b32 s{SRD_L+3}, 0x20000")
        A("s_waitcnt lgkmcnt(0)")
        if stamp: A("s_memrealtime s[92:93]")
        A(f"s_mov_b32 s{SRD_L}, s6"); A(f"s_and_b32 s{SRD_L+1}, s7, 0xffff")
        for k in range(3):
            A(f"buffer_load_dwordx4 v{lBase}, s[{SRD_L}:{SRD_L+3}], s{sT0} offen offset:{1024*k} nt lds")
    A.c("lane k < 16: vGb = global 256-token block visited at sequence position k")
    A(f"s_mul_i32 s{sJ}, s2, 43691"); A(f"s_lshr_b32 s{sJ}, s{sJ}, 17")
    A(f"s_mul_i32 s{sP}, s{sJ}, 3"); A(f"s_sub_u32 s{sP}, s2, s{sP}")
    A(f"s_cmp_eq_u32 s2, 255"); A(f"s_cselect_b32 s{sC2}, 16, 11")
    A(f"s_cmp_eq_u32 s{sP}, 1"); A(f"s_cselect_b32 s{sC1}, 5, s{sC2}"); A(f"s_cselect_b32 s{sC2}, 10, s{sC2}")
    A(f"s_sub_u32 s{sT0}, 2, s{sP}"); A(f"s_mul_i32 s{sT0}, s{sT0}, 11"); A(f"s_lshr_b32 s{sT0}, s{sT0}, 1")
    A(f"s_lshl_b32 s{sT1}, s{sJ}, 4"); A(f"s_sub_u32 s{sT0}, s{sT0}, s{sT1}")
    A(f"s_add_u32 s{sT0}, s{sT0}, {255*16}"); A(f"s_sub_u32 s{sT0}, s{sT0}, s{sC2}")
    A(f"v_cmp_le_u32 vcc, s{sC2}, v{vLane}")
    A(f"v_add_u32 v{vT1}, s{sBase}, v{vLane}")
    A(f"v_add_u32 v{vT2}, s{sT0}, v{vLane}")
    A(f"v_cndmask_b32 v{vGb}, v{vT1}, v{vT2}, vcc")
    A(f"s_cmp_eq_u32 s{sW}, 4")
    A("s_cbranch_scc1 L_loader")
    A(f"s_cmp_lt_u32 s{sW}, 4")
    A("s_cbranch_scc1 L_consumer")
    if nstage == 1:
        A(f"s_cmp_eq_u32 s{sW}, 6")
        A("s_cbranch_scc1 L_ctl")
    A.c("stage q, kz / ks and vs / vz of all sequence blocks in LDS")
    A("s_waitcnt lgkmcnt(0)")
    srd(SRD_Q, 4, 256*1536)
    srd(SRD_KZ, 12, 256*24576); srd(SRD_KS, 10, 256*24576)
    srd(SRD_VS, 14, 256*8192); srd(SRD_VZ, 16, 256*8192)
    A(f"s_sub_u32 s{sBlk}, s{sW}, 5")
    A(f"s_mov_b32 s{sSlot}, s{sBlk}")
    A("s_mov_b32 exec_hi, 0xffff")
    A.label("L_stq")
    A(f"s_mul_i32 s{sT0}, s{sSlot}, s{sC1}")
    A(f"s_cmp_lt_u32 s{sT0}, 15")
    A("s_cbranch_scc0 L_stage")
    A(f"v_readlane_b32 s{sT0}, v{vGb}, s{sT0}")
    A(f"s_mul_i32 s{sT1}, s{sSlot}, 1536"); A(f"s_add_u32 m0, s{sT1}, {L_Q}")
    A(f"s_add_u32 s{sSlot}, s{sSlot}, {nstage}")
    A(f"s_lshr_b32 s{sT0}, s{sT0}, 4"); A(f"s_mul_i32 s{sT0}, s{sT0}, 1536")
    A(f"buffer_load_dwordx4 v{lBase}, s[{SRD_Q}:{SRD_Q+3}], s{sT0} offen nt lds")
    A(f"buffer_load_dwordx4 v{lBase}, s[{SRD_Q}:{SRD_Q+3}], s{sT0} offen offset:768 nt lds")
    A("s_branch L_stq")
    A.label("L_stage")
    A(f"v_readlane_b32 s{sT2}, v{vGb}, s{sBlk}")
    A(f"s_mul_i32 s{sT1}, s{sBlk}, 3072"); A(f"s_add_u32 m0, s{sT1}, {L_PAR + 3072}")
    A("s_mov_b32 exec_hi, 0xffff")
    A(f"s_mul_i32 s{sT0}, s{sT2}, 1536")
    for a, sr in enumerate((SRD_KZ, SRD_KS)):
        A(f"buffer_load_dwordx4 v{lBase}, s[{sr}:{sr+3}], s{sT0} offen nt lds")
        A(f"buffer_load_dwordx4 v{lBase}, s[{sr}:{sr+3}], s{sT0} offen offset:768 nt lds")
        if a == 0:
            A("s_add_u32 m0, m0, 1536"); A(f"s_lshl_b32 s{sT1}, s{sBlk}, 10")
    A(f"s_add_u32 m0, s{sT1}, {L_VSZ}")
    A("s_mov_b32 exec_hi, 0")
    A(f"s_lshl_b32 s{sT0}, s{sT2}, 9")
    A(f"buffer_load_dwordx4 v{lBase}, s[{SRD_VS}:{SRD_VS+3}], s{sT0} offen nt lds")
    A("s_add_u32 m0, m0, 512")
    A(f"s_add_u32 s{sBlk}, s{sBlk}, {nstage}")
    A(f"buffer_load_dwordx4 v{lBase}, s[{SRD_VZ}:{SRD_VZ+3}], s{sT0} offen nt lds")
    A(f"s_cmp_lt_u32 s{sBlk}, 16")
    A("s_cbranch_scc1 L_stage")
    A("s_mov_b32 exec_hi, -1")
    if nstage == 2:
        A(f"s_cmp_eq_u32 s{sW}, 6")
        A("s_cbranch_scc1 L_ctl")
    A("s_branch L_finisher")
    A.c("==================== loader")
    A.label("L_loader")

    sOff, sAcc, sThr, s1024, sAl, sBe, sJmp = sBase, sInt, sLev, sProg, sM, sSlot, sPar
    his = [(a, min(a+hstep-1, hi)) for a in range(top+1, hi+1, hstep)]
    if prio: A(f"s_setprio {prio}")
    assert blast
    lG2, lG3, lA1, lA2, lB1, lB2 = 11, 12, 13, 14, 15, 16
    sOffB, sMA, sB1, sB2a, sB2b, sMsk = sAl, sBe, sJmp, 86, 87, 84
    A(f"s_mul_i32 s{sOff}, s{sBase}, {256*768}")
    A(f"s_add_u32 s{sOffB}, s{sOff}, {(12 + 43)*768}")
    A(f"s_mov_b32 m0, {L_RING + 7*3072}")
    A(f"s_add_u32 s{sOff}, s{sOff}, {16*768}")
    for k in range(3):
        A(f"buffer_load_dwordx4 v{lBase}, s[{SRD_L}:{SRD_L+3}], s{sOffB} offen offset:{1024*k} nt lds")
    A(f"s_add_u32 s{sOffB}, s{sOffB}, {4*768}")
    A(f"v_lshrrev_b32 v{lG2}, 5, v{vLane}")
    A(f"v_add_u32 v{lTa}, 48, v{vLane}"); A(f"v_lshrrev_b32 v{lG3}, 6, v{lTa}")
    for r in (lA1, lA2, lB1, lB2): A(f"v_mov_b32 v{r}, v{lBase}")
    A(f"s_mov_b32 s{sC}, 4"); A(f"s_mov_b32 s{sMA}, {L_RING + 24576}")
    for r in (sB1, sB2a, sB2b): A(f"s_mov_b32 s{r}, 0")
    A(f"s_mov_b32 s{sThr}, {int(thr0)}"); A(f"s_mov_b32 s{sAcc}, 0")
    A(f"v_mov_b32 v{lThr}, {int(thr0*256)}"); A(f"v_mov_b32 v{lThrA}, {L_THR}")
    A(f"ds_write_b32 v{lThrA}, v{lThr}")
    if not blast:
        A("s_waitcnt lgkmcnt(0)")
        if stamp: A("s_memrealtime s[92:93]")
        srd(SRD_L, 6, KV_BYTES)
    if stamp == 7:
        A("s_waitcnt vmcnt(2)"); A("s_memrealtime s[94:95]")
    A.c("one step per pass; the entry points set the window; the next step's offsets are formed between the loads")
    def chain_loop(a, b, tag):
        def ladder(pre):
            if a == b: return
            for n in range(b, a, -1):
                A(f"s_cmp_eq_u32 s{sThr}, {n}")
                A(f"s_cbranch_scc1 {pre}{n}")
        def waits(pre):
            for n in range(a, b+1):
                A.label(f"{pre}{n}")
                A(f"s_waitcnt vmcnt({n})")
        work = [f"s_add_u32 s{sC}, s{sC}, 1", f"s_and_b32 s{sT0}, s{sC}, 31",
                f"s_add_u32 s{sT2}, s{sB1}, 3072", f"s_add_u32 s{sNA}, s{sT2}, s{sB2a}", f"s_add_u32 s{sNB}, s{sT2}, s{sB2b}",
                (f"s_cmp_eq_u32 s{sT0}, 10", f"s_cselect_b32 s{sB1}, {43*768}, 0"),
                (f"s_cmp_eq_u32 s{sT0}, 21", f"s_cselect_b32 s{sB2a}, {43*768}, 0", f"s_cselect_b32 s{sB2b}, {42*768}, 0"),
                f"v_mad_u32_u24 v{lTa}, v{lG3}, s{sB1}, v{lBase}"]
        after = {"A1": [f"v_mad_u32_u24 v{lA1}, v{lG2}, s{sB2a}, v{lBase}"], "B1": [f"v_mad_u32_u24 v{lB1}, v{lG2}, s{sB2b}, v{lBase}"],
                 "A2": [f"v_add_u32 v{lA2}, s{sB2a}, v{lTa}", f"s_add_u32 s{sOff}, s{sOff}, s{sNA}"],
                 "B2": [f"v_add_u32 v{lB2}, s{sB2b}, v{lTa}", f"s_add_u32 s{sOffB}, s{sOffB}, s{sNB}"]}
        cnt = {"A": 0, "B": 0}; late_ = []; cur = seq[0]; nw = 0
        letters = seq.replace("|", "")
        waits("L_lw")
        pos = 0
        for ch in seq:
            if ch == "|":
                nw += 1
                ladder(f"L_lx{nw}_{tag}_"); waits(f"L_lx{nw}_{tag}_")
                continue
            k = cnt[ch]; cnt[ch] += 1
            va_ = lBase if k == 0 else {"A": (lA1, lA2), "B": (lB1, lB2)}[ch][k-1]
            A(f"buffer_load_dwordx4 v{va_}, s[{SRD_L}:{SRD_L+3}], s{sOff if ch == 'A' else sOffB} offen offset:{1024*k} nt lds")
            pos += 1
            if pos < 6 and letters[pos] != ch:
                A(f"s_add_u32 m0, s{sMA}, {mo(letters[pos])}")
            late_ += after.get(ch + str(k), [])
            n = 0
            while work and n < 4:
                x = work.pop(0)
                for y in ([x] if isinstance(x, str) else x): A(y); n += 1
            if not work:
                for y in late_: A(y); n += 1
                late_ = []
            if n == 0 and pos < 6: A("s_nop 0")
        A(f"s_add_u32 s{sMA}, s{sMA}, 6144")
        A(f"s_add_u32 m0, s{sMA}, {mo(letters[0])}")
        A(f"s_and_b32 s{sT1}, s{sC}, 3")
        if a == b:
            A(f"s_cbranch_scc1 L_lw{a}")
            A("s_branch L_lunit")
            return
        A("s_cbranch_scc0 L_lunit")
        A.label(f"L_lad{tag}")
        ladder("L_lw")
        A(f"s_branch L_lw{a}")
    sNA, sNB, sMX = 88, 89, 90
    mo = lambda ch: (f"s{sMX + (ch == 'B')}" if mirror else (3072 if ch == 'B' else 0))
    A(f"s_mov_b32 s{sT0}, 4")
    A("s_branch L_lnobar")
    if al is not None:
        A(".p2align 6, 0x00")
        if al: A(f".fill {al//4}, 4, 0")
    chain_loop(lo, top, "")
    A.label("L_lunit")
    A.c("unit boundary: release the previous unit, pick up the window size")
    A("s_waitcnt vmcnt(24)")
    A(f"s_cmp_eq_u32 s{sC}, 8")
    A("s_cbranch_scc1 L_lfirst")
    A.label("L_lbar")
    A("s_barrier")
    A.label("L_lnobar")
    A("s_waitcnt lgkmcnt(0)")
    A(f"v_readfirstlane_b32 s{sT1}, v{lThr}")
    A(f"ds_read_b32 v{lThr}, v{lThrA}")
    A(f"s_cmp_eq_u32 s{sMA}, {L_RING + 73728}")
    A(f"s_cselect_b32 s{sMA}, {L_RING}, s{sMA}")
    if mirror:
        A(f"s_cmp_ge_u32 s{sT0}, 24")
        A(f"s_cselect_b32 s{sMX}, 3072, 0"); A(f"s_cselect_b32 s{sMX+1}, 0, 3072")
        A(f"s_cmp_eq_u32 s{sT0}, 24")
        A(f"s_cselect_b32 s{sT2}, s{sOffB}, s{sOff}"); A(f"s_cselect_b32 s{sOffB}, s{sOff}, s{sOffB}"); A(f"s_mov_b32 s{sOff}, s{sT2}")
    A(f"s_add_u32 m0, s{sMA}, {mo(seq[0])}")
    A(f"s_and_b32 s{sAcc}, s{sAcc}, 255")
    A(f"s_add_u32 s{sAcc}, s{sAcc}, s{sT1}")
    A(f"s_lshr_b32 s{sThr}, s{sAcc}, 8")
    A(f"s_cmp_eq_u32 s{sT0}, 0")
    if not his:
        A("s_cbranch_scc0 L_lad")
    else:
        A("s_cbranch_scc1 L_lblock")
        A.label("L_lsel")
        if lad2:
            for n in sorted(range(lo, top+1), key=lambda n: abs(n - thr0 - 0.6))[:lad2]:
                A(f"s_cmp_eq_u32 s{sThr}, {n}")
                A(f"s_cbranch_scc1 L_lw{n}")
        A(f"s_cmp_le_u32 s{sThr}, {top}")
        A("s_cbranch_scc1 L_lad")
        for a, b in his[:-1]:
            A(f"s_cmp_le_u32 s{sThr}, {b}")
            A(f"s_cbranch_scc1 L_l{'w' if a == b else 'ad'}{a}")
        A(f"s_branch L_l{'w' if his[-1][0] == his[-1][1] else 'ad'}{his[-1][0]}")
    back = "L_lsel" if his else "L_lad"
    A.label("L_lblock")
    A(f"s_bfe_u32 s{sT0}, s{sC}, {5 | (4 << 16)}")
    A(f"v_readlane_b32 s{sOff}, v{vGb}, s{sT0}")
    A("s_nop 3")
    A(f"s_mul_i32 s{sOff}, s{sOff}, {256*768}")
    A(f"s_add_u32 s{sOffB}, s{sOff}, {43*768}")
    A(f"s_cmp_eq_u32 s{sT0}, 0")
    A(f"s_cbranch_scc0 {back}")
    A(f"s_cmp_eq_u32 s{sC}, 1024")
    A("s_cbranch_scc1 L_ldone")
    A(f"s_mov_b32 s{SRD_L}, s8"); A(f"s_and_b32 s{SRD_L+1}, s9, 0xffff")
    A(f"s_branch {back}")
    A.label("L_lfirst")
    A("s_barrier")
    A("s_branch L_lbar")
    A.label("L_ldone")
    A("s_waitcnt vmcnt(0)")
    A("s_barrier")
    if stamp:
        A("s_memrealtime s[82:83]"); A("s_barrier"); A("s_branch L_fin2")
    else: A("s_endpgm")
    for a, b in his: chain_loop(a, b, str(a))

    A.c("==================== window control")
    A.label("L_ctl")
    pRep, pVal, pThrA, pLog = 8, 9, 10, 20
    if seg: A("s_memrealtime s[78:79]")
    if warm:
        A.c("a few workgroups pull the code into their L2 ahead of its first use")
        A(f"s_sub_u32 s{sT0}, s{sPhys}, 8")
        A(f"s_cmp_lt_u32 s{sT0}, {warm}")
        A("s_cbranch_scc0 L_ctl_init")
        A(f"s_getpc_b64 s[{SRD_Q}:{SRD_Q+1}]")
        A.label("L_pc")
        A(f"s_and_b32 s{SRD_Q+1}, s{SRD_Q+1}, 0xffff")
        A(f"s_mov_b32 s{SRD_Q+2}, L_end - L_pc"); A(f"s_mov_b32 s{SRD_Q+3}, 0x20000")
        A(f"v_lshlrev_b32 v{pVal}, 7, v{vLane}")
        for k in range(4):
            A(f"s_movk_i32 s{sT0}, {k*8192}")
            A(f"buffer_load_dword v{12+k}, v{pVal}, s[{SRD_Q}:{SRD_Q+3}], s{sT0} offen")
        A.label("L_ctl_init")
    A("s_waitcnt lgkmcnt(0)")
    srd(SRD_D, 22, FB_END)
    A(f"s_mov_b32 s{sProg}, 0")
    A(f"s_add_u32 s{sFbP}, s22, {WS_FB}"); A(f"s_addc_u32 s{sFbP+1}, s23, 0")
    sRepo, sD, sSl, sFf = sBlk, sBase, 92 if not stamp else 76, 94 if not stamp else 78
    A.c("reporters: workgroups 0..7")
    A(f"s_cmp_lt_u32 s{sPhys}, 8"); A(f"s_cselect_b32 s{sRepo}, 1, 0")
    A(f"s_and_b32 s{sT1}, s{sPhys}, 7"); A(f"s_mul_i32 s{sT1}, s{sT1}, {RSTR}"); A(f"s_add_u32 s{sT1}, s{sT1}, {WS_FB}")
    if phase:
        A.c("schedule offset (0, +1, -1 windows by part) that keeps all streams at the same address phase")
        A(f"s_cmp_eq_u32 s{sP}, 2"); A(f"s_cselect_b32 s{sSl}, -1, s{sP}"); A(f"s_mov_b32 s{sD}, 0")
    if align:
        A.c("schedule offsets that make all workgroups leave region 1 together")
        tau = 652*per//8
        sl = [[round(-align*tau/33), round(align*tau/15)], [round(align*tau/15), round(-align*tau/9)]]
        fw = [[round(align*ff*256*20.5*x) for x in (1/32, -1/16)], [round(align*ff*256*20.5*x) for x in (-1/16, 1/8)]]
        for k in range(2):
            for dst, tab in ((sSl, sl), (sFf, fw)):
                A(f"s_mov_b32 s{dst+k}, {tab[0][k]}")
                A(f"s_cmp_eq_u32 s{sP}, 1"); A(f"s_cselect_b32 s{dst+k}, {tab[1][k]}, s{dst+k}")
                A(f"s_cmp_eq_u32 s2, 255"); A(f"s_cselect_b32 s{dst+k}, 0, s{dst+k}")
        A(f"s_mov_b32 s{sD}, 0")
    A(f"v_mov_b32 v{pRep}, s{sT1}"); A(f"v_mov_b32 v{pThrA}, {L_THR}")
    sCy, sCp, sFw, sCorr, sRaw = 28, 30, 31, 32, 33
    A(f"s_memtime s[{sCy}:{sCy+1}]"); A(f"s_memrealtime s[{sNow}:{sNow+1}]")
    A(f"s_mov_b32 s{sCorr}, 0")
    A("s_mov_b64 exec, 1")
    A("s_waitcnt lgkmcnt(0)")
    A(f"s_mov_b32 s{sRaw}, s{sNow}")
    sRt = 36
    if rho: A(f"s_mov_b32 s{sRt}, s{sNow}"); A(f"s_mov_b32 s{sRt+1}, 0"); A(f"s_mov_b32 s{sRt+2}, 0")
    A(f"s_waitcnt vmcnt({0 if nstage == 1 else 42})")
    A("s_barrier")
    if clk:
        A("s_memtime s[76:77]"); A("s_memrealtime s[78:79]"); A("s_waitcnt lgkmcnt(0)")
        A("s_mov_b32 s92, 0"); A(f"s_mov_b32 s{sLev}, {int(thr0*256)}")
    if diag:
        A("s_memtime s[76:77]"); A("s_memrealtime s[78:79]"); A("s_waitcnt lgkmcnt(0)")
        A("s_mov_b32 s92, 0"); A(f"s_mov_b32 s{sLev}, {int(thr0*256)}")
    if stamp:
        A("s_memtime s[92:93]"); A("s_memrealtime s[94:95]"); A("s_waitcnt lgkmcnt(0)")
    sPrev, sOn = sSlot, sPar
    A(f"s_mov_b32 s{sOn}, 0")
    A.label("L_ctl_loop")
    for u in range(per):
        A("s_barrier")
        if stamp == 6:
            A("s_memrealtime s[34:35]"); A("s_waitcnt lgkmcnt(0)")
            A(f"s_lshr_b32 s35, s{sProg}, 6"); A(f"s_add_u32 s35, s35, {u}"); A("s_min_u32 m0, s35, 63")
            A("s_sub_u32 s34, s34, s80")
            A(f"v_writelane_b32 v{pLog}, s34, m0")
        if u == 0:
            A(f"s_mov_b32 s{sPrev}, s{sNow}")
            if kap:
                A(f"s_mov_b32 s{sCp}, s{sCy}")
                A(f"s_memtime s[{sCy}:{sCy+1}]")
            A(f"s_memrealtime s[{sNow}:{sNow+1}]")
            A("s_waitcnt lgkmcnt(0)")
            if kap:
                A.c("a slower shader clock stretches every round trip: widen the window with the shortfall")
                A(f"s_sub_u32 s{sT0}, s{sNow}, s{sRaw}"); A(f"s_mul_i32 s{sT0}, s{sT0}, {round(f0*16)}")
                A(f"s_mov_b32 s{sRaw}, s{sNow}")
                A(f"s_sub_u32 s{sT1}, s{sCy}, s{sCp}"); A(f"s_lshl_b32 s{sT1}, s{sT1}, 4")
                A(f"s_sub_i32 s{sT0}, s{sT0}, s{sT1}")
                A(f"s_mul_i32 s{sT0}, s{sT0}, {round(kap*256*4096/(16*81.5*per))}")
                A(f"s_ashr_i32 s{sFw}, s{sT0}, 12")
            if seg:
                A(f"s_lshr_b32 m0, s{sProg}, 8")
                A(f"s_sub_u32 s{sT0}, s{sNow}, s78")
                A(f"v_writelane_b32 v{pLog}, s{sT0}, m0")
            if diag:
                A(f"s_lshr_b32 m0, s{sProg}, 8")
                A(f"s_sub_u32 s{sT0}, s{sNow}, s78")
                A(f"v_writelane_b32 v{pLog}, s{sT0}, m0")
                A(f"s_cmp_lt_u32 s{sProg}, {56*256}"); A(f"s_cselect_b32 s93, s{sLev}, 0"); A("s_max_u32 s92, s92, s93")
            if stamp == 5:
                A(f"s_lshr_b32 m0, s{sProg}, {8 + (8//per).bit_length() - 1}")
                A(f"s_sub_u32 s{sT0}, s{sNow}, s80")
                A(f"v_writelane_b32 v{pLog}, s{sT0}, m0")
                A("s_add_u32 m0, m0, 32"); A("s_nop 0")
                A(f"v_writelane_b32 v{pLog}, s{sLev}, m0")
            if lead:
                A(f"s_lshr_b32 s{sT0}, s{sProg}, 8")
                A(f"s_sub_i32 s{sT0}, s{sT0}, {lead0}")
                A(f"s_max_i32 s{sT0}, s{sT0}, 0")
                A(f"s_mul_i32 s{sT0}, s{sT0}, s{sLead}")
                A(f"s_add_u32 s{sNow}, s{sNow}, s{sT0}")
            if align:
                A(f"s_sub_u32 s{sNow}, s{sNow}, s{sD}")
                A(f"s_bfe_u32 s{sT0}, s{sProg}, {(8 + (8//per).bit_length() - 1) | (4 << 16)}")
                A(f"s_cmp_lt_u32 s{sT0}, s{sC2}")
                A(f"s_cselect_b32 s{sT0}, s{sSl}, s{sSl+1}")
                A(f"s_add_i32 s{sD}, s{sD}, s{sT0}")
            if phase:
                tw, nin, nout, pff = phase
                NP = 256//per
                def slope(dst, shift):
                    A(f"s_sub_u32 s{sT1}, s{sProg}, {(1 - shift)*256}")
                    A(f"s_cmp_lt_u32 s{sT1}, {nin*256}"); A(f"s_cselect_b32 s{dst}, {round(tw/nin)}, 0")
                    A(f"s_sub_u32 s{sT1}, s{sProg}, {(NP - 1 - nout - shift)*256}")
                    A(f"s_cmp_lt_u32 s{sT1}, {nout*256}"); A(f"s_cselect_b32 s{dst}, {-round(round(tw/nin)*nin/nout)}, s{dst}")
                    A(f"s_mul_i32 s{dst}, s{dst}, s{sSl}")
                A(f"s_sub_u32 s{sNow}, s{sNow}, s{sD}")
                slope(sT0, 0)
                A(f"s_add_i32 s{sD}, s{sD}, s{sT0}")
                slope(sT0, 1)
                A(f"s_mul_i32 s{sT0}, s{sT0}, {round(pff*20.5*256/(81.5*per))}")
                A(f"s_sub_i32 s{sFw}, s{sFw}, s{sT0}")
            A.c("window from the lead over the reporters in the previous period")
            A(f"s_cmp_eq_u32 s{sOn}, 0")
            A("s_cbranch_scc1 L_ctl_set")
            A(f"s_mov_b32 s{sT0}, 0")
            for k in range(8):
                A(f"s_sub_i32 s{sT1}, s{sRef+k}, s{sPrev}")
                A(f"s_add_i32 s{sT2}, s{sT1}, {TAGW}")
                A(f"s_cmp_lt_u32 s{sT2}, {2*TAGW}")
                A(f"s_cselect_b32 s{sT1}, s{sT1}, {late}")
                A(f"s_add_i32 s{sT0}, s{sT0}, s{sT1}")
            if rho:
                A.c("all workgroups slower than the memory allows in two intervals running: widen every window a little")
                A(f"s_cmp_eq_u32 s{sOn}, {gain}")
                A("s_cbranch_scc0 L_ctl_rate")
                A(f"s_ashr_i32 s{sT1}, s{sT0}, 3"); A(f"s_add_u32 s{sT1}, s{sT1}, s{sPrev}")
                A(f"s_sub_i32 s{sT2}, s{sT1}, s{sRt}"); A(f"s_mov_b32 s{sRt}, s{sT1}")
                A(f"s_sub_i32 s{sT2}, s{sT2}, {tnom*skip}")
                A(f"s_min_i32 s{sT1}, s{sT2}, s{sRt+1}"); A(f"s_mov_b32 s{sRt+1}, s{sT2}")
                A(f"s_max_i32 s{sT1}, s{sT1}, 0"); A(f"s_min_i32 s{sT1}, s{sT1}, 4096")
                A(f"s_mul_i32 s{sT1}, s{sT1}, {round(rho*256*16/(tnom*skip))}"); A(f"s_lshr_b32 s{sT1}, s{sT1}, 4")
                A(f"s_min_i32 s{sRt+2}, s{sT1}, {int(rmax*256)}")
                A.label("L_ctl_rate")
            if gcap:
                A(f"s_min_u32 s{sT1}, s{sOn}, {gcap}")
                A(f"s_cmp_gt_i32 s{sT0}, 0")
                A(f"s_cselect_b32 s{sOn}, s{sT1}, s{sOn}")
            A(f"s_mul_i32 s{sT0}, s{sT0}, s{sOn}")
            A(f"s_ashr_i32 s{sT0}, s{sT0}, 5")
            if kap:
                A(f"s_mov_b32 s{sCorr}, s{sT0}")
                A.label("L_ctl_set")
                A(f"s_sub_i32 s{sT0}, s{sFw}, s{sCorr}")
                A(f"s_add_i32 s{sT0}, s{sT0}, {int(thr0*256)}")
                if rho: A(f"s_add_i32 s{sT0}, s{sT0}, s{sRt+2}")
            else:
                A(f"s_sub_i32 s{sT0}, {int(thr0*256)}, s{sT0}")
            if align:
                A(f"s_add_u32 s{sT1}, s{sProg}, 256")
                A(f"s_min_u32 s{sT1}, s{sT1}, {(256//per - 1)*256}")
                A(f"s_bfe_u32 s{sT1}, s{sT1}, {(8 + (8//per).bit_length() - 1) | (4 << 16)}")
                A(f"s_cmp_lt_u32 s{sT1}, s{sC2}")
                A(f"s_cselect_b32 s{sT1}, s{sFf}, s{sFf+1}")
                A(f"s_add_i32 s{sT0}, s{sT0}, s{sT1}")
            if swb:
                A(f"s_bfe_u32 s{sT1}, s{sProg}, {8 | (5 << 16)}"); A(f"s_add_u32 s{sT1}, s{sT1}, {swb[1]}")
                A(f"s_lshl_b32 s{sT2}, s{sC2}, 1")
                A(f"s_cmp_eq_u32 s{sT1}, s{sT2}"); A(f"s_cselect_b32 s{sT2}, {int(swb[0]*256)}, 0")
                A(f"s_cmp_eq_u32 s{sT1}, 32"); A(f"s_cselect_b32 s{sT2}, {int(swb[0]*256)}, s{sT2}")
                A(f"s_add_i32 s{sT0}, s{sT0}, s{sT2}")
            if boost:
                A(f"s_cmp_ge_u32 s{sProg}, {boost0*256}")
                A(f"s_cselect_b32 s{sT1}, {int(boost*256)}, 0")
                A(f"s_add_i32 s{sT0}, s{sT0}, s{sT1}")
            A(f"s_max_i32 s{sT0}, s{sT0}, {lo*256}")
            A(f"s_min_i32 s{sLev}, s{sT0}, {hi*256}")
            A(f"v_mov_b32 v{pVal}, s{sLev}")
            A(f"ds_write_b32 v{pThrA}, v{pVal}")
            if not kap: A.label("L_ctl_set")
            A.c("gain of this period (0: period not used)")
            A(f"s_and_b32 s{sT0}, s{sProg}, {(skip-1)*256}")
            A(f"s_cselect_b32 s{sOn}, 0, {gain}")
            if gain2:
                A(f"s_cmp_ge_u32 s{sProg}, {int(g2at*256/per)*256}")
                A(f"s_cselect_b32 s{sOn}, {gain2}, s{sOn}")
            A(f"s_cmp_eq_u32 s{sProg}, {(256//per - 1)*256}")
            A(f"s_cselect_b32 s{sOn}, 0, s{sOn}")
            A(f"s_mul_i32 s{sT0}, s{sOn}, s{sRepo}")
            A(f"s_cmp_eq_u32 s{sT0}, 0")
            A("s_cbranch_scc1 L_ctl_norep")
            A(f"v_mov_b32 v{pVal+2}, s{sNow}")
            A(f"buffer_store_dword v{pVal+2}, v{pRep}, s[{SRD_D}:{SRD_D+3}], s{sProg} offen sc1")
            A.label("L_ctl_norep")
        if tlb and u == 1:
            A.c("touch the block after next through the scalar path so its translation is ready")
            A(f"s_lshr_b32 s{sT0}, s{sProg}, 8"); A(f"s_add_u32 s{sT0}, s{sT0}, {tlb}"); A(f"s_lshr_b32 s{sT0}, s{sT0}, 1")
            A(f"s_and_b32 s{sT1}, s{sT0}, 15")
            A(f"v_readlane_b32 s{sT1}, v{vGb}, s{sT1}")
            A(f"s_cmp_lt_u32 s{sT0}, 16")
            A("s_cselect_b32 s34, s6, s8"); A("s_cselect_b32 s35, s7, s9")
            A(f"s_mul_i32 s{sT1}, s{sT1}, {256*768}")
            A(f"s_load_dword s33, s[34:35], s{sT1}")
        if u == per - 1 and nstage == 2: A("s_waitcnt vmcnt(0)")
        if u == per - 1:
            A(f"s_cmp_eq_u32 s{sOn}, 0")
            A("s_cbranch_scc1 L_ctl_nold")
            if sep:
                for k in range(8):
                    A(f"s_add_u32 s{sT0}, s{sProg}, {k*RSTR}")
                    A(f"s_load_dword s{sRef+k}, s[{sFbP}:{sFbP+1}], s{sT0}")
            else:
                A(f"s_load_dwordx8 s[{sRef}:{sRef+7}], s[{sFbP}:{sFbP+1}], s{sProg}")
            A.label("L_ctl_nold")
    if clk == 2:
        A(f"s_cmp_lt_u32 s{sProg}, {56*256}"); A(f"s_cselect_b32 s93, s{sLev}, 0"); A("s_max_u32 s92, s92, s93")
    A(f"s_add_u32 s{sProg}, s{sProg}, 256")
    A(f"s_cmp_lt_u32 s{sProg}, {256//per*256}")
    A("s_cbranch_scc1 L_ctl_loop")
    A("s_waitcnt lgkmcnt(0)")
    if clk:
        A("s_memtime s[80:81]"); A("s_memrealtime s[82:83]"); A("s_waitcnt lgkmcnt(0)")
        A("s_barrier")
        A("s_sub_u32 s80, s80, s76"); A("s_sub_u32 s81, s82, s78")
        A(f"s_mul_i32 s81, s81, {15 if clk > 0 else 25}")
        A("s_sub_i32 s80, s80, s81" if clk > 0 else "s_sub_i32 s80, s81, s80")
        A("s_ashr_i32 s80, s80, 3"); A("s_add_i32 s80, s80, 30000"); A("s_min_u32 s80, s80, 100000")
        if clk == 2:
            A(f"s_sub_u32 s92, s92, {int(thr0*256)}"); A("s_lshr_b32 s92, s92, 6"); A("s_mul_i32 s92, s92, 5000")
            A("s_sub_u32 s80, s82, s78"); A("s_add_u32 s80, s80, s92"); A("s_add_u32 s80, s80, 10000"); A("s_min_u32 s80, s80, 200000")
        if clk == -3:
            A("s_sub_u32 s80, s80, 30000"); A("s_lshr_b32 s80, s80, 12"); A("s_mul_i32 s92, s80, 10000")
            A("s_sub_u32 s80, s82, s78"); A("s_add_u32 s80, s80, s92"); A("s_add_u32 s80, s80, 3000"); A("s_min_u32 s80, s80, 200000")
        A.label("L_hold")
        A("s_sleep 4")
        A("s_memrealtime s[82:83]"); A("s_waitcnt lgkmcnt(0)")
        A("s_sub_u32 s81, s82, s78")
        A("s_cmp_lt_u32 s81, s80")
        A("s_cbranch_scc1 L_hold")
    A("s_mov_b64 exec, -1")
    if seg:
        a_, b_, mult, wsel = seg
        A("s_memrealtime s[82:83]"); A("s_waitcnt lgkmcnt(0)")
        A("s_barrier")
        if wsel is not None:
            A(f"s_cmp_eq_u32 s2, {wsel}"); A("s_cbranch_scc0 L_end")
        if b_ < 64: A(f"v_readlane_b32 s80, v{pLog}, {b_}")
        else: A("s_sub_u32 s80, s82, s78")
        if a_ >= 0: A(f"v_readlane_b32 s81, v{pLog}, {a_}")
        else: A("s_mov_b32 s81, 0")
        A("s_nop 3")
        A("s_sub_u32 s80, s80, s81"); A(f"s_mul_i32 s80, s80, {mult}"); A("s_add_u32 s80, s80, 30000"); A("s_min_u32 s80, s80, 200000")
        A.label("L_hold2")
        A("s_sleep 4")
        A("s_memrealtime s[82:83]"); A("s_waitcnt lgkmcnt(0)")
        A("s_sub_u32 s81, s82, s78")
        A("s_cmp_lt_u32 s81, s80")
        A("s_cbranch_scc1 L_hold2")
    if diag:
        A("s_memtime s[80:81]"); A("s_memrealtime s[82:83]"); A("s_waitcnt lgkmcnt(0)")
        A("s_barrier")
        srd(SRD_D, 20, 256)
        A("s_mov_b64 exec, 1")
        A(f"s_cmp_lt_u32 s92, {int((thr0+1.25)*256)}")
        A("s_cbranch_scc1 L_dg1")
        A("s_lshr_b32 s93, s2, 1"); A("s_lshl_b32 s94, 1, s93"); A("s_lshr_b32 s93, s93, 5"); A("s_lshl_b32 s93, s93, 2")
        A("v_mov_b32 v12, s94"); A("v_mov_b32 v13, s93")
        A(f"buffer_atomic_or v12, v13, s[{SRD_D}:{SRD_D+3}], 0 offen offset:48")
        A.label("L_dg1")
        A("s_cmp_eq_u32 s2, 99")
        A("s_cbranch_scc0 L_dg2")
        A("v_mov_b32 v13, 0")
        for k, ln in enumerate((2, 18, 24, 30, 34, 50, 56, 62)):
            A(f"v_readlane_b32 s93, v{pLog}, {ln}"); A("s_nop 3"); A("v_mov_b32 v12, s93")
            A(f"buffer_store_dword v12, v13, s[{SRD_D}:{SRD_D+3}], 0 offen offset:{4+4*k}")
        A("s_sub_u32 s80, s80, s76"); A("s_sub_u32 s82, s82, s78")
        A("v_mov_b32 v14, s82"); A("v_mov_b32 v15, s80")
        A(f"buffer_store_dwordx2 v[14:15], v13, s[{SRD_D}:{SRD_D+3}], 0 offen offset:36")
        A.label("L_dg2")
    if stamp:
        A("s_memtime s[76:77]"); A("s_memrealtime s[78:79]"); A("s_waitcnt lgkmcnt(0)")
        A("s_sub_u32 s92, s76, s92"); A("s_sub_u32 s94, s78, s94")
    if stamp and not clk: A("s_barrier")
    if stamp in (5, 6):
        srd(76, 22, (9 << 20) + 65536)
        A(f"v_lshlrev_b32 v21, 2, v{vLane}")
        A(f"s_lshl_b32 s{sT0}, s2, 8"); A(f"s_add_u32 s{sT0}, s{sT0}, {9 << 20}")
        A(f"buffer_store_dword v{pLog}, v21, s[76:79], s{sT0} offen")
    if stamp: A("s_branch L_fin")
    else: A("s_endpgm")

    A.c("==================== consumers")
    A.label("L_consumer")
    A.c("q fragments: lane = kg*16 + h'*4 + qi")
    A(f"v_lshrrev_b32 v{vT1}, 2, v{vLane}")
    A(f"v_lshlrev_b32 v{vT1}, 3, v{vT1}")
    A(f"v_and_b32 v{vT2}, 3, v{vLane}")
    A(f"v_mul_u32_u24 v{vT3}, 384, v{vT2}")
    A(f"v_add_u32 v{vQA}, v{vT1}, v{vT3}"); A(f"v_add_u32 v{vQA}, {L_Q}, v{vQA}")
    if stamp == 4: A("s_memrealtime s[92:93]")
    A(f"s_mov_b32 s{sLog2e}, {LOG2E:#x}"); A(f"s_mov_b32 s{sScale}, {SCALE:#x}")
    A(f"s_mov_b32 s{sHi}, 0xffff0000")
    A.c("K param LDS addresses: (tok>>6)*384 + (kg*4+h)*8")
    n0, isb, part = vX, vX+1, vX+2
    A(f"v_bfe_u32 v{n0}, v{vLane}, 2, 1"); A(f"v_lshl_add_u32 v{n0}, v{vW}, 2, v{n0}")
    A(f"v_bfe_u32 v{isb}, v{vLane}, 3, 1")
    A(f"v_lshrrev_b32 v{part}, 4, v{vLane}"); A(f"v_lshl_add_u32 v{part}, v{part}, 2, v{vT2}")
    A(f"v_lshlrev_b32 v{part}, 3, v{part}"); A(f"v_add_u32 v{part}, {L_PAR}, v{part}")
    A(f"s_movk_i32 s{sT0}, 384")
    for i in range(8):
        for e in range(2):
            d = vPar + 2*i + e
            A(f"v_add_u32 v{vT1}, {16*i + 2*e}, v{n0}")
            tok_of(d, vT1, isb, vT3, vT4)
            A(f"v_lshrrev_b32 v{d}, 6, v{d}")
            A(f"v_mad_u32_u24 v{d}, v{d}, s{sT0}, v{part}")
    A.c("P layout: lane = t*16 + b*4 + qi ; n = 64g + 16b + 4w + 2e + (t&1)")
    A(f"v_bfe_u32 v{n0}, v{vLane}, 4, 1"); A(f"v_lshl_add_u32 v{n0}, v{vW}, 2, v{n0}")
    A(f"v_bfe_u32 v{vT1}, v{vLane}, 2, 2"); A(f"v_lshl_add_u32 v{n0}, v{vT1}, 4, v{n0}")
    A(f"v_lshrrev_b32 v{isb}, 5, v{vLane}")
    A(f"s_mov_b32 s{sT0}, {L_VSZ}")
    for g in range(2):
        for e in range(2):
            d = vPa + 2*g + e
            A(f"v_add_u32 v{vT1}, {64*g + 2*e}, v{n0}")
            tok_of(d, vT1, isb, vT3, vT4)
            A(f"v_lshl_add_u32 v{d}, v{d}, 1, s{sT0}")
    A(f"v_lshlrev_b32 v{vLogA}, 2, v{vLane}")
    A(f"v_lshl_add_u32 v{vLogA}, v{vW}, 9, v{vLogA}")
    A(f"v_add_u32 v{vLogA}, {L_PAR}, v{vLogA}")
    def ring_addr(kind):
        if kind == "K":
            A(f"v_bfe_u32 v{vT1}, v{vLane}, 2, 2")
            A(f"v_lshrrev_b32 v{vT2}, 4, v{vLane}"); A(f"v_and_b32 v{vT3}, 3, v{vLane}")
            A(f"v_lshl_add_u32 v{vT2}, v{vT2}, 2, v{vT3}")
        else:
            A(f"v_lshrrev_b32 v{vT1}, 4, v{vLane}"); A(f"v_and_b32 v{vT2}, 15, v{vLane}")
        A(f"v_and_b32 v{vT3}, 2, v{vT1}"); A(f"v_add_u32 v{vT1}, v{vT1}, v{vT3}")
        A(f"v_lshl_add_u32 v{vT1}, v{vW}, 3, v{vT1}")
        A(f"v_mul_u32_u24 v{vT1}, 768, v{vT1}")
        A(f"v_lshl_add_u32 v{vRing}, v{vT2}, 4, v{vT1}")
    ring_addr("K")
    A(f"v_and_b32 v{vT1}, 3, v{vLane}")
    A(f"v_lshl_add_u32 v{vMaxA}, v{vT1}, 2, v{vW}")
    A(f"v_lshlrev_b32 v{vMaxA}, 2, v{vMaxA}"); A(f"v_add_u32 v{vMaxA}, {L_MAX}, v{vMaxA}")
    A(f"v_mov_b32 v{vM}, 0xff800000")
    A(f"s_mov_b32 s{sBlk}, 0"); A(f"s_mov_b32 s{sSlot}, {L_RING}"); A(f"s_movk_i32 s{sPar}, 3072")
    if stamp == 4: A("s_memrealtime s[94:95]")
    A("s_waitcnt vmcnt(0) lgkmcnt(0)")
    if stamp == 3: A("s_memrealtime s[94:95]")
    A("s_barrier")
    if stamp and stamp not in (3, 4): A("s_memrealtime s[92:93]")

    def par_reads(i):
        out = [f"v_add_u32 v{vPad+e}, s{sPar}, v{vPar+2*i+e}" for e in range(2)]
        for e in range(2):
            for j in range(3):
                out.append(f"ds_read_b64 {vr(vRaw+e*12+j*4, 2)}, v{vPad+e} offset:{j*128}")
                out.append(f"ds_read_b64 {vr(vRaw+e*12+j*4+2, 2)}, v{vPad+e} offset:{1536 + j*128}")
        return out
    def par_unpack():
        A("s_waitcnt lgkmcnt(0)")
        for k in range(6):
            for dst, src in ((vZ+4*k, vRaw+4*k), (vS+4*k, vRaw+4*k+2)):
                for h in range(2):
                    A(f"v_lshlrev_b32 v{dst+2*h}, 16, v{src+h}")
                    A(f"v_and_b32 v{dst+2*h+1}, s{sHi}, v{src+h}")
    def fetch_unit(order=range(6), pre=()):
        A(f"v_add_u32 v{vRd}, s{sSlot}, v{vRing}")
        A(f"s_add_u32 s{sSlot}, s{sSlot}, 24576")
        A(f"s_cmp_eq_u32 s{sSlot}, {L_RING + 73728}")
        A(f"s_cselect_b32 s{sSlot}, {L_RING}, s{sSlot}")
        A("s_barrier")
        if nocomp: return
        for x in pre: A(x)
        for k in order:
            A(f"ds_read_b128 {vr(vX+4*k, 4)}, v{vRd} offset:{(k//3)*1536 + (k % 3)*256}")
    def dpp_sum(e, b):
        D = vD + 4*e
        L = vLa if e == 0 else vLb
        t = vT1 + e
        return [f"v_add_f32_dpp v{t}, v{D+(b+1) % 4}, v{D+b} row_ror:12 row_mask:0xf bank_mask:0xf",
                f"v_add_f32_dpp v{t}, v{D+(b+2) % 4}, v{t} row_ror:8 row_mask:0xf bank_mask:0xf",
                f"v_add_f32_dpp v{L}, v{D+(b+3) % 4}, v{t} row_ror:4 row_mask:0xf bank_mask:{1 << b:#x}"]

    def xlane(op, r, t):
        A("s_nop 1")
        A(f"{op}_dpp v{r}, v{r}, v{r} row_ror:4 row_mask:0xf bank_mask:0xf")
        A("s_nop 1")
        A(f"{op}_dpp v{r}, v{r}, v{r} row_ror:8 row_mask:0xf bank_mask:0xf")
        for sw in ("v_permlane16_swap_b32", "v_permlane32_swap_b32"):
            A(f"v_mov_b32 v{t}, v{r}")
            A("s_nop 1")
            A(f"{sw} v{r}, v{t}")
            A(f"{op} v{r}, v{r}, v{t}")
    def q_reads():
        for j in range(3): A(f"ds_read_b64 {vr(vQ+2*j, 2)}, v{vQA} offset:{j*128}")
        A(f"v_add_u32 v{vQA}, 1536, v{vQA}")
    q_reads()
    for x in par_reads(0): A(x)
    par_unpack()
    A.label("L_kblk")
    for i in range(8):
        b = i % 4
        A.c(f"K step {i}")
        fetch_unit()
        if nocomp: continue
        for e in range(2):
            o = e*12
            A(f"s_waitcnt lgkmcnt({3 - 3*e})")
            for k in range(12): A(f"v_cvt_f32_i32 v{vX+o+k}, v{vX+o+k}")
            if pk:
                for k in range(0, 12, 2): A(f"v_pk_add_f32 {vr(vX+o+k, 2)}, {vr(vX+o+k, 2)}, {vr(vZ+o+k, 2)} neg_lo:[0,1] neg_hi:[0,1]")
            else:
                for k in range(12): A(f"v_sub_f32 v{vX+o+k}, v{vX+o+k}, v{vZ+o+k}")
            for k in range(12): A(f"v_cvt_pk_bf16_f32 v{vX+o+k}, 0, v{vX+o+k}")
            if pk:
                for k in range(0, 12, 2): A(f"v_pk_mul_f32 {vr(vX+o+k, 2)}, {vr(vX+o+k, 2)}, {vr(vS+o+k, 2)}")
            else:
                for k in range(12): A(f"v_mul_f32 v{vX+o+k}, v{vX+o+k}, v{vS+o+k}")
            packs = [f"v_cvt_pk_bf16_f32 v{vKb+e*6+k}, v{vX+o+2*k}, v{vX+o+2*k+1}" for k in range(6)]
            if e == 1:
                d = dpp_sum(0, b)
                packs = packs[0:2] + d[0:1] + packs[2:4] + d[1:2] + packs[4:6] + d[2:3]
            for x in packs: A(x)
            D = vr(vD+4*e, 4)
            for j in range(3):
                A(f"v_mfma_f32_16x16x16_bf16 {D}, {vr(vKb+e*6+2*j, 2)}, {vr(vQ+2*j, 2)}, {'0' if j == 0 else D}")
        if i == 7: A(f"s_add_u32 s{sPar}, s{sPar}, 3072")
        pr = par_reads((i+1) % 8)
        d = dpp_sum(1, b)
        for x in pr[:9] + d[0:1] + pr[9:11] + d[1:2] + pr[11:14] + d[2:3]: A(x)
        if b == 3:
            A(f"v_cvt_pk_bf16_f32 v{vT1}, 0, v{vLa}")
            A(f"v_cvt_pk_bf16_f32 v{vT2}, 0, v{vLb}")
            A(f"v_mul_f32 v{vT1}, s{sScale}, v{vT1}")
            A(f"v_mul_f32 v{vT2}, s{sScale}, v{vT2}")
            A(f"v_cvt_pk_bf16_f32 v{vT3}, v{vT1}, v{vT2}")
            A(f"v_max3_f32 v{vM}, v{vM}, v{vT1}, v{vT2}")
            A(f"ds_write_b32 v{vLogA}, v{vT3} offset:{(i//4)*256}")
        par_unpack()
    def round_end_test(loop):
        A(f"s_add_u32 s{sBlk}, s{sBlk}, 1")
        A(f"s_cmp_eq_u32 s{sBlk}, s{sC1}")
        A(f"s_cbranch_scc1 {loop}_end")
        A(f"s_cmp_eq_u32 s{sBlk}, s{sC2}")
        A(f"s_cbranch_scc1 {loop}_end")
        A(f"s_cmp_lt_u32 s{sBlk}, 16")
        A(f"s_cbranch_scc1 {loop}")
        A.label(f"{loop}_end")
    A(f"v_add_u32 v{vLogA}, 3072, v{vLogA}")
    round_end_test("L_kblk")
    A.c("end of a K round: publish the wave's max, fetch the next q")
    xlane("v_max_f32", vM, vT1)
    A(f"v_cvt_pk_bf16_f32 v{vM}, 0, v{vM}")
    A(f"v_mul_f32 v{vM}, s{sLog2e}, v{vM}")
    A(f"ds_write_b32 v{vMaxA}, v{vM}")
    A(f"v_add_u32 v{vMaxA}, 64, v{vMaxA}")
    q_reads()
    A(f"v_mov_b32 v{vM}, 0xff800000")
    A("s_waitcnt lgkmcnt(0)")
    A(f"s_cmp_lt_u32 s{sBlk}, 16")
    A("s_cbranch_scc1 L_kblk")

    if stamp and stamp not in (3, 4): A("s_memrealtime s[94:95]")
    def p_reads(g):
        return [f"v_add_u32 v{vSZ}, s{sPar}, v{vPa+2*g}",
                f"v_add_u32 v{vSZ+1}, s{sPar}, v{vPa+2*g+1}",
                f"ds_read_b32 v{vLg}, v{vLogA} offset:{g*256}",
                f"ds_read_u16 v{vSZ+2}, v{vSZ} offset:512",
                f"ds_read_u16 v{vSZ+3}, v{vSZ+1} offset:512",
                f"ds_read_u16 v{vSZ}, v{vSZ}",
                f"ds_read_u16 v{vSZ+1}, v{vSZ+1}"]
    ring_addr("V")
    A(f"v_subrev_u32 v{vLogA}, {16*3072}, v{vLogA}")
    A(f"s_mov_b32 s{sPar}, 0")
    for x in p_reads(0): A(x)
    for k in range(16): A(f"v_mov_b32 v{vP+k}, 0")
    A(f"s_mov_b32 s{sBlk}, 0")
    A.c("addresses for the end of a round and for the last hand-off (lane = ch*4 + qi, wave = third)")
    rRd, rSt, rLin, rSta, rOut, rTag = range(vPar, vPar+6)
    sLast, sImg, sOwn, sOut, sSel = sRnd, sC, sProg, sBase, 84
    A(f"v_and_b32 v{vT1}, 3, v{vLane}")
    A(f"v_lshlrev_b32 v{rSta}, 4, v{vT1}")
    A(f"v_add_u32 v{vMaxA}, {L_MAX}, v{rSta}")
    A(f"v_add_u32 v{rSt}, {L_STAT}, v{rSta}")
    A(f"v_lshl_add_u32 v{vStatA}, v{vW}, 6, v{rSt}")
    A(f"v_lshl_add_u32 v{rSta}, v{vW}, 6, v{rSta}"); A(f"v_add_u32 v{rSta}, 3072, v{rSta}")
    A(f"v_mul_u32_u24 v{vSlotA}, 3072, v{vW}"); A(f"v_lshl_add_u32 v{vSlotA}, v{vLane}, 4, v{vSlotA}")
    A(f"v_add_u32 v{vSlotA}, {L_SLOT}, v{vSlotA}")
    A(f"v_lshlrev_b32 v{vT2}, 10, v{vW}")
    A(f"v_lshl_add_u32 v{rLin}, v{vLane}, 4, v{vT2}")
    A(f"v_lshl_add_u32 v{rRd}, v{vLane}, 2, v{vT2}"); A(f"v_add_u32 v{rRd}, {L_SLOT}, v{rRd}")
    A(f"v_mul_u32_u24 v{rOut}, 384, v{vT1}"); A(f"v_lshrrev_b32 v{vT2}, 2, v{vLane}")
    A(f"v_lshl_add_u32 v{rOut}, v{vT2}, 3, v{rOut}"); A(f"v_lshl_add_u32 v{rOut}, v{vW}, 7, v{rOut}")
    srd(SRD_O, 18, 256*1536); srd(SRD_L, 22, 255*RIMG)
    A(f"s_mul_i32 s{sImg}, s{sJ}, {3*RIMG}"); A(f"s_mul_i32 s{sOwn}, s2, {RIMG}")
    A(f"s_add_u32 s{sImg+1}, s{sImg}, {RIMG}"); A(f"s_add_u32 s{sImg+2}, s{sImg}, {2*RIMG}")
    if rev2: A(f"s_sub_u32 s{sOut}, 255, s{sJ}")
    else:
        A(f"s_add_u32 s{sOut}, s{sJ}, 171"); A("s_cmp_eq_u32 s2, 255"); A(f"s_cselect_b32 s{sOut}, 170, s{sOut}")
    A(f"s_mul_i32 s{sOut}, s{sOut}, 1536")
    for c in range(4): A(f"s_mov_b32 s{sSel+c}, {0x07060500 | c:#x}")
    A(f"s_mov_b32 s{sSel+4}, 0x0c0c0400"); A(f"s_mov_b32 s{sSel+5}, 0x04000c0c"); A(f"s_mov_b32 s{sSel+6}, 0xffffff00")
    if stamp: A("s_waitcnt lgkmcnt(0)")

    A.label("L_vround")
    for k in range(12): A(f"v_mov_b32 v{vAcc+k}, 0")
    A(f"v_mov_b32 v{vSum}, 0"); A(f"v_mov_b32 v{vCor}, 0")
    A.label("L_vblk")
    A(f"s_add_u32 s{sBlk}, s{sBlk}, 1")
    A(f"s_cmp_eq_u32 s{sBlk}, s{sC1}"); A(f"s_cselect_b32 s{sLast}, 1, 0")
    A(f"s_cmp_eq_u32 s{sBlk}, s{sC2}"); A(f"s_cselect_b32 s{sLast}, 1, s{sLast}")
    A(f"s_cmp_eq_u32 s{sBlk}, 16"); A(f"s_cselect_b32 s{sLast}, 1, s{sLast}")
    for i in range(8):
        b, g = i % 4, i//4
        A.c(f"V step {i}")
        fetch_unit((0, 3, 1, 4, 2, 5), [f"ds_read_b128 {vr(vMx, 4)}, v{vMaxA}"] if i == 0 else ())
        if nocomp: continue
        if i == 0:
            A("s_waitcnt lgkmcnt(6)")
            A(f"v_max_f32 v{vM}, v{vMx}, v{vMx+1}")
            A(f"v_max3_f32 v{vM}, v{vM}, v{vMx+2}, v{vMx+3}")
        if b == 0:
            E = vE
            for x in ["s_waitcnt lgkmcnt(6)",
                      f"v_lshlrev_b32 v{E}, 16, v{vLg}",
                      f"v_and_b32 v{E+1}, s{sHi}, v{vLg}",
                      f"v_fma_f32 v{E}, v{E}, s{sLog2e}, -v{vM}",
                      f"v_fma_f32 v{E+1}, v{E+1}, s{sLog2e}, -v{vM}",
                      f"v_exp_f32 v{E}, v{E}",
                      f"v_exp_f32 v{E+1}, v{E+1}",
                      f"v_lshlrev_b32 v{E+2}, 16, v{vSZ}",
                      f"v_lshlrev_b32 v{E+3}, 16, v{vSZ+1}",
                      f"v_mul_f32 v{E+2}, v{E}, v{E+2}",
                      f"v_mul_f32 v{E+3}, v{E+1}, v{E+3}",
                      f"v_add_f32 v{vSum}, v{vSum}, v{E}",
                      f"v_cvt_pk_bf16_f32 v{E+2}, v{E+2}, v{E+3}",
                      f"v_add_f32 v{vSum}, v{vSum}, v{E+1}",
                      f"v_lshlrev_b32 v{E+4}, 16, v{vSZ+2}",
                      f"v_lshlrev_b32 v{E+5}, 16, v{vSZ+3}",
                      f"v_lshlrev_b32 v{E}, 16, v{E+2}",
                      f"v_and_b32 v{E+1}, s{sHi}, v{E+2}",
                      f"v_fmac_f32 v{vCor}, v{E}, v{E+4}",
                      f"v_fmac_f32 v{vCor}, v{E+1}, v{E+5}"]: A(x)
            for c in range(4):
                for k in range(4):
                    ctl = "quad_perm:[0,1,2,3]" if k == c else f"row_ror:{4*((c - k) % 4)}"
                    A(f"v_mov_b32_dpp v{vP+4*c+k}, v{E+2} {ctl} row_mask:0xf bank_mask:{1 << c:#x}")
        mf = lambda k: f"v_mfma_f32_16x16x32_bf16 {vr(vAcc+4*(k//4), 4)}, {vr(vP+4*(k % 4), 4)}, {vr(vB+4*k, 4)}, {vr(vAcc+4*(k//4), 4)}"
        for j in range(3):
            A(f"s_waitcnt lgkmcnt({4 - 2*j})")
            va_ = [f"v_cvt_f32_i32 v{vX+o+4*j+c}, v{vX+o+4*j+c}" for o in (0, 12) for c in range(4)]
            va_ += [f"v_cvt_pk_bf16_f32 v{vB+(4*j+c)*4+b}, v{vX+4*j+c}, v{vX+12+4*j+c}" for c in range(4)]
            for n, x in enumerate(va_):
                A(x)
                if b == 3 and j and n % 3 == 2: A(mf(4*(j-1) + n//3))
        if b == 3:
            for k in range(8, 12): A(mf(k))
        if b == 0:
            if g == 1:
                A(f"v_add_u32 v{vLogA}, 3072, v{vLogA}")
                A(f"s_add_u32 s{sPar}, s{sPar}, 1024")
            for x in p_reads(1-g): A(x)
        if i == 5:
            A.c("last block of a round: its (m, l, c) are final, park them in LDS")
            A(f"s_cmp_eq_u32 s{sLast}, 0")
            A("s_cbranch_scc1 L_vnostat")
            A(f"v_mov_b32 v{rTag}, {L_TAG}")
            A(f"ds_read_b32 v{rTag}, v{rTag}")
            xlane("v_add_f32", vSum, vT1)
            xlane("v_add_f32", vCor, vT1)
            A(f"v_mov_b32 v{vMx}, v{vM}"); A(f"v_mov_b32 v{vMx+1}, v{vSum}"); A(f"v_mov_b32 v{vMx+2}, v{vCor}")
            A(f"ds_write_b128 v{vStatA}, {vr(vMx, 4)}")
            A(f"v_add_u32 v{vMaxA}, 64, v{vMaxA}")
            A.label("L_vnostat")
    A(f"s_cmp_eq_u32 s{sLast}, 0")
    A("s_cbranch_scc1 L_vblk")

    A.c("end of a V round: lane c*16+ch holds O[query][64*third + 4*ch + c]; park it in LDS")
    A(f"ds_write_b128 v{vSlotA}, {vr(vAcc, 4)}")
    A("s_nop 0")
    A(f"ds_write_b128 v{vSlotA}, {vr(vAcc+4, 4)} offset:1024")
    A(f"s_cmp_lt_u32 s{sBlk}, 16")
    A("s_nop 1")
    A(f"ds_write_b128 v{vSlotA}, {vr(vAcc+8, 4)} offset:2048")
    A("s_waitcnt lgkmcnt(0)")
    A("s_cbranch_scc1 L_vround")
    A("s_barrier")
    if tl and 0 in tl: A("s_memrealtime s[92:93]"); A("s_waitcnt lgkmcnt(0)")

    A(f"s_cmp_eq_u32 s{sW}, 3")
    A("s_cbranch_scc1 L_fin")
    St, O, I = vX, vZ, [vAcc, vAcc+8, vAcc+16]
    rn = [0]
    def by_part(body):
        rn[0] += 1
        for p in range(3):
            if p < 2:
                A(f"s_cmp_eq_u32 s{sP}, {p}")
                A(f"s_cbranch_scc0 L_rp{rn[0]}{p}")
            body(p)
            if p < 2:
                A(f"s_branch L_rp{rn[0]}2")
                A.label(f"L_rp{rn[0]}{p}")
        A.label(f"L_rp{rn[0]}2")
    def r_loads(own, fl=None):
        fl = fl or lf2
        ps = [x for x in range(3) if x != own]
        for p in ps:
            A(f"buffer_load_dwordx4 {vr(I[p]+4, 4)}, v{rSta}, s[{SRD_L}:{SRD_L+3}], s{sImg+p} offen {fl}")
        for p in ps:
            A(f"buffer_load_dwordx4 {vr(I[p], 4)}, v{rLin}, s[{SRD_L}:{SRD_L+3}], s{sImg+p} offen {fl}")
    for w in range(4): A(f"ds_read_b128 {vr(St+4*w, 4)}, v{rSt} offset:{w*64}")
    for w in range(4):
        for h in range(2):
            A(f"ds_read2st64_b32 {vr(O+4*w+2*h, 2)}, v{rRd} offset0:{12*w+2*h} offset1:{12*w+2*h+1}")
    if rspec: by_part(lambda p: r_loads(p, lf1))
    A("s_waitcnt lgkmcnt(8)")
    for k in (1, 2):
        A(f"v_add_f32 v{St+k}, v{St+k}, v{St+4+k}"); A(f"v_add_f32 v{St+8+k}, v{St+8+k}, v{St+12+k}")
    for k in (1, 2): A(f"v_add_f32 v{St+k}, v{St+k}, v{St+8+k}")
    A(f"v_mov_b32 v{St+3}, v{rTag}")
    A("s_waitcnt lgkmcnt(4)")
    for c in range(4): A(f"v_add_f32 v{O+c}, v{O+c}, v{O+4+c}")
    A("s_waitcnt lgkmcnt(0)")
    for c in range(4): A(f"v_add_f32 v{O+8+c}, v{O+8+c}, v{O+12+c}")
    for c in range(4): A(f"v_add_f32 v{O+c}, v{O+c}, v{O+8+c}")
    for c in range(4): A(f"v_sub_f32 v{O+c}, v{O+c}, v{St+2}")
    A("s_cmp_eq_u32 s2, 255")
    A("s_cbranch_scc1 L_rsolo")
    for c in range(4): A(f"v_perm_b32 v{O+c}, v{O+c}, v{rTag}, s{sSel+c}")
    if nofin: A("s_branch L_fin")
    if tl and 1 in tl: A("s_memrealtime s[94:95]")
    A(f"buffer_store_dwordx4 {vr(O, 4)}, v{rLin}, s[{SRD_L}:{SRD_L+3}], s{sOwn} offen {sf}")
    A("s_mov_b64 exec, 15")
    A(f"buffer_store_dwordx4 {vr(St, 4)}, v{rSta}, s[{SRD_L}:{SRD_L+3}], s{sOwn} offen {sf}")
    A("s_mov_b64 exec, -1")
    def own_image(p):
        for c in range(4):
            A(f"v_mov_b32 v{I[p]+c}, v{O+c}"); A(f"v_mov_b32 v{I[p]+4+c}, v{St+c}")
        if not rspec:
            A("s_waitcnt vmcnt(0)")
            if tl and 2 in tl: A("s_memrealtime s[92:93]")
            r_loads(p)
    by_part(own_image)
    def r_check(wa, wb):
        A(f"s_waitcnt vmcnt({wa})")
        for p in range(3): A(f"v_xor_b32 v{St+4+p}, v{I[p]+7}, v{rTag}")
        A(f"v_or3_b32 v{vT2}, v{St+4}, v{St+5}, v{St+6}")
        A(f"s_waitcnt vmcnt({wb})")
        for p in range(3):
            A(f"v_perm_b32 v{vT3}, v{I[p]+1}, v{I[p]}, s{sSel+4}")
            A(f"v_perm_b32 v{vT4}, v{I[p]+3}, v{I[p]+2}, s{sSel+5}")
            A(f"v_bitop3_b32 v{vT3}, v{vT3}, v{vT4}, v{rTag} bitop3:0x56")
            A(f"v_or_b32 v{vT2}, v{vT2}, v{vT3}")
        A(f"v_cmp_eq_u32 vcc, 0, v{vT2}")
    if rspec:
        r_check(4, 2)
        A("s_nop 4")
        A("s_cmp_eq_u64 vcc, -1")
        A("s_cbranch_scc1 L_rmerge")
        A("s_waitcnt vmcnt(0)")
        by_part(r_loads)
    r_check(2, 0)
    A.label("L_rmerge")
    if tl and 3 in tl: A("s_memrealtime s[94:95]")
    A.c("a lane that sees all three parts complete stores its four outputs")
    A(f"v_max3_f32 v{vT1}, v{I[0]+4}, v{I[1]+4}, v{I[2]+4}")
    for p in range(3): A(f"v_sub_f32 v{I[p]+4}, v{I[p]+4}, v{vT1}")
    for p in range(3): A(f"v_exp_f32 v{I[p]+4}, v{I[p]+4}")
    A("s_and_b64 exec, exec, vcc")
    A("s_cbranch_execz L_fin")
    for p in range(3):
        for c in range(4): A(f"v_and_b32 v{I[p]+c}, s{sSel+6}, v{I[p]+c}")
    A(f"v_mul_f32 v{St+1}, v{I[0]+4}, v{I[0]+5}")
    for p in (1, 2): A(f"v_fmac_f32 v{St+1}, v{I[p]+4}, v{I[p]+5}")
    for c in range(4):
        A(f"v_mul_f32 v{O+c}, v{I[0]+c}, v{I[0]+4}")
        for p in (1, 2): A(f"v_fmac_f32 v{O+c}, v{I[p]+c}, v{I[p]+4}")
    A.label("L_rsolo")
    A(f"v_rcp_f32 v{St+1}, v{St+1}")
    A("s_nop 0")
    for c in range(4): A(f"v_mul_f32 v{O+c}, v{O+c}, v{St+1}")
    for k in range(2): A(f"v_cvt_pk_bf16_f32 v{O+4+k}, v{O+2*k}, v{O+2*k+1}")
    A(f"buffer_store_dwordx2 {vr(O+4, 2)}, v{rOut}, s[{SRD_O}:{SRD_O+3}], s{sOut} offen {of}")
    A("s_branch L_fin")

    A.c("==================== merge of the first-region heads")
    A.label("L_finisher")
    if touch:
        A.c("first touch of every small array up front, so the address translations overlap")
        A("s_waitcnt lgkmcnt(0)")
        A(f"v_and_b32 v{vT3}, 15, v{vLane}"); A(f"v_cmp_eq_u32 vcc, v{vT3}, v{vLane}")
        A("s_mov_b64 exec, 0x8001")
        for n, (ptr, mul, nb) in enumerate(((12, 1536, 256*24576), (10, 1536, 256*24576), (14, 512, 256*8192), (16, 512, 256*8192), (4, 96, 256*1536))):
            srd(SRD_O, ptr, nb)
            A(f"v_mul_u32_u24 v{vT3}, {mul}, v{vGb}")
            A(f"buffer_load_dword v{24+n}, v{vT3}, s[{SRD_O}:{SRD_O+3}], 0 offen nt")
        A("s_mov_b64 exec, -1")
    fOff, fLin, fTag, fM, fL, fT, fSta, fH, fHa = 8, 9, 10, 11, 12, 13, 14, 15, 7
    IMG = 4352
    fSt, fO = 16, 32
    E = [80, 100, 120]
    sN, sTag, sDone, sIb, sH1 = sM, sProg, sLev, sSlot, sPar
    A(f"v_and_b32 v{fSta}, 3, v{vLane}")
    A(f"v_mul_u32_u24 v{fOff}, 384, v{fSta}")
    A(f"v_lshrrev_b32 v{fT}, 2, v{vLane}")
    A(f"v_lshl_add_u32 v{fOff}, v{fT}, 3, v{fOff}")
    A(f"v_lshlrev_b32 v{fLin}, 4, v{vLane}")
    A(f"v_lshlrev_b32 v{fSta}, 4, v{fSta}")
    A(f"s_memrealtime s[{sNow}:{sNow+1}]")
    A("s_waitcnt lgkmcnt(0)")
    srd(SRD_O, 18, 256*1536); srd(SRD_D, 20, 256); srd(SRD_L, 22, WS_E + 340*IMG)
    def claim_tag(wait=True):
        A(f"s_or_b32 s{sTag}, s{sNow}, 1")
        A(f"v_mov_b32 v{fSt}, s{sTag}"); A(f"v_mov_b32 v{fSt+1}, 0")
        A("s_mov_b64 exec, 1")
        A(f"buffer_atomic_cmpswap {vr(fSt, 2)}, v{fLin}, s[{SRD_D}:{SRD_D+3}], 0 offen {'sc0 ' if wait else ''}sc1")
        A("s_mov_b64 exec, -1")
        if not wait: return
        A("s_waitcnt vmcnt(0)")
        A(f"v_readfirstlane_b32 s{sT0}, v{fSt}")
        A("s_nop 3")
        A(f"s_cmp_eq_u32 s{sT0}, 0")
        A(f"s_cselect_b32 s{sTag}, s{sTag}, s{sT0}")
    A.label("L_fk")
    A(f"s_waitcnt vmcnt({min(63, 96//nstage - 6)})")
    uid = [0]
    def barriers(n):
        uid[0] += 1
        A(f"s_movk_i32 s{sN}, {n}")
        A.label(f"L_fb{uid[0]}")
        A("s_barrier")
        A(f"s_sub_u32 s{sN}, s{sN}, 1")
        A(f"s_cmp_lg_u32 s{sN}, 0")
        A(f"s_cbranch_scc1 L_fb{uid[0]}")
    barriers(4)
    A("s_waitcnt vmcnt(0)")
    A("s_cmp_eq_u32 s2, 0")
    A("s_cbranch_scc0 L_fk2")
    claim_tag(False)
    A.label("L_fk2")
    barriers(124)
    A(f"s_load_dword s{sTag}, s[20:21], 0")
    A("s_barrier")
    A("s_waitcnt lgkmcnt(0)")
    A(f"s_cmp_eq_u32 s{sTag}, 0")
    A("s_cbranch_scc0 L_ftag")
    claim_tag()
    A.label("L_ftag")
    A(f"v_mov_b32 v{fTag}, s{sTag}")
    A(f"v_mov_b32 v{fT}, {L_TAG}")
    A(f"ds_write_b32 v{fT}, v{fTag}")
    A.c("image numbers of region-1 head h: 2h (owner), 2h+1 (helper)")
    A(f"s_lshr_b32 s{sH1}, s{sP}, 1"); A(f"s_lshl_b32 s{sT0}, s{sJ}, 1"); A(f"s_add_u32 s{sH1}, s{sH1}, s{sT0}")
    A(f"s_mul_i32 s{sIb}, s{sH1}, {2*IMG}"); A(f"s_add_u32 s{sIb}, s{sIb}, {WS_E}")
    A("s_waitcnt lgkmcnt(0)")
    def combine(I):
        A(f"v_add_u32 v{fT}, {L_STAT}, v{fSta}")
        A(f"v_lshlrev_b32 v{fM}, 2, v{vLane}"); A(f"v_add_u32 v{fM}, {L_SLOT}, v{fM}")
        for w in range(4): A(f"ds_read_b128 {vr(fSt+4*w, 4)}, v{fT} offset:{w*64}")
        for k in range(24):
            if k in (8, 16): A("s_waitcnt lgkmcnt(4)")
            A(f"ds_read2st64_b32 {vr(fO+2*k, 2)}, v{fM} offset0:{2*k} offset1:{2*k+1}")
        for k in range(5): A(f"v_mov_b32 v{I+4*k+3}, v{fTag}")
        A(f"v_mov_b32 v{I+16}, v{fSt}")
        for k in (1, 2):
            A(f"v_add_f32 v{fSt+k}, v{fSt+k}, v{fSt+4+k}"); A(f"v_add_f32 v{fSt+8+k}, v{fSt+8+k}, v{fSt+12+k}")
            A(f"v_add_f32 v{I+16+k}, v{fSt+k}, v{fSt+8+k}")
        A("s_waitcnt lgkmcnt(0)")
        for k in range(12):
            A(f"v_add_f32 v{fO+k}, v{fO+k}, v{fO+12+k}"); A(f"v_add_f32 v{fO+24+k}, v{fO+24+k}, v{fO+36+k}")
            A(f"v_add_f32 v{fO+k}, v{fO+k}, v{fO+24+k}")
            A(f"v_sub_f32 v{I + (k//3)*4 + k % 3}, v{fO+k}, v{I+18}")
    def load(I, sb, off):
        A(f"s_add_u32 s{sT0}, s{sb}, {off}"); A(f"s_add_u32 s{sT1}, s{sb}, {off + 4096}")
        A(f"buffer_load_dwordx4 {vr(I+16, 4)}, v{fSta}, s[{SRD_L}:{SRD_L+3}], s{sT1} offen {lfe}")
        for k in range(nst):
            A(f"buffer_load_dwordx4 {vr(I+4*k, 4)}, v{fLin}, s[{SRD_L}:{SRD_L+3}], s{sT0} offen offset:{k*1024} {lfe}")
    def publish(I, sb, off):
        A(f"s_add_u32 s{sT0}, s{sb}, {off}"); A(f"s_add_u32 s{sT1}, s{sb}, {off + 4096}")
        for k in range(nst):
            A(f"buffer_store_dwordx4 {vr(I+4*k, 4)}, v{fLin}, s[{SRD_L}:{SRD_L+3}], s{sT0} offen offset:{k*1024} {sfe}")
        A("s_mov_b64 exec, 15")
        A(f"buffer_store_dwordx4 {vr(I+16, 4)}, v{fSta}, s[{SRD_L}:{SRD_L+3}], s{sT1} offen {sfe}")
        A("s_mov_b64 exec, -1")
    def check(imgs):
        g = [I+4*k+3 for I in imgs for k in list(range(nst)) + [4]]
        A(f"v_xor_b32 v{fT}, v{fTag}, v{g[0]}")
        for r in g[1:]:
            A(f"v_xor_b32 v{fM}, v{fTag}, v{r}")
            A(f"v_or_b32 v{fT}, v{fT}, v{fM}")
        A(f"v_cmp_ne_u32 vcc, 0, v{fT}")
        A("s_nop 4")
        A("s_cmp_eq_u64 vcc, 0")
    def merge(imgs, shead, add):
        n = len(imgs)
        F = fSt
        if n == 3: A(f"v_max3_f32 v{fM}, v{imgs[0]+16}, v{imgs[1]+16}, v{imgs[2]+16}")
        else:      A(f"v_max_f32 v{fM}, v{imgs[0]+16}, v{imgs[-1]+16}")
        for p in range(n): A(f"v_sub_f32 v{F+p}, v{imgs[p]+16}, v{fM}")
        for p in range(n): A(f"v_exp_f32 v{F+p}, v{F+p}")
        A("s_nop 0")
        A(f"v_mul_f32 v{fL}, v{F}, v{imgs[0]+17}")
        for p in range(1, n): A(f"v_fmac_f32 v{fL}, v{F+p}, v{imgs[p]+17}")
        A(f"v_rcp_f32 v{fL}, v{fL}")
        A(f"s_add_u32 s{sT0}, s{shead}, {add}")
        A(f"s_mul_i32 s{sT0}, s{sT0}, 1536")
        for p in range(n): A(f"v_mul_f32 v{F+p}, v{F+p}, v{fL}")
        for k in range(12):
            o = (k//3)*4 + k % 3
            A(f"v_mul_f32 v{fO+k}, v{imgs[0]+o}, v{F}")
            for p in range(1, n): A(f"v_fmac_f32 v{fO+k}, v{imgs[p]+o}, v{F+p}")
        for k in range(6): A(f"v_cvt_pk_bf16_f32 v{fO+12+k}, v{fO+2*k}, v{fO+2*k+1}")
        for j in range(3):
            A(f"buffer_store_dwordx2 {vr(fO+12+2*j, 2)}, v{fOff}, s[{SRD_O}:{SRD_O+3}], s{sT0} offen offset:{j*128} {of}")
    A("s_cmp_eq_u32 s2, 255")
    A("s_cbranch_scc1 L_fin")
    A(f"s_cmp_eq_u32 s{sP}, 1")
    A("s_cbranch_scc1 L_fmid")

    A.c("outer workgroup: owns a region-1 head")
    barriers(89)
    combine(E[0])
    barriers(39 - eld)
    if nofin: A("s_branch L_fin")
    if not retry:
        load(E[1], sIb, IMG)
        for k in range(eld + 1): A("s_barrier")
        A("s_waitcnt vmcnt(0)")
        check([E[1]])
        A("s_cbranch_scc1 L_fo7")
    else:
        A("s_barrier")
        A(f"s_mov_b32 s{sN}, {retry}")
        A.label("L_fo5")
        load(E[1], sIb, IMG)
        A("s_waitcnt vmcnt(0)")
        check([E[1]])
        A("s_cbranch_scc1 L_fo7")
        A(f"s_sub_u32 s{sN}, s{sN}, 1")
        A(f"s_cmp_lg_u32 s{sN}, 0")
        A("s_cbranch_scc1 L_fo5")
    publish(E[0], sIb, 0)
    A("s_waitcnt vmcnt(0)")
    load(E[1], sIb, IMG)
    A("s_waitcnt vmcnt(0)")
    check([E[1]])
    A("s_cbranch_scc0 L_fin")
    A.label("L_fo7")
    merge(E[:2], sH1, 0)
    A("s_branch L_fin")

    A.label("L_fmid")
    A.c("middle workgroup: helps with two region-1 heads")
    A(f"v_and_b32 v{fHa}, 1, v{vLane}")
    A(f"v_mul_u32_u24 v{fHa}, {2*IMG}, v{fHa}")
    A(f"v_add_u32 v{fHa}, {4096 + 12}, v{fHa}")
    barriers(41)
    combine(E[0])
    barriers(40)
    combine(E[1])
    barriers(47 - early)
    if nofin: A("s_branch L_fin")
    publish(E[0], sIb, IMG)
    publish(E[1], sIb, 3*IMG)
    for k in range(early + 1): A("s_barrier")
    A("s_waitcnt vmcnt(0)")
    A(f"buffer_load_dword v{fH}, v{fHa}, s[{SRD_L}:{SRD_L+3}], s{sIb} offen sc1")
    A("s_waitcnt vmcnt(0)")
    A.c("an owner that missed its helper image has published its own: finish that head here")
    A(f"v_cmp_eq_u32 vcc, v{fH}, v{fTag}")
    A("s_nop 4")
    A(f"s_and_b32 s{sDone}, vcc_lo, 3")
    A("s_cbranch_scc0 L_fin")
    for h in range(2):
        A(f"s_bitcmp1_b32 s{sDone}, {h}")
        A(f"s_cbranch_scc0 L_fm3{h}")
        A("s_waitcnt vmcnt(0)")
        load(E[2], sIb, 2*h*IMG)
        A("s_waitcnt vmcnt(0)")
        check([E[2]])
        A(f"s_cbranch_scc0 L_fm3{h}")
        merge([E[2], E[h]], sH1, h)
        A.label(f"L_fm3{h}")
    A.label("L_fin")
    if stamp:
        A("s_mov_b64 exec, -1")
        stamp_out(None)
    A.label("L_end")
    A("s_endpgm")
    if order:
        rows = [[int(x) for x in l.split()] for l in open(order)]
        A(".p2align 8")
        A(".type block_order,@object")
        A.label("block_order")
        for x in range(8):
            for w in range(x, 256, 8):
                A(".quad %#018x" % sum(v << (4*k) for k, v in enumerate(rows[w])))
        A(".size block_order, 2048")

    kn = name + "_kernel"
    hdr = open(f"/code/{NAME}.s.ref").read().split("; Override launch")[0]
    nv = (NV + 7)//8*8
    s = hdr + f"""; @launch grid=(256,1,1) block=(448,1,1) lds={LDS}
{DOC}.amdgcn_target "amdgcn-amd-amdhsa--gfx950"
.text
.globl {kn}
.p2align 8
.type {kn},@function
{kn}:
{A.text()}
.section .rodata,"a"
.p2align 6
.amdhsa_kernel {kn}
  .amdhsa_next_free_vgpr {nv}
  .amdhsa_next_free_sgpr 102
  .amdhsa_accum_offset {nv}
  .amdhsa_group_segment_fixed_size 0
  .amdhsa_kernarg_size 80
  .amdhsa_user_sgpr_count 2
  .amdhsa_user_sgpr_kernarg_segment_ptr 1
  .amdhsa_system_sgpr_workgroup_id_x 1
  .amdhsa_float_denorm_mode_32 3
.end_amdhsa_kernel
"""
    return s, kn, f"{kn}:256:448:{LDS}"

if __name__ == "__main__":
    kw = {}
    out = f"/code/{NAME}.s"
    for a in sys.argv[1:]:
        k, v = a.split("=")
        if k == "out": out = v
        else: kw[k] = eval(v)
    s, kn, spec = gen(**kw)
    open(out, "w").write(s)
    print(out, spec)
```

```python
import itertools
par = lambda x: bin(x).count("1") & 1
def cls(m, f): return sum(par(m & g) << k for k, g in enumerate(f))
def linear_cols(f):
    cols = [min(m for m in range(256) if cls(m, f) == 1 << k) for k in range(3)]
    sp = {0}
    for m in range(1, 256):
        if cls(m, f) == 0 and m not in sp:
            cols.append(m); sp |= {x ^ m for x in sp}
    return cols
def apply(cols, w):
    m = 0
    for k, c in enumerate(cols):
        if w >> k & 1: m ^= c
    return m
def second(m1, f2, keep=True):
    import numpy as np
    from scipy.optimize import linear_sum_assignment
    best = None
    s1 = lambda m: (m >> 6 & 1) | ((m ^ m >> 7) & 1) << 1 | (m >> 5 & 1) << 2
    s2 = lambda m: ((m ^ m >> 7) & 1) | (m >> 1 & 1) << 1 | (m >> 6 & 1) << 2
    for k in range(8):
        C = np.zeros((256, 256))
        for w in range(256):
            for m in range(256):
                if (m1[w] == 255) != (m == 255) or (m1[w] % 3 == 1) != (m % 3 == 1): C[w, m] = 1e6; continue
                d = (cls(m, f2) ^ k) ^ (w & 7)
                C[w, m] = (100 if d & 4 else 0) + (30 if d & 2 else 0) + (20 if d & 1 else 0)
                if keep:
                    e = s1(m1[w]) ^ s2(m)
                    C[w, m] += (e >> 2 & 1)*3 + (e >> 1 & 1)*2 + (e & 1)
        r, c = linear_sum_assignment(C)
        if best is None or C[r, c].sum() < best[0]: best = (C[r, c].sum(), list(map(int, c)), k)
    m2 = best[1]
    def clashes(m2):
        x = {m2[w]: w & 7 for w in range(256)}
        return [(3*j+a, 3*j+b) for j in range(85) for a, b in ((0, 1), (1, 2), (0, 2)) if x[3*j+a] == x[3*j+b]]
    while clashes(m2):
        n0 = len(clashes(m2)); done = False
        for item in clashes(m2)[0]:
            w = m2.index(item)
            for v in sorted(range(256), key=lambda v: (v ^ w) & 7):
                if (v ^ w) & 7 == 0 or m2[v] == 255 or (m2[v] % 3 == 1) != (item % 3 == 1): continue
                m2[w], m2[v] = m2[v], m2[w]
                if len(clashes(m2)) < n0: done = True; break
                m2[w], m2[v] = m2[v], m2[w]
            if done: break
        assert done
    off = sum((cls(m2[w], f2) ^ best[2]) != (w & 7) for w in range(256))
    x = {m2[w]: w & 7 for w in range(256)}
    same = sum(x[3*j+a] == x[3*j+b] for j in range(85) for a, b in ((0, 1), (1, 2), (0, 2)))
    return m2, off, same, best[0]
if __name__ == "__main__":
    for f1 in ((49, 80, 152), (49, 200, 152), (249, 80, 152), (97, 80, 152)):
        m1 = [apply(linear_cols(f1), w) for w in range(256)]
        for f2 in ((107, 169, 129), (179, 169, 129), (26, 169, 129), (90, 169, 129), (99, 48, 129)):
            m2, off, same, cost = second(m1, f2)
            print(f1, f2, "off-class", off, "same-xcc pairs", same, "cost", cost)
```

```python
import sys
from gen_kernel import Asm, VAlloc, vr, NAME, LOG2E, SCALE

DOC = """;
;             about 32 KiB apart, which requests both halves of a DRAM row close together.
"""

def gen(thr0=18.55, lo=16, top=22, hi=25, lad2=3, kap=0.4, f0=23.3, gain=7, skip=4, gain2=32, gcap=16, g2at=29/32, late=200, lam=7, dead=60,
        seq='AAB|ABB', early=2, warm=8, pk=True, stamp=False, slow=None, mtab=False, xm=(49, 200, 152), f2=(15, 100, 237), keep=True, name=NAME):
    if mtab: f2 = None
    per, rspec, nofin, tl, of, nst, mirror = 4, True, False, None, '', 4, False
    lf1 = lf2 = sf = 'sc1'; lfe = sfe = 'sc1 nt'
    KV_BYTES = 256*4096*768
    NG, LEAD = 68, 512
    L_RING = 0
    L_KZ = 73728 + LEAD
    L_KS = L_KZ + NG*384 + LEAD
    L_VS = L_KS + NG*384
    L_VZ = L_VS + NG*128
    L_STAT = L_VZ + NG*128
    L_SLOT = L_STAT + 256
    L_Q = L_SLOT
    L_THR = L_SLOT + 4*3072
    L_TAG, L_MAX = L_THR + 4, L_THR + 64
    LDS = L_MAX + 256
    RIMG, WS_E = 3328, 1 << 20
    WS_STAMP, WS_FB = 8 << 20, 16 << 20
    FB_END = WS_FB + 65*256
    TAGW = 5000
    A = Asm()
    va = VAlloc(1)
    vLane = va(); vW = va(); vT1 = va(); vT2 = va(); vT3 = va(); vT4 = va()
    va(17)
    vN0 = va(); vPart = va(); vLogA = va(); vRing = va(); vRd = va(); vM = va(); vLa = va(); vLb = va()
    vPad = va(2); vQA = va(); vMaxA = va(); vSlotA = va(); vStatA = va()
    rRd, rSt, rLin, rSta, rOut, rTag = va(), va(), va(), va(), va(), va()
    vSum = va(); vCor = va(); vLg = va(); vSZ = va(4); vE = va(6)
    vX = va(24, 4); vZ = va(24, 4); vS = va(24, 4); vRaw = va(24, 4)
    vKb = va(12, 4); vD = va(8, 4); vMx = va(4, 4); vAcc = va(24, 4)
    vB, vQ, vP = vKb, vAcc, vD
    NV = va.n
    sW, sBase, sT0, sT1, sT2, sBlk, sSlot, sPar = 56, 57, 58, 59, 60, 61, 62, 63
    sLog2e, sScale, sHi, sN1 = 64, 65, 66, 67
    sC, sM, sLev, sProg, sPhys, sU2, sInt, sLevSum = 68, 69, 70, 71, 72, 73, 74, 75
    sNow, sFbP, sRef = 96, 98, 84
    sU1, sJ, sP = 3, 100, 101
    sM2, sJ2, sP2 = 53, 54, 55
    SRD_L, SRD_KS, SRD_KZ, SRD_VS, SRD_VZ, SRD_Q, SRD_O, SRD_D = 24, 28, 32, 36, 40, 44, 48, 52
    def srd(d, p, nbytes):
        A(f"s_mov_b32 s{d}, s{p}"); A(f"s_and_b32 s{d+1}, s{p+1}, 0xffff")
        A(f"s_mov_b32 s{d+2}, {nbytes}"); A(f"s_mov_b32 s{d+3}, 0x20000")
    def stamp_out(idx_expr):
        A("s_waitcnt vmcnt(0)")
        A("s_memrealtime s[82:83]")
        A.label("L_fin2")
        A("s_getreg_b32 s84, hwreg(HW_REG_XCC_ID)")
        A("s_getreg_b32 s85, hwreg(HW_REG_HW_ID)")
        A("s_and_b32 s85, s85, 0xffff")
        A(f"s_or_b32 s85, s85, s{sLevSum}")
        A("s_waitcnt lgkmcnt(0)")
        srd(76, 22, WS_STAMP + 1792*32)
        for k, sr in enumerate((80, 81, 82, 83, 84, 85, 92, 94)): A(f"v_mov_b32 v{vX+k}, s{sr}")
        A("s_mul_i32 s85, s2, 7"); A(f"s_add_u32 s85, s85, s{sW}"); A("s_lshl_b32 s85, s85, 5")
        A(f"s_add_u32 s85, s85, {WS_STAMP}")
        A(f"v_mov_b32 v{vT3}, 0")
        A("s_mov_b64 exec, 1")
        A(f"buffer_store_dwordx4 {vr(vX, 4)}, v{vT3}, s[76:79], s85 offen")
        A(f"buffer_store_dwordx4 {vr(vX+4, 4)}, v{vT3}, s[76:79], s85 offen offset:16")

    A("s_load_dwordx16 s[4:19], s[0:1], 0")
    A("s_load_dwordx4 s[20:23], s[0:1], 64")
    A("s_cmp_ge_u32 s2, 256")
    A("s_cbranch_scc1 L_end")
    def table_load(w):
        A.c("second-region item of this workgroup")
        A("s_getpc_b64 s[50:51]")
        A.label("L_pc0")
        A(f"s_and_b32 s52, s{w}, 0xfc"); A("s_add_u32 s52, s52, second_item - L_pc0")
        A(f"s_load_dword s{sM2}, s[50:51], s52")
    if stamp:
        A("s_memrealtime s[80:81]")
        A(f"s_mov_b32 s{sLevSum}, 0"); A("s_mov_b32 s92, 0"); A("s_mov_b32 s94, 0")
    if slow:
        A(f"s_mul_i32 s{sT0}, s2, {slow[0]}"); A(f"s_bfe_u32 s{sT0}, s{sT0}, {4 | (2 << 16)}")
        A(f"s_mul_i32 s{sT0}, s{sT0}, {slow[1]}")
        A.label("L_slow")
        A("s_sleep 32")
        A(f"s_sub_i32 s{sT0}, s{sT0}, 1")
        A(f"s_cmp_gt_i32 s{sT0}, 0")
        A("s_cbranch_scc1 L_slow")
    A(f"v_lshrrev_b32 v{vW}, 6, v0")
    A(f"v_and_b32 v{vLane}, 63, v0")
    A(f"v_readfirstlane_b32 s{sW}, v{vW}")
    lBase, lThr, lThrA, lTa, lG2, lG3, lA1, lA2, lB1, lB2 = 8, 20, 21, 22, 11, 12, 13, 14, 15, 16
    A.c("work item m = GF(2)-linear image of the workgroup id, chosen so dies and DRAM banks line up well (speed only)")
    A(f"s_mov_b32 s{sPhys}, s2")
    import mkmap
    cols = mkmap.linear_cols(xm)
    rowm = sum(sum(((c >> b) & 1) << k for k, c in enumerate(cols)) << (8*b) for b in range(8))
    A(f"s_mov_b32 s50, {rowm & 0xffffffff:#x}"); A(f"s_mov_b32 s51, {rowm >> 32:#x}")
    A(f"v_lshlrev_b32 v{vT1}, 3, v{vLane}")
    A(f"v_lshrrev_b64 v[8:9], v{vT1}, s[50:51]")
    A("v_and_b32 v8, s2, v8"); A("v_bcnt_u32_b32 v8, v8, 0"); A("v_and_b32 v8, 1, v8")
    A("v_cmp_ne_u32 vcc, 0, v8")
    A(f"v_lshlrev_b32 v{lBase}, 4, v{vLane}")
    A(f"v_lshrrev_b32 v{lG2}, 5, v{vLane}")
    A(f"s_mov_b32 s{SRD_L+2}, {KV_BYTES}"); A(f"s_mov_b32 s{SRD_L+3}, 0x20000")
    A("s_and_b32 s2, vcc_lo, 255")
    if mtab:
        A("s_waitcnt lgkmcnt(0)")
        A(f"s_lshl_b32 s{sT0}, s{sPhys}, 2"); A(f"s_add_u32 s{sT0}, s{sT0}, {10 << 20}")
        A(f"s_load_dword s2, s[22:23], s{sT0}")
        A("s_waitcnt lgkmcnt(0)")
        A(f"s_mov_b32 s{sM2}, s2"); A("s_and_b32 s2, s2, 255")
    A.c("first unit (256m + 1) / 3; a step is four rows of stream A then four of stream B; wave w starts half-step w")
    A(f"s_mul_i32 s{sU1}, s2, {256*43691}"); A(f"s_add_u32 s{sU1}, s{sU1}, 43691"); A(f"s_lshr_b32 s{sU1}, s{sU1}, 17")
    def half_step(h, first):
        A(f"s_lshl_b32 s{sT0}, s{sU1}, 3"); A(f"s_add_u32 s{sT0}, s{sT0}, {h}")
        A(f"s_bfe_u32 s{sT1}, s{sT0}, {1 | (5 << 16)}")
        A(f"s_and_b32 s{sT2}, s{sT0}, 1")
        A(f"s_lshr_b32 s{sBase}, s{sT0}, 6"); A(f"s_lshl_b32 s{sBase}, s{sBase}, 6"); A(f"s_add_u32 s{sBase}, s{sBase}, s{sT1}")
        A(f"s_lshl_b32 s{sBase}, s{sBase}, 2")
        A(f"s_cmp_gt_u32 s{sT1}, 10"); A(f"s_addc_u32 s{sT0}, s{sT2}, 0"); A(f"s_mul_i32 s{sT0}, s{sT0}, 43")
        A(f"s_add_u32 s{sBase}, s{sBase}, s{sT0}")
        A(f"s_sub_u32 s{sT2}, 43, s{sT2}")
        A(f"s_cmp_gt_u32 s{sT1}, 21"); A(f"s_cselect_b32 s{sT0}, s{sT2}, 0"); A(f"s_add_u32 s{sBase}, s{sBase}, s{sT0}")
        A(f"s_cmp_eq_u32 s{sT1}, 21"); A(f"s_cselect_b32 s{sT2}, s{sT2}, 0"); A(f"s_mul_i32 s{sT2}, s{sT2}, 768")
        A(f"v_mad_u32_u24 v{lA1}, v{lG2}, s{sT2}, v{lBase}"); A(f"v_add_u32 v{lA2}, s{sT2}, v{lBase}")
        A(f"s_mul_i32 m0, {h}, 3072")
        A(f"s_mul_i32 s{sT0}, s{sBase}, 768")
        if first:
            A("s_waitcnt lgkmcnt(0)")
            if stamp: A("s_memrealtime s[92:93]")
            A(f"s_mov_b32 s{SRD_L}, s6"); A(f"s_and_b32 s{SRD_L+1}, s7, 0xffff")
        for k, r in enumerate((lBase, lA1, lA2)):
            A(f"buffer_load_dwordx4 v{r}, s[{SRD_L}:{SRD_L+3}], s{sT0} offen offset:{1024*k} nt lds")
    half_step(f"s{sW}", True)
    if f2: table_load(sPhys)
    A.c("the first stretch has 85 or 86 units")
    A(f"s_mul_i32 s{sJ}, s2, 43691"); A(f"s_lshr_b32 s{sJ}, s{sJ}, 17")
    A(f"s_mul_i32 s{sP}, s{sJ}, 3"); A(f"s_sub_u32 s{sP}, s2, s{sP}")
    A(f"s_and_b32 s{sN1}, s{sP}, 1"); A(f"s_add_u32 s{sN1}, s{sN1}, 85")
    def second_stretch():
        A.c("second stretch: head 255-j from unit 85, 43 or 0")
        if f2:
            A(f"s_lshl_b32 s{sT0}, s{sPhys}, 3")
            A("s_waitcnt lgkmcnt(0)")
            A(f"s_lshr_b32 s{sM2}, s{sM2}, s{sT0}"); A(f"s_and_b32 s{sM2}, s{sM2}, 255")
        elif mtab: A(f"s_bfe_u32 s{sM2}, s{sM2}, {8 | (8 << 16)}")
        else: A(f"s_mov_b32 s{sM2}, s2")
        A(f"s_mul_i32 s{sJ2}, s{sM2}, 43691"); A(f"s_lshr_b32 s{sJ2}, s{sJ2}, 17")
        A(f"s_mul_i32 s{sP2}, s{sJ2}, 3"); A(f"s_sub_u32 s{sP2}, s{sM2}, s{sP2}")
        A(f"s_sub_u32 s{sU2}, 2, s{sP2}"); A(f"s_mul_i32 s{sU2}, s{sU2}, 85"); A(f"s_add_u32 s{sU2}, s{sU2}, 1"); A(f"s_lshr_b32 s{sU2}, s{sU2}, 1")
        A(f"s_sub_u32 s{sT0}, 255, s{sJ2}"); A(f"s_lshl_b32 s{sT0}, s{sT0}, 7"); A(f"s_add_u32 s{sU2}, s{sU2}, s{sT0}")
    A(f"s_cmp_eq_u32 s{sW}, 4")
    A("s_cbranch_scc1 L_loader")
    A(f"s_cmp_lt_u32 s{sW}, 4")
    A("s_cbranch_scc1 L_consumer")
    A(f"s_cmp_eq_u32 s{sW}, 6")
    A("s_cbranch_scc1 L_ctl")
    def first_group(dst, u):
        A(f"s_lshr_b32 s{dst}, s{u}, 3"); A(f"s_lshl_b32 s{dst}, s{dst}, 2")
        A(f"s_and_b32 s{sT0}, s{u}, 7"); A(f"s_addc_u32 s{dst}, s{dst}, 0")
    A.c("stage q, then kz / ks and vs / vz of both stretches (43 or 46, and 23 or 22 groups) back to back in LDS")
    sG1, sG2, sNa, sNt = sC, sM, sLev, sProg
    srd(SRD_Q, 4, 256*1536)
    A(f"s_lshr_b32 s{sG1}, s{sU1}, 7")
    A(f"s_mov_b32 s{sNa}, {L_Q}")
    def q_dma(sh):
        A(f"s_mov_b32 m0, s{sNa}")
        A(f"s_mul_i32 s{sT0}, s{sh}, 1536")
        A("s_mov_b32 exec_hi, 0xffff")
        A(f"buffer_load_dwordx4 v{lBase}, s[{SRD_Q}:{SRD_Q+3}], s{sT0} offen nt lds")
        A(f"buffer_load_dwordx4 v{lBase}, s[{SRD_Q}:{SRD_Q+3}], s{sT0} offen offset:768 nt lds")
        A("s_mov_b32 exec_hi, -1")
        A(f"s_add_u32 s{sNa}, s{sNa}, 1536")
    q_dma(sG1)
    A(f"s_cmp_eq_u32 s{sP}, 1")
    A("s_cbranch_scc0 L_stq")
    A(f"s_add_u32 s{sG1}, s{sG1}, 1")
    q_dma(sG1)
    A.label("L_stq")
    first_group(sG1, sU1)
    srd(SRD_KZ, 12, 256*24576); srd(SRD_KS, 10, 256*24576)
    A(f"s_mul_i32 s{sT1}, s{sG1}, 384")
    for la, sr in ((L_KZ, SRD_KZ), (L_KS, SRD_KS)):
        A(f"s_mov_b32 m0, {la}")
        A("s_nop 0")
        for k in range(4):
            A(f"buffer_load_dwordx4 v{lBase}, s[{sr}:{sr+3}], s{sT1} offen offset:{1024*k} nt lds")
    second_stretch()
    A(f"s_lshr_b32 s{sG2}, s{sU2}, 7")
    q_dma(sG2)
    first_group(sG2, sU2)
    A(f"s_cmp_eq_u32 s{sP}, 1")
    A(f"s_cselect_b32 s{sNa}, 46, 43"); A(f"s_cselect_b32 s{sNt}, 2, 0"); A(f"s_add_u32 s{sNt}, s{sNt}, 66")
    A(f"s_sub_u32 s{sG2}, s{sG2}, s{sNa}")
    for n, (gb, pa, pb, nb, la, lb) in enumerate(((384, 12, 10, 256*24576, L_KZ, L_KS), (128, 14, 16, 256*8192, L_VS, L_VZ))):
        if n: srd(SRD_KZ, pa, nb); srd(SRD_KS, pb, nb)
        for d, sr in ((sBase, sG1), (sBlk, sG2), (sSlot, sNa), (sPar, sNt)): A(f"s_mul_i32 s{d}, s{sr}, {gb}")
        A(f"v_add_u32 v9, {0 if n else 4096}, v{lBase}")
        A(f"s_movk_i32 s{sT1}, {0 if n else 4096}")
        A.label(f"L_stage{n}")
        A(f"v_cmp_gt_u32 vcc, s{sSlot}, v9")
        A(f"v_add_u32 v10, s{sBase}, v9")
        A(f"v_add_u32 v17, s{sBlk}, v9")
        A("v_cndmask_b32 v10, v17, v10, vcc")
        A(f"v_cmp_gt_u32 vcc, s{sPar}, v9")
        A(f"s_add_u32 m0, s{sT1}, {la}")
        A("v_add_u32 v9, 1024, v9")
        A(f"s_add_u32 s{sT1}, s{sT1}, 1024")
        A("s_nop 1")
        A("s_mov_b64 exec, vcc")
        A(f"buffer_load_dwordx4 v10, s[{SRD_KZ}:{SRD_KZ+3}], 0 offen nt lds")
        A(f"s_add_u32 m0, m0, {lb - la}")
        A(f"s_cmp_lt_u32 s{sT1}, s{sPar}")
        A(f"buffer_load_dwordx4 v10, s[{SRD_KS}:{SRD_KS+3}], 0 offen nt lds")
        A(f"s_cbranch_scc1 L_stage{n}")
        A("s_mov_b64 exec, -1")
    A("s_branch L_finisher")

    A.c("==================== loader")
    A.label("L_loader")
    sOff, sAcc, sThr = sBase, sInt, sLev
    sOffB, sMA, sB1, sB2a, sB2b, sU, sSw = sM, sSlot, sPar, 86, 87, sBlk, 91
    his = [(a, a) for a in range(top+1, hi+1)]
    A("s_setprio 3")
    half_step("7", False)
    A(f"s_add_u32 s{sOffB}, s{sT0}, 3072")
    A(f"s_cmp_gt_u32 s{sT1}, 21"); A(f"s_cselect_b32 s{sT0}, 42, 43"); A(f"s_mul_i32 s{sT0}, s{sT0}, 768")
    A(f"s_sub_u32 s{sOff}, s{sOffB}, s{sT0}")
    A(f"v_add_u32 v{lTa}, 48, v{vLane}"); A(f"v_lshrrev_b32 v{lG3}, 6, v{lTa}")
    for r in (lB1, lB2): A(f"v_mov_b32 v{r}, v{lBase}")
    A(f"s_add_u32 s{sC}, s{sT1}, 1"); A(f"s_mov_b32 s{sMA}, {L_RING + 24576}")
    for r in (sB1, sB2a, sB2b): A(f"s_mov_b32 s{r}, 0")
    A(f"s_mov_b32 s{sU}, 1"); A(f"s_mov_b32 s{sSw}, s{sN1}")
    A(f"s_mov_b32 s{sAcc}, 0")
    A(f"v_mov_b32 v{lThr}, {int(thr0*256)}"); A(f"v_mov_b32 v{lThrA}, {L_THR}")
    A(f"ds_write_b32 v{lThrA}, v{lThr}")
    second_stretch()
    A.c("one step per pass; the entry points set the window; the next step's offsets are formed between the loads")
    def chain_loop(a, b, tag):
        def ladder(pre):
            if a == b: return
            for n in range(b, a, -1):
                A(f"s_cmp_eq_u32 s{sThr}, {n}")
                A(f"s_cbranch_scc1 {pre}{n}")
        def waits(pre):
            for n in range(a, b+1):
                A.label(f"{pre}{n}")
                A(f"s_waitcnt vmcnt({n})")
        work = [f"s_add_u32 s{sC}, s{sC}, 1", f"s_and_b32 s{sT0}, s{sC}, 31",
                f"s_add_u32 s{sT2}, s{sB1}, 3072", f"s_add_u32 s{sNA}, s{sT2}, s{sB2a}", f"s_add_u32 s{sNB}, s{sT2}, s{sB2b}",
                (f"s_cmp_eq_u32 s{sT0}, 10", f"s_cselect_b32 s{sB1}, {43*768}, 0"),
                (f"s_cmp_eq_u32 s{sT0}, 21", f"s_cselect_b32 s{sB2a}, {43*768}, 0", f"s_cselect_b32 s{sB2b}, {42*768}, 0"),
                f"v_mad_u32_u24 v{lTa}, v{lG3}, s{sB1}, v{lBase}"]
        after = {"A1": [f"v_mad_u32_u24 v{lA1}, v{lG2}, s{sB2a}, v{lBase}"], "B1": [f"v_mad_u32_u24 v{lB1}, v{lG2}, s{sB2b}, v{lBase}"],
                 "A2": [f"v_add_u32 v{lA2}, s{sB2a}, v{lTa}", f"s_add_u32 s{sOff}, s{sOff}, s{sNA}"],
                 "B2": [f"v_add_u32 v{lB2}, s{sB2b}, v{lTa}", f"s_add_u32 s{sOffB}, s{sOffB}, s{sNB}"]}
        cnt = {"A": 0, "B": 0}; late_ = []; cur = seq[0]; nw = 0
        letters = seq.replace("|", "")
        waits("L_lw")
        pos = 0
        for ch in seq:
            if ch == "|":
                nw += 1
                ladder(f"L_lx{nw}_{tag}_"); waits(f"L_lx{nw}_{tag}_")
                continue
            k = cnt[ch]; cnt[ch] += 1
            va_ = lBase if k == 0 else {"A": (lA1, lA2), "B": (lB1, lB2)}[ch][k-1]
            A(f"buffer_load_dwordx4 v{va_}, s[{SRD_L}:{SRD_L+3}], s{sOff if ch == 'A' else sOffB} offen offset:{1024*k} nt lds")
            pos += 1
            if pos < 6 and letters[pos] != ch:
                A(f"s_add_u32 m0, s{sMA}, {mo(letters[pos])}")
            late_ += after.get(ch + str(k), [])
            n = 0
            while work and n < 4:
                x = work.pop(0)
                for y in ([x] if isinstance(x, str) else x): A(y); n += 1
            if not work:
                for y in late_: A(y); n += 1
                late_ = []
            if n == 0 and pos < 6: A("s_nop 0")
        A(f"s_add_u32 s{sMA}, s{sMA}, 6144")
        A(f"s_add_u32 m0, s{sMA}, {mo(letters[0])}")
        A(f"s_and_b32 s{sT1}, s{sC}, 3")
        if a == b:
            A(f"s_cbranch_scc1 L_lw{a}")
            A("s_branch L_lunit")
            return
        A("s_cbranch_scc0 L_lunit")
        A.label(f"L_lad{tag}")
        ladder("L_lw")
        A(f"s_branch L_lw{a}")
    sNA, sNB, sMX = 88, 89, 90
    mo = lambda ch: (f"s{sMX + (ch == 'B')}" if mirror else (3072 if ch == 'B' else 0))
    A(f"s_mov_b32 s{sT0}, 4")
    A("s_branch L_lnobar")
    chain_loop(lo, top, "")
    A.label("L_lunit")
    A.c("unit boundary: release the previous unit, pick up the window size")
    A("s_waitcnt vmcnt(24)")
    A(f"s_add_u32 s{sU}, s{sU}, 1")
    A(f"s_cmp_eq_u32 s{sU}, 2")
    A("s_cbranch_scc1 L_lfirst")
    A.label("L_lbar")
    A("s_barrier")
    A.label("L_lnobar")
    A("s_waitcnt lgkmcnt(0)")
    A(f"v_readfirstlane_b32 s{sT1}, v{lThr}")
    A(f"ds_read_b32 v{lThr}, v{lThrA}")
    A(f"s_cmp_eq_u32 s{sMA}, {L_RING + 73728}")
    A(f"s_cselect_b32 s{sMA}, {L_RING}, s{sMA}")
    A(f"s_add_u32 m0, s{sMA}, {mo(seq[0])}")
    A(f"s_and_b32 s{sAcc}, s{sAcc}, 255")
    A(f"s_add_u32 s{sAcc}, s{sAcc}, s{sT1}")
    A(f"s_lshr_b32 s{sThr}, s{sAcc}, 8")
    A(f"s_cmp_eq_u32 s{sU}, s{sSw}")
    A(f"s_cselect_b32 s{sT0}, 0, s{sT0}")
    A(f"s_cmp_eq_u32 s{sT0}, 0")
    A("s_cbranch_scc1 L_lblock")
    A.label("L_lsel")
    for n in sorted(range(lo, top+1), key=lambda n: abs(n - thr0 - 0.6))[:lad2]:
        A(f"s_cmp_eq_u32 s{sThr}, {n}")
        A(f"s_cbranch_scc1 L_lw{n}")
    A(f"s_cmp_le_u32 s{sThr}, {top}")
    A("s_cbranch_scc1 L_lad")
    for a, b in his[:-1]:
        A(f"s_cmp_eq_u32 s{sThr}, {a}")
        A(f"s_cbranch_scc1 L_lw{a}")
    A(f"s_branch L_lw{hi}")
    A.label("L_lblock")
    A.c("next block of the stretch, or the next stretch")
    A(f"s_add_u32 s{sOff}, s{sOff}, {42*768}")
    A(f"s_add_u32 s{sOffB}, s{sOff}, {43*768}")
    A(f"s_cmp_eq_u32 s{sU}, s{sSw}")
    A("s_cbranch_scc0 L_lsel")
    A(f"s_cmp_eq_u32 s{sU}, 256")
    A("s_cbranch_scc1 L_ldone")
    A(f"s_or_b32 s{sT0}, s{sU}, 127"); A(f"s_add_u32 s{sT0}, s{sT0}, 1")
    A(f"s_add_u32 s{sSw}, s{sN1}, 128")
    A(f"s_cmp_eq_u32 s{sU}, 128")
    A(f"s_cselect_b32 s{sSw}, s{sSw}, s{sT0}"); A(f"s_cselect_b32 s{sC}, s{sU1}, s{sU2}")
    A("s_cbranch_scc0 L_lsame")
    A(f"s_mov_b32 s{SRD_L}, s8"); A(f"s_and_b32 s{SRD_L+1}, s9, 0xffff")
    A.label("L_lsame")
    A(f"s_and_b32 s{sT0}, s{sC}, 7")
    A(f"s_cselect_b32 s{sOff}, 43, 0")
    A(f"s_lshl_b32 s{sT0}, s{sT0}, 4"); A(f"s_sub_u32 s{sOff}, s{sOff}, s{sT0}")
    A(f"s_lshl_b32 s{sT0}, s{sC}, 5"); A(f"s_add_u32 s{sOff}, s{sOff}, s{sT0}")
    A(f"s_mul_i32 s{sOff}, s{sOff}, 768")
    A(f"s_add_u32 s{sOffB}, s{sOff}, {43*768}")
    A(f"s_lshl_b32 s{sC}, s{sC}, 2")
    A("s_branch L_lsel")
    A.label("L_lfirst")
    A("s_barrier")
    A("s_branch L_lbar")
    A.label("L_ldone")
    A("s_waitcnt vmcnt(0)")
    A("s_barrier")
    if stamp:
        A("s_memrealtime s[82:83]"); A("s_barrier"); A("s_branch L_fin2")
    else: A("s_endpgm")
    for a, b in his: chain_loop(a, b, str(a))

    A.c("==================== window control")
    A.label("L_ctl")
    pRep, pVal, pThrA, pLog = 8, 9, 10, 20
    if warm:
        A.c("a few workgroups pull the code into their L2 ahead of its first use")
        A(f"s_sub_u32 s{sT0}, s{sPhys}, 8")
        A(f"s_cmp_lt_u32 s{sT0}, {warm}")
        A("s_cbranch_scc0 L_ctl_init")
        A(f"s_getpc_b64 s[{SRD_Q}:{SRD_Q+1}]")
        A.label("L_pc")
        A(f"s_and_b32 s{SRD_Q+1}, s{SRD_Q+1}, 0xffff")
        A(f"s_mov_b32 s{SRD_Q+2}, L_end - L_pc"); A(f"s_mov_b32 s{SRD_Q+3}, 0x20000")
        A(f"v_lshlrev_b32 v{pVal}, 7, v{vLane}")
        for k in range(2):
            A(f"s_movk_i32 s{sT0}, {k*8192}")
            A(f"buffer_load_dword v{12+k}, v{pVal}, s[{SRD_Q}:{SRD_Q+3}], s{sT0} offen")
        A.label("L_ctl_init")
    A("s_waitcnt lgkmcnt(0)")
    srd(SRD_D, 22, FB_END)
    sRepo, sPrev, sOn, sCy, sCp, sFw, sCorr = sBlk, sSlot, sPar, 28, 30, 31, 32
    A(f"s_mov_b32 s{sProg}, 0"); A(f"s_mov_b32 s{sCorr}, 0"); A(f"s_mov_b32 s{sOn}, 0")
    A(f"s_add_u32 s{sFbP}, s22, {WS_FB}"); A(f"s_addc_u32 s{sFbP+1}, s23, 0")
    A.c("reporters: workgroups 0..7")
    A(f"s_cmp_lt_u32 s{sPhys}, 8"); A(f"s_cselect_b32 s{sRepo}, 1, 0")
    A(f"s_and_b32 s{sT1}, s{sPhys}, 7"); A(f"s_lshl_b32 s{sT1}, s{sT1}, 2"); A(f"s_add_u32 s{sT1}, s{sT1}, {WS_FB}")
    A(f"v_mov_b32 v{pRep}, s{sT1}"); A(f"v_mov_b32 v{pThrA}, {L_THR}")
    A(f"s_memtime s[{sCy}:{sCy+1}]"); A(f"s_memrealtime s[{sNow}:{sNow+1}]")
    A("s_mov_b64 exec, 1")
    A("s_waitcnt vmcnt(0) lgkmcnt(0)")
    A("s_barrier")
    if stamp:
        A("s_memtime s[92:93]"); A("s_memrealtime s[94:95]"); A("s_waitcnt lgkmcnt(0)")
    A.label("L_ctl_loop")
    A("s_barrier")
    A(f"s_mov_b32 s{sPrev}, s{sNow}"); A(f"s_mov_b32 s{sCp}, s{sCy}")
    A(f"s_memtime s[{sCy}:{sCy+1}]"); A(f"s_memrealtime s[{sNow}:{sNow+1}]")
    A("s_waitcnt lgkmcnt(0)")
    if stamp == 5:
        A(f"s_lshr_b32 m0, s{sProg}, 9")
        A(f"s_sub_u32 s{sT0}, s{sNow}, s80")
        A(f"v_writelane_b32 v{pLog}, s{sT0}, m0")
        A("s_add_u32 m0, m0, 32"); A("s_nop 0")
        A(f"v_writelane_b32 v{pLog}, s{sLev}, m0")
    A.c("a slower shader clock stretches every round trip: widen the window with the shortfall")
    A(f"s_sub_u32 s{sT0}, s{sNow}, s{sPrev}"); A(f"s_mul_i32 s{sT0}, s{sT0}, {round(f0*16)}")
    A(f"s_sub_u32 s{sT1}, s{sCy}, s{sCp}"); A(f"s_lshl_b32 s{sT1}, s{sT1}, 4")
    A(f"s_sub_i32 s{sT0}, s{sT0}, s{sT1}")
    A(f"s_mul_i32 s{sT0}, s{sT0}, {round(kap*256*4096/(16*81.5*per))}")
    A(f"s_ashr_i32 s{sFw}, s{sT0}, 12")
    A.c("window from the lead over the reporters in the previous period")
    A(f"s_cmp_eq_u32 s{sOn}, 0")
    A("s_cbranch_scc1 L_ctl_set")
    A(f"s_mov_b32 s{sT0}, 0")
    if lam: A(f"s_mov_b32 s33, {-TAGW}")
    for k in range(8):
        A(f"s_sub_i32 s{sT1}, s{sRef+k}, s{sPrev}")
        A(f"s_add_i32 s{sT2}, s{sT1}, {TAGW}")
        A(f"s_cmp_lt_u32 s{sT2}, {2*TAGW}")
        A(f"s_cselect_b32 s{sT1}, s{sT1}, {late}")
        A(f"s_add_i32 s{sT0}, s{sT0}, s{sT1}")
        if lam: A(f"s_max_i32 s33, s33, s{sT1}")
    if lam:
        A.c("one die falling behind the others means the fabric is overloaded: everybody narrows")
        A(f"s_lshl_b32 s33, s33, 3"); A(f"s_sub_i32 s33, s33, s{sT0}"); A(f"s_sub_i32 s33, s33, {8*dead}")
        A("s_max_i32 s33, s33, 0"); A(f"s_mul_i32 s33, s33, {lam}"); A("s_lshr_b32 s33, s33, 5"); A("s_min_u32 s33, s33, 256")
    A(f"s_min_u32 s{sT1}, s{sOn}, {gcap}")
    A(f"s_cmp_gt_i32 s{sT0}, 0")
    A(f"s_cselect_b32 s{sOn}, s{sT1}, s{sOn}")
    A(f"s_mul_i32 s{sT0}, s{sT0}, s{sOn}")
    A(f"s_ashr_i32 s{sCorr}, s{sT0}, 5")
    if lam: A(f"s_add_i32 s{sCorr}, s{sCorr}, s33")
    A.label("L_ctl_set")
    A(f"s_sub_i32 s{sT0}, s{sFw}, s{sCorr}")
    A(f"s_add_i32 s{sT0}, s{sT0}, {int(thr0*256)}")
    A(f"s_max_i32 s{sT0}, s{sT0}, {lo*256}")
    A(f"s_min_i32 s{sLev}, s{sT0}, {hi*256}")
    A(f"v_mov_b32 v{pVal}, s{sLev}")
    A(f"ds_write_b32 v{pThrA}, v{pVal}")
    A.c("gain of this period (0: period not used)")
    A(f"s_and_b32 s{sT0}, s{sProg}, {(skip-1)*256}")
    A(f"s_cselect_b32 s{sOn}, 0, {gain}")
    A(f"s_cmp_ge_u32 s{sProg}, {int(g2at*64)*256}")
    A(f"s_cselect_b32 s{sOn}, {gain2}, s{sOn}")
    A(f"s_cmp_eq_u32 s{sProg}, {63*256}")
    A(f"s_cselect_b32 s{sOn}, 0, s{sOn}")
    A(f"s_mul_i32 s{sT0}, s{sOn}, s{sRepo}")
    A(f"s_cmp_eq_u32 s{sT0}, 0")
    A("s_cbranch_scc1 L_ctl_norep")
    A(f"v_mov_b32 v{pVal+2}, s{sNow}")
    A(f"buffer_store_dword v{pVal+2}, v{pRep}, s[{SRD_D}:{SRD_D+3}], s{sProg} offen sc1")
    A.label("L_ctl_norep")
    for k in range(3): A("s_barrier")
    A(f"s_cmp_eq_u32 s{sOn}, 0")
    A("s_cbranch_scc1 L_ctl_nold")
    A(f"s_load_dwordx8 s[{sRef}:{sRef+7}], s[{sFbP}:{sFbP+1}], s{sProg}")
    A.label("L_ctl_nold")
    A(f"s_add_u32 s{sProg}, s{sProg}, 256")
    A(f"s_cmp_lt_u32 s{sProg}, {64*256}")
    A("s_cbranch_scc1 L_ctl_loop")
    if stamp:
        A("s_mov_b64 exec, -1")
        A("s_memtime s[76:77]"); A("s_memrealtime s[78:79]"); A("s_waitcnt lgkmcnt(0)")
        A("s_sub_u32 s92, s76, s92"); A("s_sub_u32 s94, s78, s94")
        A("s_barrier")
        if stamp == 5:
            srd(76, 22, (9 << 20) + 65536)
            A(f"v_lshlrev_b32 v21, 2, v{vLane}")
            A(f"s_lshl_b32 s{sT0}, s2, 8"); A(f"s_add_u32 s{sT0}, s{sT0}, {9 << 20}")
            A(f"buffer_store_dword v{pLog}, v21, s[76:79], s{sT0} offen")
        A("s_branch L_fin")
    else:
        A("s_endpgm")

    A.c("==================== consumers")
    A.label("L_consumer")
    sU, sI, sTb, sEnd, sLg, sG2, sStep = sBlk, sPar, 76, 77, 78, 79, 91
    A.c("K lanes: kg*16 + t*4 + h (rows), kg*16 + h'*4 + qi (q); logit and V lanes: t*16 + ...")
    A(f"v_lshrrev_b32 v{vT1}, 2, v{vLane}")
    A(f"v_and_b32 v{vT2}, 3, v{vLane}")
    A(f"v_mul_u32_u24 v{vT3}, 384, v{vT2}")
    A(f"v_lshl_add_u32 v{vQA}, v{vT1}, 3, v{vT3}"); A(f"v_add_u32 v{vQA}, {L_Q}, v{vQA}")
    A(f"v_lshrrev_b32 v{vT3}, 4, v{vLane}"); A(f"v_lshl_add_u32 v{vT3}, v{vT3}, 2, v{vT2}")
    A(f"v_lshlrev_b32 v{vPart}, 3, v{vT3}"); A(f"v_add_u32 v{vPart}, {L_KZ}, v{vPart}")
    A(f"v_lshl_add_u32 v{vLogA}, v{vW}, 4, v{vT3}"); A(f"v_lshlrev_b32 v{vLogA}, 2, v{vLogA}")
    A(f"v_add_u32 v{vLogA}, {L_KZ - LEAD}, v{vLogA}")
    A(f"v_lshl_add_u32 v{vMaxA}, v{vT2}, 2, v{vW}")
    A(f"v_lshlrev_b32 v{vMaxA}, 2, v{vMaxA}"); A(f"v_add_u32 v{vMaxA}, {L_MAX}, v{vMaxA}")
    def rows(t, piece):
        A(f"v_lshl_add_u32 v{vN0}, v{vW}, 2, v{t}")
        A(f"v_lshl_add_u32 v{vRing}, v{vW}, 2, v{vN0}")
        A(f"v_mul_u32_u24 v{vRing}, 768, v{vRing}")
        A(f"v_lshl_add_u32 v{vRing}, v{piece}, 4, v{vRing}")
    A(f"v_and_b32 v{vT1}, 3, v{vT1}")
    rows(vT1, vT3)
    A(f"s_mov_b32 s{sLog2e}, {LOG2E:#x}"); A(f"s_mov_b32 s{sScale}, {SCALE:#x}"); A(f"s_mov_b32 s{sHi}, 0xffff0000")
    for r in (vM, vLa, vLb): A(f"v_mov_b32 v{r}, 0xff800000")
    A(f"s_mov_b32 s{sSlot}, {L_RING}")
    second_stretch()
    A.c("staged token number of the second stretch's first block; units per round")
    A(f"s_and_b32 s{sT0}, s{sU2}, 7"); A(f"s_cselect_b32 s{sT0}, 1, 0")
    A(f"s_cmp_eq_u32 s{sP}, 1"); A(f"s_cselect_b32 s{sG2}, 46, 43"); A(f"s_cselect_b32 s{sStep}, 43, s{sN1}")
    A(f"s_sub_u32 s{sG2}, s{sG2}, s{sT0}"); A(f"s_lshl_b32 s{sG2}, s{sG2}, 6")
    A("s_cmp_eq_u32 s2, 255"); A(f"s_cselect_b32 s{sStep}, 128, s{sStep}")
    def start_pass():
        A(f"s_mov_b32 s{sU}, 0"); A(f"s_mov_b32 s{sLg}, 0"); A(f"s_mov_b32 s{sEnd}, s{sStep}")
        A(f"s_and_b32 s{sI}, s{sU1}, 7"); A(f"s_cselect_b32 s{sTb}, -64, 0"); A(f"s_lshl_b32 s{sI}, s{sI}, 4")
    def advance():
        return [f"s_add_u32 s{sU}, s{sU}, 1",
                f"s_add_u32 s{sI}, s{sI}, 16", f"s_and_b32 s{sI}, s{sI}, 127",
                f"s_cselect_b32 s{sT0}, 0, 256", f"s_add_u32 s{sTb}, s{sTb}, s{sT0}",
                f"s_and_b32 s{sT0}, s{sU2}, 7", f"s_lshl_b32 s{sT0}, s{sT0}, 4",
                f"s_cmp_eq_u32 s{sU}, s{sN1}", f"s_cselect_b32 s{sI}, s{sT0}, s{sI}", f"s_cselect_b32 s{sTb}, s{sG2}, s{sTb}",
                f"s_lshr_b32 s{sLg}, s{sU}, 1", f"s_lshl_b32 s{sLg}, s{sLg}, 8",
                f"s_bitcmp1_b32 s{sU}, 0", f"s_cselect_b32 s{sT0}, {L_KS - L_KZ}, 0", f"s_add_u32 s{sLg}, s{sLg}, s{sT0}"]
    def tokens(a, b):
        return [f"v_add_u32 v{vT3}, s{sI}, v{vN0}",
                f"v_cmp_le_u32 vcc, 43, v{vT3}",
                f"v_add_u32 v{a}, s{sTb}, v{vT3}",
                f"v_add_u32 v{vT4}, 43, v{a}",
                f"v_cndmask_b32 v{a}, v{a}, v{vT4}, vcc",
                f"v_cmp_le_u32 vcc, 86, v{vT3}",
                f"v_add_u32 v{vT4}, 43, v{a}",
                f"v_add_u32 v{b}, 85, v{a}",
                f"v_cndmask_b32 v{a}, v{a}, v{vT4}, vcc",
                f"v_cndmask_b32 v{b}, v{vT4}, v{b}, vcc"]
    def par_reads():
        out = tokens(vPad, vPad+1)
        for e in range(2):
            out += [f"v_lshrrev_b32 v{vPad+e}, 6, v{vPad+e}", f"v_mul_u32_u24 v{vPad+e}, 384, v{vPad+e}", f"v_add_u32 v{vPad+e}, v{vPad+e}, v{vPart}"]
        for e in range(2):
            for j in range(3):
                out.append(f"ds_read_b64 {vr(vRaw+e*12+j*4, 2)}, v{vPad+e} offset:{j*128}")
                out.append(f"ds_read_b64 {vr(vRaw+e*12+j*4+2, 2)}, v{vPad+e} offset:{L_KS - L_KZ + j*128}")
        return out
    def fetch_unit(order, label=None):
        A(f"v_add_u32 v{vRd}, s{sSlot}, v{vRing}")
        A(f"s_add_u32 s{sSlot}, s{sSlot}, 24576")
        A(f"s_cmp_eq_u32 s{sSlot}, {L_RING + 73728}")
        A(f"s_cselect_b32 s{sSlot}, {L_RING}, s{sSlot}")
        for k in order:
            A(f"ds_read_b128 {vr(vX+4*k, 4)}, v{vRd} offset:{(k//3)*3072 + (k % 3)*256}")
    def dpp_sum(e):
        D = vD + 4*e
        L = vLa if e == 0 else vLb
        t = vT1 + e
        return [f"v_add_f32_dpp v{t}, v{D+1}, v{D} row_ror:12 row_mask:0xf bank_mask:0xf",
                f"v_add_f32_dpp v{t}, v{D+2}, v{t} row_ror:8 row_mask:0xf bank_mask:0xf",
                f"v_add_f32_dpp v{L}, v{D+3}, v{t} row_ror:4 row_mask:0xf bank_mask:0x1"]
    def xrows(op, r, t):
        for sw in ("v_permlane16_swap_b32", "v_permlane32_swap_b32"):
            A(f"v_mov_b32 v{t}, v{r}")
            A("s_nop 1")
            A(f"{sw} v{r}, v{t}")
            A(f"{op} v{r}, v{r}, v{t}")
    def q_reads():
        for j in range(3): A(f"ds_read_b64 {vr(vQ+2*j, 2)}, v{vQA} offset:{j*128}")
        A(f"v_add_u32 v{vQA}, 1536, v{vQA}")
    BANK0 = ("s_mov_b32 exec_lo, 0x000f000f", "s_mov_b32 exec_hi, 0x000f000f")
    start_pass()
    A("s_waitcnt vmcnt(0) lgkmcnt(0)")
    A("s_barrier")
    if stamp: A("s_memrealtime s[92:93]")
    q_reads()
    for x in par_reads(): A(x)

    A.label("L_kstep")
    A("s_waitcnt lgkmcnt(0)")
    for k in range(6):
        for dst, src in ((vZ+4*k, vRaw+4*k), (vS+4*k, vRaw+4*k+2)):
            for h in range(2):
                A(f"v_lshlrev_b32 v{dst+2*h}, 16, v{src+h}")
                A(f"v_and_b32 v{dst+2*h+1}, s{sHi}, v{src+h}")
    A("s_barrier")
    fetch_unit(range(6))
    A(f"v_add_u32 v{vLg}, s{sLg}, v{vLogA}")
    for x in advance(): A(x)
    for e in range(2):
        o = e*12
        A(f"s_waitcnt lgkmcnt({3 - 3*e})")
        for k in range(12): A(f"v_cvt_f32_i32 v{vX+o+k}, v{vX+o+k}")
        if pk:
            for k in range(0, 12, 2): A(f"v_pk_add_f32 {vr(vX+o+k, 2)}, {vr(vX+o+k, 2)}, {vr(vZ+o+k, 2)} neg_lo:[0,1] neg_hi:[0,1]")
        else:
            for k in range(12): A(f"v_sub_f32 v{vX+o+k}, v{vX+o+k}, v{vZ+o+k}")
        for k in range(12): A(f"v_cvt_pk_bf16_f32 v{vX+o+k}, 0, v{vX+o+k}")
        if pk:
            for k in range(0, 12, 2): A(f"v_pk_mul_f32 {vr(vX+o+k, 2)}, {vr(vX+o+k, 2)}, {vr(vS+o+k, 2)}")
        else:
            for k in range(12): A(f"v_mul_f32 v{vX+o+k}, v{vX+o+k}, v{vS+o+k}")
        packs = [f"v_cvt_pk_bf16_f32 v{vKb+e*6+k}, v{vX+o+2*k}, v{vX+o+2*k+1}" for k in range(6)]
        if e == 1:
            d = dpp_sum(0)
            packs = packs[0:2] + d[0:1] + packs[2:4] + d[1:2] + packs[4:6] + d[2:3]
        for x in packs: A(x)
        D = vr(vD+4*e, 4)
        for j in range(3):
            A(f"v_mfma_f32_16x16x16_bf16 {D}, {vr(vKb+e*6+2*j, 2)}, {vr(vQ+2*j, 2)}, {'0' if j == 0 else D}")
    pr = par_reads(); d = dpp_sum(1)
    for x in pr[:20] + d[0:1] + pr[20:22] + d[1:2] + pr[22:] + d[2:3]: A(x)
    A(f"v_cvt_pk_bf16_f32 v{vT1}, 0, v{vLa}")
    A(f"v_cvt_pk_bf16_f32 v{vT2}, 0, v{vLb}")
    A(f"v_mul_f32 v{vT1}, s{sScale}, v{vT1}")
    A(f"v_mul_f32 v{vT2}, s{sScale}, v{vT2}")
    A(f"v_cvt_pk_bf16_f32 v{vT3}, v{vT1}, v{vT2}")
    A(f"v_max3_f32 v{vM}, v{vM}, v{vT1}, v{vT2}")
    for x in BANK0: A(x)
    A(f"ds_write_b32 v{vLg}, v{vT3}")
    A("s_mov_b64 exec, -1")
    A(f"s_cmp_eq_u32 s{sU}, s{sEnd}")
    A("s_cbranch_scc0 L_kstep")
    A.c("end of a K round: publish the wave's max, fetch the next q")
    xrows("v_max_f32", vM, vT1)
    A(f"v_cvt_pk_bf16_f32 v{vM}, 0, v{vM}")
    A(f"v_mul_f32 v{vM}, s{sLog2e}, v{vM}")
    A("s_waitcnt lgkmcnt(0)")
    A("s_mov_b64 exec, 15")
    A(f"ds_write_b32 v{vMaxA}, v{vM}")
    A("s_mov_b64 exec, -1")
    q_reads()
    A(f"v_add_u32 v{vMaxA}, 64, v{vMaxA}")
    A(f"v_mov_b32 v{vM}, 0xff800000")
    A(f"s_add_u32 s{sEnd}, s{sEnd}, s{sStep}"); A(f"s_min_u32 s{sEnd}, s{sEnd}, 128")
    A(f"s_cmp_lt_u32 s{sU}, 128")
    A("s_cbranch_scc1 L_kstep")

    if stamp: A("s_memrealtime s[94:95]")
    A(f"v_lshrrev_b32 v{vT1}, 4, v{vLane}"); A(f"v_and_b32 v{vT2}, 15, v{vLane}")
    rows(vT1, vT2)
    A.c("addresses for the end of a round and for the last hand-off (lane = ch*4 + qi, wave = third)")
    sImg, sOwn, sOut, sSel = sC, sProg, sBase, 84
    A(f"v_and_b32 v{vT1}, 3, v{vLane}")
    A(f"v_lshlrev_b32 v{rSta}, 4, v{vT1}")
    A(f"v_add_u32 v{vMaxA}, {L_MAX}, v{rSta}")
    A(f"v_add_u32 v{rSt}, {L_STAT}, v{rSta}")
    A(f"v_lshl_add_u32 v{vStatA}, v{vW}, 6, v{rSt}")
    A(f"v_lshl_add_u32 v{rSta}, v{vW}, 6, v{rSta}"); A(f"v_add_u32 v{rSta}, 3072, v{rSta}")
    A(f"v_mul_u32_u24 v{vSlotA}, 3072, v{vW}"); A(f"v_lshl_add_u32 v{vSlotA}, v{vLane}, 4, v{vSlotA}")
    A(f"v_add_u32 v{vSlotA}, {L_SLOT}, v{vSlotA}")
    A(f"v_lshlrev_b32 v{vT2}, 10, v{vW}")
    A(f"v_lshl_add_u32 v{rLin}, v{vLane}, 4, v{vT2}")
    A(f"v_lshl_add_u32 v{rRd}, v{vLane}, 2, v{vT2}"); A(f"v_add_u32 v{rRd}, {L_SLOT}, v{rRd}")
    A(f"v_mul_u32_u24 v{rOut}, 384, v{vT1}"); A(f"v_lshrrev_b32 v{vT2}, 2, v{vLane}")
    A(f"v_lshl_add_u32 v{rOut}, v{vT2}, 3, v{rOut}"); A(f"v_lshl_add_u32 v{rOut}, v{vW}, 7, v{rOut}")
    srd(SRD_O, 18, 256*1536); srd(SRD_L, 22, 255*RIMG)
    A(f"s_mul_i32 s{sImg}, s{sJ2}, {3*RIMG}"); A(f"s_mul_i32 s{sOwn}, s{sM2}, {RIMG}")
    A(f"s_add_u32 s{sImg+1}, s{sImg}, {RIMG}"); A(f"s_add_u32 s{sImg+2}, s{sImg}, {2*RIMG}")
    A(f"s_sub_u32 s{sOut}, 255, s{sJ2}"); A(f"s_mul_i32 s{sOut}, s{sOut}, 1536")
    for c in range(4): A(f"s_mov_b32 s{sSel+c}, {0x07060500 | c:#x}")
    A(f"s_mov_b32 s{sSel+4}, 0x0c0c0400"); A(f"s_mov_b32 s{sSel+5}, 0x04000c0c"); A(f"s_mov_b32 s{sSel+6}, 0xffffff00")
    start_pass()
    A("s_waitcnt lgkmcnt(0)")
    for k in range(4): A(f"v_mov_b32 v{vP+k}, 0")
    A.c("the first unit's barrier also makes every wave's max visible")
    A("s_barrier")

    A.label("L_vround")
    for k in range(12): A(f"v_mov_b32 v{vAcc+k}, 0")
    A(f"v_mov_b32 v{vSum}, 0"); A(f"v_mov_b32 v{vCor}, 0")
    A.label("L_vstep")
    A.c("P operand of unit sU: register c holds bf16(p*vs) of both streams in rows 4c..4c+3")
    for x in tokens(vSZ, vSZ+1): A(x)
    A(f"v_add_u32 v{vLg}, s{sLg}, v{vLogA}")
    A(f"s_mov_b32 s{sT0}, {L_VS}")
    for e in range(2): A(f"v_lshl_add_u32 v{vSZ+e}, v{vSZ+e}, 1, s{sT0}")
    A(f"ds_read_b128 {vr(vMx, 4)}, v{vMaxA}")
    A(f"ds_read_b32 v{vLg}, v{vLg}")
    for e in range(2): A(f"ds_read_u16 v{vSZ+2+e}, v{vSZ+e} offset:{L_VZ - L_VS}")
    for e in range(2): A(f"ds_read_u16 v{vSZ+e}, v{vSZ+e}")
    for x in advance(): A(x)
    E_ = vE
    for x in ["s_waitcnt lgkmcnt(4)",
              f"v_max_f32 v{vM}, v{vMx}, v{vMx+1}",
              f"v_max3_f32 v{vM}, v{vM}, v{vMx+2}, v{vMx+3}",
              f"v_lshlrev_b32 v{E_}, 16, v{vLg}",
              f"v_and_b32 v{E_+1}, s{sHi}, v{vLg}",
              f"v_fma_f32 v{E_}, v{E_}, s{sLog2e}, -v{vM}",
              f"v_fma_f32 v{E_+1}, v{E_+1}, s{sLog2e}, -v{vM}",
              f"v_exp_f32 v{E_}, v{E_}",
              f"v_exp_f32 v{E_+1}, v{E_+1}",
              "s_waitcnt lgkmcnt(0)",
              f"v_lshlrev_b32 v{E_+2}, 16, v{vSZ}",
              f"v_lshlrev_b32 v{E_+3}, 16, v{vSZ+1}",
              f"v_mul_f32 v{E_+2}, v{E_}, v{E_+2}",
              f"v_mul_f32 v{E_+3}, v{E_+1}, v{E_+3}",
              f"v_add_f32 v{vSum}, v{vSum}, v{E_}",
              f"v_cvt_pk_bf16_f32 v{E_+2}, v{E_+2}, v{E_+3}",
              f"v_add_f32 v{vSum}, v{vSum}, v{E_+1}",
              f"v_lshlrev_b32 v{E_+4}, 16, v{vSZ+2}",
              f"v_lshlrev_b32 v{E_+5}, 16, v{vSZ+3}",
              f"v_lshlrev_b32 v{E_}, 16, v{E_+2}",
              f"v_and_b32 v{E_+1}, s{sHi}, v{E_+2}",
              f"v_fmac_f32 v{vCor}, v{E_}, v{E_+4}",
              f"v_fmac_f32 v{vCor}, v{E_+1}, v{E_+5}"]: A(x)
    for c in range(4):
        A(f"v_mov_b32_dpp v{vP+c}, v{E_+2} quad_perm:[0,1,2,3] row_mask:0xf bank_mask:{1 << c:#x}")
    A(f"s_cmp_eq_u32 s{sU}, s{sEnd}")
    A("s_cbranch_scc0 L_vnostat")
    A.c("last unit of a round: its (m, l, c) are final, park them in LDS")
    A(f"v_mov_b32 v{rTag}, {L_TAG}")
    A(f"ds_read_b32 v{rTag}, v{rTag}")
    xrows("v_add_f32", vSum, vT1)
    xrows("v_add_f32", vCor, vT1)
    A(f"v_mov_b32 v{vMx}, v{vM}"); A(f"v_mov_b32 v{vMx+1}, v{vSum}"); A(f"v_mov_b32 v{vMx+2}, v{vCor}")
    A(f"ds_write_b128 v{vStatA}, {vr(vMx, 4)}")
    A(f"v_add_u32 v{vMaxA}, 64, v{vMaxA}")
    A.label("L_vnostat")
    A(f"s_cmp_eq_u32 s{sU}, 1")
    A("s_cbranch_scc1 L_vnobar")
    A("s_barrier")
    A.label("L_vnobar")
    fetch_unit((0, 3, 1, 4, 2, 5))
    mf = lambda j: f"v_mfma_f32_16x16x32_bf16 {vr(vAcc+4*j, 4)}, {vr(vP, 4)}, {vr(vB+4*j, 4)}, {vr(vAcc+4*j, 4)}"
    for j in range(3):
        A(f"s_waitcnt lgkmcnt({4 - 2*j})")
        for n, (o, c) in enumerate((o, c) for o in (0, 12) for c in range(4)):
            A(f"v_cvt_f32_i32 v{vX+o+4*j+c}, v{vX+o+4*j+c}")
            if j and n == 1: A(mf(j-1))
        for c in range(4): A(f"v_cvt_pk_bf16_f32 v{vB+4*j+c}, v{vX+4*j+c}, v{vX+12+4*j+c}")
    A(f"s_cmp_eq_u32 s{sU}, s{sEnd}")
    A("s_nop 0")
    A(mf(2))
    A("s_cbranch_scc0 L_vstep")
    A.c("end of a V round: lane c*16+ch holds O[query][64*third + 4*ch + c]; park it in LDS")
    A(f"ds_write_b128 v{vSlotA}, {vr(vAcc, 4)}")
    A(f"ds_write_b128 v{vSlotA}, {vr(vAcc+4, 4)} offset:1024")
    A(f"s_add_u32 s{sEnd}, s{sEnd}, s{sStep}"); A(f"s_min_u32 s{sEnd}, s{sEnd}, 128")
    A(f"s_cmp_lt_u32 s{sU}, 128")
    A("s_nop 1")
    A(f"ds_write_b128 v{vSlotA}, {vr(vAcc+8, 4)} offset:2048")
    A("s_waitcnt lgkmcnt(0)")
    A("s_cbranch_scc1 L_vround")
    A("s_barrier")

    A(f"s_cmp_eq_u32 s{sW}, 3")
    A("s_cbranch_scc1 L_fin")
    St, O, I = vX, vZ, [vAcc, vAcc+8, vAcc+16]
    rn = [0]
    def by_part(body):
        rn[0] += 1
        for p in range(3):
            if p < 2:
                A(f"s_cmp_eq_u32 s{sP2}, {p}")
                A(f"s_cbranch_scc0 L_rp{rn[0]}{p}")
            body(p)
            if p < 2:
                A(f"s_branch L_rp{rn[0]}2")
                A.label(f"L_rp{rn[0]}{p}")
        A.label(f"L_rp{rn[0]}2")
    def r_loads(own, fl=None):
        fl = fl or lf2
        ps = [x for x in range(3) if x != own]
        for p in ps:
            A(f"buffer_load_dwordx4 {vr(I[p]+4, 4)}, v{rSta}, s[{SRD_L}:{SRD_L+3}], s{sImg+p} offen {fl}")
        for p in ps:
            A(f"buffer_load_dwordx4 {vr(I[p], 4)}, v{rLin}, s[{SRD_L}:{SRD_L+3}], s{sImg+p} offen {fl}")
    for w in range(4): A(f"ds_read_b128 {vr(St+4*w, 4)}, v{rSt} offset:{w*64}")
    for w in range(4):
        for h in range(2):
            A(f"ds_read2st64_b32 {vr(O+4*w+2*h, 2)}, v{rRd} offset0:{12*w+2*h} offset1:{12*w+2*h+1}")
    if rspec: by_part(lambda p: r_loads(p, lf1))
    A("s_waitcnt lgkmcnt(8)")
    for k in (1, 2):
        A(f"v_add_f32 v{St+k}, v{St+k}, v{St+4+k}"); A(f"v_add_f32 v{St+8+k}, v{St+8+k}, v{St+12+k}")
    for k in (1, 2): A(f"v_add_f32 v{St+k}, v{St+k}, v{St+8+k}")
    A(f"v_mov_b32 v{St+3}, v{rTag}")
    A("s_waitcnt lgkmcnt(4)")
    for c in range(4): A(f"v_add_f32 v{O+c}, v{O+c}, v{O+4+c}")
    A("s_waitcnt lgkmcnt(0)")
    for c in range(4): A(f"v_add_f32 v{O+8+c}, v{O+8+c}, v{O+12+c}")
    for c in range(4): A(f"v_add_f32 v{O+c}, v{O+c}, v{O+8+c}")
    for c in range(4): A(f"v_sub_f32 v{O+c}, v{O+c}, v{St+2}")
    A("s_cmp_eq_u32 s2, 255")
    A("s_cbranch_scc1 L_rsolo")
    for c in range(4): A(f"v_perm_b32 v{O+c}, v{O+c}, v{rTag}, s{sSel+c}")
    if nofin: A("s_branch L_fin")
    if tl and 1 in tl: A("s_memrealtime s[94:95]")
    A(f"buffer_store_dwordx4 {vr(O, 4)}, v{rLin}, s[{SRD_L}:{SRD_L+3}], s{sOwn} offen {sf}")
    A("s_mov_b64 exec, 15")
    A(f"buffer_store_dwordx4 {vr(St, 4)}, v{rSta}, s[{SRD_L}:{SRD_L+3}], s{sOwn} offen {sf}")
    A("s_mov_b64 exec, -1")
    def own_image(p):
        for c in range(4):
            A(f"v_mov_b32 v{I[p]+c}, v{O+c}"); A(f"v_mov_b32 v{I[p]+4+c}, v{St+c}")
        if not rspec:
            A("s_waitcnt vmcnt(0)")
            if tl and 2 in tl: A("s_memrealtime s[92:93]")
            r_loads(p)
    by_part(own_image)
    def r_check(wa, wb):
        A(f"s_waitcnt vmcnt({wa})")
        for p in range(3): A(f"v_xor_b32 v{St+4+p}, v{I[p]+7}, v{rTag}")
        A(f"v_or3_b32 v{vT2}, v{St+4}, v{St+5}, v{St+6}")
        A(f"s_waitcnt vmcnt({wb})")
        for p in range(3):
            A(f"v_perm_b32 v{vT3}, v{I[p]+1}, v{I[p]}, s{sSel+4}")
            A(f"v_perm_b32 v{vT4}, v{I[p]+3}, v{I[p]+2}, s{sSel+5}")
            A(f"v_bitop3_b32 v{vT3}, v{vT3}, v{vT4}, v{rTag} bitop3:0x56")
            A(f"v_or_b32 v{vT2}, v{vT2}, v{vT3}")
        A(f"v_cmp_eq_u32 vcc, 0, v{vT2}")
    if rspec:
        r_check(4, 2)
        A("s_nop 4")
        A("s_cmp_eq_u64 vcc, -1")
        A("s_cbranch_scc1 L_rmerge")
        A("s_waitcnt vmcnt(0)")
        by_part(r_loads)
    r_check(2, 0)
    A.label("L_rmerge")
    if tl and 3 in tl: A("s_memrealtime s[94:95]")
    A.c("a lane that sees all three parts complete stores its four outputs")
    A(f"v_max3_f32 v{vT1}, v{I[0]+4}, v{I[1]+4}, v{I[2]+4}")
    for p in range(3): A(f"v_sub_f32 v{I[p]+4}, v{I[p]+4}, v{vT1}")
    for p in range(3): A(f"v_exp_f32 v{I[p]+4}, v{I[p]+4}")
    A("s_and_b64 exec, exec, vcc")
    A("s_cbranch_execz L_fin")
    for p in range(3):
        for c in range(4): A(f"v_and_b32 v{I[p]+c}, s{sSel+6}, v{I[p]+c}")
    A(f"v_mul_f32 v{St+1}, v{I[0]+4}, v{I[0]+5}")
    for p in (1, 2): A(f"v_fmac_f32 v{St+1}, v{I[p]+4}, v{I[p]+5}")
    for c in range(4):
        A(f"v_mul_f32 v{O+c}, v{I[0]+c}, v{I[0]+4}")
        for p in (1, 2): A(f"v_fmac_f32 v{O+c}, v{I[p]+c}, v{I[p]+4}")
    A.label("L_rsolo")
    A(f"v_rcp_f32 v{St+1}, v{St+1}")
    A("s_nop 0")
    for c in range(4): A(f"v_mul_f32 v{O+c}, v{O+c}, v{St+1}")
    for k in range(2): A(f"v_cvt_pk_bf16_f32 v{O+4+k}, v{O+2*k}, v{O+2*k+1}")
    A(f"buffer_store_dwordx2 {vr(O+4, 2)}, v{rOut}, s[{SRD_O}:{SRD_O+3}], s{sOut} offen {of}")
    A("s_branch L_fin")

    A.c("==================== merge of the first-region heads")
    A.label("L_finisher")
    fOff, fLin, fTag, fM, fL, fT, fSta, fH, fHa = 8, 9, 10, 11, 12, 13, 14, 15, 7
    IMG = 4352
    fSt, fO = 16, 32
    E = [80, 100, 120]
    sN, sTag, sDone, sIb, sH1 = sM, sProg, sLev, sSlot, sPar
    A(f"v_and_b32 v{fSta}, 3, v{vLane}")
    A(f"v_mul_u32_u24 v{fOff}, 384, v{fSta}")
    A(f"v_lshrrev_b32 v{fT}, 2, v{vLane}")
    A(f"v_lshl_add_u32 v{fOff}, v{fT}, 3, v{fOff}")
    A(f"v_lshlrev_b32 v{fLin}, 4, v{vLane}")
    A(f"v_lshlrev_b32 v{fSta}, 4, v{fSta}")
    A(f"s_memrealtime s[{sNow}:{sNow+1}]")
    A("s_waitcnt lgkmcnt(0)")
    srd(SRD_O, 18, 256*1536); srd(SRD_D, 20, 256); srd(SRD_L, 22, WS_E + 340*IMG)
    def claim_tag(wait=True):
        A(f"s_or_b32 s{sTag}, s{sNow}, 1")
        A(f"v_mov_b32 v{fSt}, s{sTag}"); A(f"v_mov_b32 v{fSt+1}, 0")
        A("s_mov_b64 exec, 1")
        A(f"buffer_atomic_cmpswap {vr(fSt, 2)}, v{fLin}, s[{SRD_D}:{SRD_D+3}], 0 offen {'sc0 ' if wait else ''}sc1")
        A("s_mov_b64 exec, -1")
        if not wait: return
        A("s_waitcnt vmcnt(0)")
        A(f"v_readfirstlane_b32 s{sT0}, v{fSt}")
        A("s_nop 3")
        A(f"s_cmp_eq_u32 s{sT0}, 0")
        A(f"s_cselect_b32 s{sTag}, s{sTag}, s{sT0}")
    A.label("L_fk")
    A("s_waitcnt vmcnt(56)")
    uid = [0]
    def barriers(n):
        uid[0] += 1
        A(f"s_movk_i32 s{sN}, {n}")
        A.label(f"L_fb{uid[0]}")
        A("s_barrier")
        A(f"s_sub_u32 s{sN}, s{sN}, 1")
        A(f"s_cmp_lg_u32 s{sN}, 0")
        A(f"s_cbranch_scc1 L_fb{uid[0]}")
    barriers(6)
    A("s_waitcnt vmcnt(0)")
    A("s_cmp_eq_u32 s2, 0")
    A("s_cbranch_scc0 L_fk2")
    claim_tag(False)
    A.label("L_fk2")
    barriers(122)
    A(f"s_load_dword s{sTag}, s[20:21], 0")
    A("s_barrier")
    A("s_waitcnt lgkmcnt(0)")
    A(f"s_cmp_eq_u32 s{sTag}, 0")
    A("s_cbranch_scc0 L_ftag")
    claim_tag()
    A.label("L_ftag")
    A(f"v_mov_b32 v{fTag}, s{sTag}")
    A(f"v_mov_b32 v{fT}, {L_TAG}")
    A(f"ds_write_b32 v{fT}, v{fTag}")
    A.c("image numbers of region-1 head h: 2h (owner), 2h+1 (helper)")
    A(f"s_lshr_b32 s{sH1}, s{sP}, 1"); A(f"s_lshl_b32 s{sT0}, s{sJ}, 1"); A(f"s_add_u32 s{sH1}, s{sH1}, s{sT0}")
    A(f"s_mul_i32 s{sIb}, s{sH1}, {2*IMG}"); A(f"s_add_u32 s{sIb}, s{sIb}, {WS_E}")
    A("s_waitcnt lgkmcnt(0)")
    def combine(I):
        A(f"v_add_u32 v{fT}, {L_STAT}, v{fSta}")
        A(f"v_lshlrev_b32 v{fM}, 2, v{vLane}"); A(f"v_add_u32 v{fM}, {L_SLOT}, v{fM}")
        for w in range(4): A(f"ds_read_b128 {vr(fSt+4*w, 4)}, v{fT} offset:{w*64}")
        for k in range(24):
            if k in (8, 16): A("s_waitcnt lgkmcnt(4)")
            A(f"ds_read2st64_b32 {vr(fO+2*k, 2)}, v{fM} offset0:{2*k} offset1:{2*k+1}")
        for k in range(5): A(f"v_mov_b32 v{I+4*k+3}, v{fTag}")
        A(f"v_mov_b32 v{I+16}, v{fSt}")
        for k in (1, 2):
            A(f"v_add_f32 v{fSt+k}, v{fSt+k}, v{fSt+4+k}"); A(f"v_add_f32 v{fSt+8+k}, v{fSt+8+k}, v{fSt+12+k}")
            A(f"v_add_f32 v{I+16+k}, v{fSt+k}, v{fSt+8+k}")
        A("s_waitcnt lgkmcnt(0)")
        for k in range(12):
            A(f"v_add_f32 v{fO+k}, v{fO+k}, v{fO+12+k}"); A(f"v_add_f32 v{fO+24+k}, v{fO+24+k}, v{fO+36+k}")
            A(f"v_add_f32 v{fO+k}, v{fO+k}, v{fO+24+k}")
            A(f"v_sub_f32 v{I + (k//3)*4 + k % 3}, v{fO+k}, v{I+18}")
    def load(I, sb, off):
        A(f"s_add_u32 s{sT0}, s{sb}, {off}"); A(f"s_add_u32 s{sT1}, s{sb}, {off + 4096}")
        A(f"buffer_load_dwordx4 {vr(I+16, 4)}, v{fSta}, s[{SRD_L}:{SRD_L+3}], s{sT1} offen {lfe}")
        for k in range(nst):
            A(f"buffer_load_dwordx4 {vr(I+4*k, 4)}, v{fLin}, s[{SRD_L}:{SRD_L+3}], s{sT0} offen offset:{k*1024} {lfe}")
    def publish(I, sb, off):
        A(f"s_add_u32 s{sT0}, s{sb}, {off}"); A(f"s_add_u32 s{sT1}, s{sb}, {off + 4096}")
        for k in range(nst):
            A(f"buffer_store_dwordx4 {vr(I+4*k, 4)}, v{fLin}, s[{SRD_L}:{SRD_L+3}], s{sT0} offen offset:{k*1024} {sfe}")
        A("s_mov_b64 exec, 15")
        A(f"buffer_store_dwordx4 {vr(I+16, 4)}, v{fSta}, s[{SRD_L}:{SRD_L+3}], s{sT1} offen {sfe}")
        A("s_mov_b64 exec, -1")
    def check(imgs):
        g = [I+4*k+3 for I in imgs for k in list(range(nst)) + [4]]
        A(f"v_xor_b32 v{fT}, v{fTag}, v{g[0]}")
        for r in g[1:]:
            A(f"v_xor_b32 v{fM}, v{fTag}, v{r}")
            A(f"v_or_b32 v{fT}, v{fT}, v{fM}")
        A(f"v_cmp_ne_u32 vcc, 0, v{fT}")
        A("s_nop 4")
        A("s_cmp_eq_u64 vcc, 0")
    def merge(imgs, shead, add):
        n = len(imgs)
        F = fSt
        if n == 3: A(f"v_max3_f32 v{fM}, v{imgs[0]+16}, v{imgs[1]+16}, v{imgs[2]+16}")
        else:      A(f"v_max_f32 v{fM}, v{imgs[0]+16}, v{imgs[-1]+16}")
        for p in range(n): A(f"v_sub_f32 v{F+p}, v{imgs[p]+16}, v{fM}")
        for p in range(n): A(f"v_exp_f32 v{F+p}, v{F+p}")
        A("s_nop 0")
        A(f"v_mul_f32 v{fL}, v{F}, v{imgs[0]+17}")
        for p in range(1, n): A(f"v_fmac_f32 v{fL}, v{F+p}, v{imgs[p]+17}")
        A(f"v_rcp_f32 v{fL}, v{fL}")
        A(f"s_add_u32 s{sT0}, s{shead}, {add}")
        A(f"s_mul_i32 s{sT0}, s{sT0}, 1536")
        for p in range(n): A(f"v_mul_f32 v{F+p}, v{F+p}, v{fL}")
        for k in range(12):
            o = (k//3)*4 + k % 3
            A(f"v_mul_f32 v{fO+k}, v{imgs[0]+o}, v{F}")
            for p in range(1, n): A(f"v_fmac_f32 v{fO+k}, v{imgs[p]+o}, v{F+p}")
        for k in range(6): A(f"v_cvt_pk_bf16_f32 v{fO+12+k}, v{fO+2*k}, v{fO+2*k+1}")
        for j in range(3):
            A(f"buffer_store_dwordx2 {vr(fO+12+2*j, 2)}, v{fOff}, s[{SRD_O}:{SRD_O+3}], s{sT0} offen offset:{j*128} {of}")
    A("s_cmp_eq_u32 s2, 255")
    A("s_cbranch_scc1 L_fin")
    A(f"s_cmp_eq_u32 s{sP}, 1")
    A("s_cbranch_scc1 L_fmid")

    A.c("outer workgroup: owns a region-1 head")
    barriers(86)
    combine(E[0])
    barriers(42)
    load(E[1], sIb, IMG)
    A("s_barrier")
    A("s_waitcnt vmcnt(0)")
    check([E[1]])
    A("s_cbranch_scc1 L_fo7")
    publish(E[0], sIb, 0)
    A("s_waitcnt vmcnt(0)")
    load(E[1], sIb, IMG)
    A("s_waitcnt vmcnt(0)")
    check([E[1]])
    A("s_cbranch_scc0 L_fin")
    A.label("L_fo7")
    merge(E[:2], sH1, 0)
    A("s_branch L_fin")

    A.label("L_fmid")
    A.c("middle workgroup: helps with two region-1 heads")
    A(f"v_and_b32 v{fHa}, 1, v{vLane}")
    A(f"v_mul_u32_u24 v{fHa}, {2*IMG}, v{fHa}")
    A(f"v_add_u32 v{fHa}, {4096 + 12}, v{fHa}")
    barriers(44)
    combine(E[0])
    barriers(43)
    combine(E[1])
    barriers(41 - early)
    if nofin: A("s_branch L_fin")
    publish(E[0], sIb, IMG)
    publish(E[1], sIb, 3*IMG)
    for k in range(early + 1): A("s_barrier")
    A("s_waitcnt vmcnt(0)")
    A(f"buffer_load_dword v{fH}, v{fHa}, s[{SRD_L}:{SRD_L+3}], s{sIb} offen sc1")
    A("s_waitcnt vmcnt(0)")
    A.c("an owner that missed its helper image has published its own: finish that head here")
    A(f"v_cmp_eq_u32 vcc, v{fH}, v{fTag}")
    A("s_nop 4")
    A(f"s_and_b32 s{sDone}, vcc_lo, 3")
    A("s_cbranch_scc0 L_fin")
    for h in range(2):
        A(f"s_bitcmp1_b32 s{sDone}, {h}")
        A(f"s_cbranch_scc0 L_fm3{h}")
        A("s_waitcnt vmcnt(0)")
        load(E[2], sIb, 2*h*IMG)
        A("s_waitcnt vmcnt(0)")
        check([E[2]])
        A(f"s_cbranch_scc0 L_fm3{h}")
        merge([E[2], E[h]], sH1, h)
        A.label(f"L_fm3{h}")
    A.label("L_fin")
    if stamp:
        A("s_mov_b64 exec, -1")
        stamp_out(None)
    A.label("L_end")
    A("s_endpgm")
    if f2:
        import mkmap
        m1 = [mkmap.apply(mkmap.linear_cols(xm), w) for w in range(256)]
        m2 = mkmap.second(m1, f2, keep)[0]
        assert sorted(m2) == list(range(256)) and all((a % 3 == 1) == (b % 3 == 1) and (a == 255) == (b == 255) for a, b in zip(m1, m2))
        A(".p2align 8")
        A(".type second_item,@object")
        A.label("second_item")
        for k in range(0, 256, 16): A(".byte " + ", ".join(map(str, m2[k:k+16])))
        A(".size second_item, 256")

    kn = name + "_kernel"
    hdr = open(f"/code/{NAME}.s.ref").read().split("; Override launch")[0]
    nv = (NV + 7)//8*8
    s = hdr + f"""; @launch grid=(256,1,1) block=(448,1,1) lds={LDS}
{DOC}.amdgcn_target "amdgcn-amd-amdhsa--gfx950"
.text
.globl {kn}
.p2align 8
.type {kn},@function
{kn}:
{A.text()}
.section .rodata,"a"
.p2align 6
.amdhsa_kernel {kn}
  .amdhsa_next_free_vgpr {nv}
  .amdhsa_next_free_sgpr 102
  .amdhsa_accum_offset {nv}
  .amdhsa_group_segment_fixed_size 0
  .amdhsa_kernarg_size 80
  .amdhsa_user_sgpr_count 2
  .amdhsa_user_sgpr_kernarg_segment_ptr 1
  .amdhsa_system_sgpr_workgroup_id_x 1
  .amdhsa_float_denorm_mode_32 3
.end_amdhsa_kernel
"""
    return s, kn, f"{kn}:256:448:{LDS}"

if __name__ == "__main__":
    kw = {}
    out = f"/code/{NAME}.s"
    for a in sys.argv[1:]:
        k, v = a.split("=")
        if k == "out": out = v
        else: kw[k] = eval(v)
    s, kn, spec = gen(**kw)
    open(out, "w").write(s)
    print(out, spec)
```
